```python
import torch

def _softmax(x, axis=-1):
    return torch.softmax(x, dim=axis)
def _gelu(x):
    return torch.nn.functional.gelu(x, approximate="tanh")
def _silu(x):
    return torch.nn.functional.silu(x)
def _sigmoid(x):
    return torch.sigmoid(x)
def _layernorm(x, axis=-1, eps=1e-5):
    m = x.mean(dim=axis, keepdim=True)
    v = x.var(dim=axis, keepdim=True, unbiased=False)
    return (x - m) / torch.sqrt(v + eps)
def _scatter_add(tgt, idx, src, axis=0):
    return tgt.clone().index_add_(axis, idx, src)
def _segment_sum(src, seg, n):
    out = torch.zeros((n,) + src.shape[1:], dtype=src.dtype)
    return out.index_add_(0, seg, src)
def _pad(x, pw):
    flat = tuple(v for pair in reversed(pw) for v in pair)
    return torch.nn.functional.pad(x, flat)

kernel_name = 'parallel_sum__compressed_kv_cla__dense_activation_gelu__prompt'

def setup_inputs():

    _w = (lambda a: (lambda t: t.to(torch.bfloat16) if t.is_floating_point() else t)(torch.as_tensor(a)))
    def _A_setup():
        B, H, Sq, Sk, D, M = 1, 32, 2048, 2048, 128, 1024
        Dc = 4 * D
        return {
            "x": _w((lambda *s: torch.randn(*s, dtype=torch.bfloat16) * 0.05)(B, Sq, M)),
            "c_kv": _w((lambda *s: torch.randn(*s, dtype=torch.bfloat16) * 0.4)(B, Sk, Dc)),
            "w_q": _w((lambda *s: torch.randn(*s, dtype=torch.bfloat16) * 3.2)(M, H, D) * (M ** -0.5)),
            "w_uk": _w((lambda *s: torch.randn(*s, dtype=torch.bfloat16) * 3.2)(Dc, H, D) * (Dc ** -0.5)),
            "w_uv": _w((lambda *s: torch.randn(*s, dtype=torch.bfloat16) * 0.4)(Dc, H, D) * (Dc ** -0.5)),
            "w_o": _w((lambda *s: torch.randn(*s, dtype=torch.bfloat16) * 0.4)(H, D, M) * ((H * D) ** -0.5)),
        }
    _A_in = _A_setup()

    def _B_setup():
        B, S, D, F = 1, 2048, 1024, 3584
        return {
            "x": _w((lambda *s: torch.randn(*s, dtype=torch.bfloat16) * 0.05)(B, S, D)),
            "w1": _w((lambda *s: torch.randn(*s, dtype=torch.bfloat16) * 0.4)(D, F) * (D ** -0.5)),
            "b1": _w((lambda *s: torch.randn(*s, dtype=torch.bfloat16) * 12.8)(F) * 0.01),
            "w2": _w((lambda *s: torch.randn(*s, dtype=torch.bfloat16) * 0.2)(F, D) * (F ** -0.5)),
            "b2": _w((lambda *s: torch.randn(*s, dtype=torch.bfloat16) * 1.6)(D) * 0.01),
        }
    _B_in = _B_setup()

    return {
        "A_x": _A_in["x"],
        "A_c_kv": _A_in["c_kv"],
        "A_w_q": _A_in["w_q"],
        "A_w_uk": _A_in["w_uk"],
        "A_w_uv": _A_in["w_uv"],
        "A_w_o": _A_in["w_o"],
        "B_x": _B_in["x"],
        "B_w1": _B_in["w1"],
        "B_b1": _B_in["b1"],
        "B_w2": _B_in["w2"],
        "B_b2": _B_in["b2"],
    }

def reference(A_x, A_c_kv, A_w_q, A_w_uk, A_w_uv, A_w_o, B_x, B_w1, B_b1, B_w2, B_b2):
    def _A_ref(x, c_kv, w_q, w_uk, w_uv, w_o):
        B, Sq, M = x.shape[0], x.shape[1], x.shape[2]
        Sk = c_kv.shape[1]
        H, D = w_q.shape[1], w_q.shape[2]
        q = torch.einsum("bqm,mhd->bhqd", x, w_q)
        k = torch.einsum("bkc,chd->bhkd", c_kv, w_uk)
        v = torch.einsum("bkc,chd->bhkd", c_kv, w_uv)
        scores = torch.einsum("bhqd,bhkd->bhqk", q, k) * (D ** -0.5)
        off = Sk - Sq
        qi = torch.arange(Sq)[:, None]
        kj = torch.arange(Sk)[None, :]
        cmask = kj <= (qi + off)
        scores = torch.where(cmask[None, None], scores, -1e9)
        p = _softmax(scores, axis=-1)
        ctx = torch.einsum("bhqk,bhkd->bhqd", p, v)
        return torch.einsum("bhqd,hdm->bqm", ctx, w_o)

    def _B_ref(x, w1, b1, w2, b2):
        h = torch.einsum("bsd,df->bsf", x, w1) + b1
        h = _gelu(h)
        return torch.einsum("bsf,fd->bsd", h, w2) + b2

    x = A_x
    xn = _layernorm(x, axis=-1)
    return x + _A_ref(xn, A_c_kv, A_w_q, A_w_uk, A_w_uv, A_w_o) + _B_ref(xn, B_w1, B_b1, B_w2, B_b2)
```

```python
class KB:
    def __init__(self):
        self.lines = []
        self.ldsq = []
        self.uid = 0

    def e(self, s):
        self.lines.append("    " + s)

    def c(self, s):
        self.lines.append("    ; " + s)

    def label(self, l):
        self.lines.append(l + ":")

    def newlabel(self, base):
        self.uid += 1
        return "L_%s_%d" % (base, self.uid)

    def lds_op(self, text, dst=()):
        self.e(text)
        self.ldsq.append(frozenset(dst))

    def lds_need(self, regs):
        regs = set(regs)
        idx = -1
        for i, d in enumerate(self.ldsq):
            if d & regs:
                idx = i
        if idx < 0:
            return
        n = len(self.ldsq) - idx - 1
        self.e("s_waitcnt lgkmcnt(%d)" % min(n, 15))
        if n > 15:
            self.ldsq = self.ldsq[len(self.ldsq) - 15:]
        else:
            self.ldsq = self.ldsq[idx + 1:]

    def lds_drain(self, extra=""):
        self.e(("s_waitcnt lgkmcnt(0) " + extra).strip())
        self.ldsq = []

    def text(self):
        return "\n".join(self.lines) + "\n"


def vr(b, n):
    if n == 1:
        return "v%d" % b
    return "v[%d:%d]" % (b, b + n - 1)


def sr(b, n):
    if n == 1:
        return "s%d" % b
    return "s[%d:%d]" % (b, b + n - 1)


def rng(b, n):
    return range(b, b + n)


def interleave(k, mains, fillers, per_gap):
    fi = 0
    for i, m in enumerate(mains):
        m()
        n = per_gap[i] if i < len(per_gap) else 0
        for _ in range(n):
            if fi < len(fillers):
                fillers[fi]()
                fi += 1
    while fi < len(fillers):
        fillers[fi]()
        fi += 1


def kernel_header(name):
    return (
        ".globl %s\n.p2align 8\n.type %s,@function\n%s:\n" % (name, name, name)
    )


def kernel_desc(name, vgpr, sgpr=102, accum=None):
    if accum is None:
        accum = (vgpr + 3) // 4 * 4
    return (
        ".amdhsa_kernel %s\n"
        "  .amdhsa_next_free_vgpr %d\n"
        "  .amdhsa_next_free_sgpr %d\n"
        "  .amdhsa_accum_offset %d\n"
        "  .amdhsa_group_segment_fixed_size 0\n"
        "  .amdhsa_kernarg_size 112\n"
        "  .amdhsa_user_sgpr_count 2\n"
        "  .amdhsa_user_sgpr_kernarg_segment_ptr 1\n"
        "  .amdhsa_system_sgpr_workgroup_id_x 1\n"
        ".end_amdhsa_kernel\n" % (name, vgpr, sgpr, accum)
    )
```

```python
import struct
from asmlib import *

MB = 1 << 20
WS_Q = 4 * MB
WS_K = 20 * MB
WS_VT = 36 * MB
WS_AH = 52 * MB
ARG_WS = 104


def f32bits(x):
    return struct.unpack("<I", struct.pack("<f", x))[0]


vL16 = 1
vKA = 2
vVA = 3
vL0, vL1 = 4, 5
vMax = 6
vT0 = 7
vThr = 8
vNeg = 9
vD = 10
vT1 = 11
vT2 = 12
vT3 = 13
vQ = 16
vKf = 48
vVf = 80
vS = [112, 128]
vNm = 144
vP = 160
vTq = 168
vO = 176
NV = 240
sK, sV, sO, sQ = 4, 8, 12, 16
sJ, sJL, sKoff, sVoff, sWave, sG, sWq = 20, 21, 22, 23, 24, 25, 26
sM0K, sM0V = 27, 29
sT, sPhase, sHead, sPi = 31, 32, 33, 34
sA, sB = 35, 36
sMask = 40
sWS = 48
THRESH = 20.0


def srd(k, d, base, off, nbytes):
    k.e("s_add_u32 s%d, s%d, %s" % (d, base, off))
    k.e("s_addc_u32 s%d, s%d, 0" % (d + 1, base + 1))
    k.e("s_mov_b32 s%d, %s" % (d + 2, nbytes))
    k.e("s_mov_b32 s%d, 0x00020000" % (d + 3))


def kread(k, slot, n):
    out = []
    for C in range(8):
        def f(C=C):
            d = vKf + 4 * C
            k.lds_op("ds_read_b128 %s, v%d offset:%d" % (vr(d, 4), vKA, slot * 32768 + n * 8192 + C * 1024), rng(d, 4))
        out.append(f)
    return out


def vread(k, slot, n):
    out = []
    for jj in range(2):
        for R in range(4):
            def f(R=R, jj=jj):
                d = vVf + 4 * (jj * 4 + R)
                k.lds_op("ds_read_b128 %s, v%d offset:%d" % (vr(d, 4), vVA, slot * 32768 + n * 8192 + R * 2048 + jj * 1024), rng(d, 4))
            out.append(f)
    return out


def qk(k, sb, zero_c=False):
    out = []
    for C in range(8):
        def f(C=C):
            a = vKf + 4 * C
            k.lds_need(rng(a, 4))
            if C == 0:
                c = "0" if zero_c else vr(vNm, 16)
            else:
                c = vr(vS[sb], 16)
            k.e("v_mfma_f32_32x32x16_bf16 %s, %s, %s, %s" % (vr(vS[sb], 16), vr(a, 4), vr(vQ + 4 * C, 4), c))
        out.append(f)
    return out


def pv(k):
    out = []
    for jj in range(2):
        for R in range(4):
            def f(R=R, jj=jj):
                a = vVf + 4 * (jj * 4 + R)
                k.lds_need(rng(a, 4))
                o = vO + 16 * R
                k.e("v_mfma_f32_32x32x16_bf16 %s, %s, %s, %s" % (vr(o, 16), vr(a, 4), vr(vP + 4 * jj, 4), vr(o, 16)))
            out.append(f)
    return out


def expl(k, sb):
    S = vS[sb]
    out = []

    def E(r):
        return lambda: k.e("v_exp_f32 v%d, v%d" % (S + r, S + r))

    def A(r):
        l = vL0 if (r & 1) == 0 else vL1
        return lambda: k.e("v_add_f32 v%d, v%d, v%d" % (l, l, S + r))

    def Cv(i):
        return lambda: k.e("v_cvt_pk_bf16_f32 v%d, v%d, v%d" % (vP + i, S + 2 * i, S + 2 * i + 1))
    for i in range(8):
        out += [E(2 * i), E(2 * i + 1)]
        if i > 0:
            out += [Cv(i - 1), A(2 * i - 2), A(2 * i - 1)]
    out += [lambda: k.e("s_nop 0"), Cv(7), A(14), A(15)]
    return out


def maxl(k, sb):
    S = vS[sb]
    out = [lambda: k.e("v_max3_f32 v%d, v%d, v%d, v%d" % (vMax, S, S + 1, S + 2)),
           lambda: k.e("v_max3_f32 v%d, v%d, v%d, v%d" % (vT0, S + 3, S + 4, S + 5))]
    for i in range(6, 14, 4):
        out.append(lambda i=i: k.e("v_max3_f32 v%d, v%d, v%d, v%d" % (vMax, vMax, S + i, S + i + 1)))
        out.append(lambda i=i: k.e("v_max3_f32 v%d, v%d, v%d, v%d" % (vT0, vT0, S + i + 2, S + i + 3)))
    out.append(lambda: k.e("v_max3_f32 v%d, v%d, v%d, v%d" % (vMax, vMax, S + 14, S + 15)))
    out.append(lambda: k.e("v_max_f32 v%d, v%d, v%d" % (vMax, vMax, vT0)))
    return out


def mask_code(k, sb, n):
    S = vS[sb]
    for r0 in range(0, 16, 4):
        for i in range(4):
            r = r0 + i
            c = 16 * (r >> 3) + (r & 7) + 32 * n
            k.e("v_cmp_le_i32 %s, %d, v%d" % (sr(sMask + 2 * i, 2), c, vThr))
        for i in range(4):
            r = r0 + i
            k.e("v_cndmask_b32 v%d, v%d, v%d, %s" % (S + r, vNeg, S + r, sr(sMask + 2 * i, 2)))


def dma_k(k, slot):
    out = []
    for j in range(4):
        def f(j=j):
            if j == 0:
                k.e("s_mov_b32 m0, s%d" % (sM0K + slot))
                k.e("s_nop 0")
            k.e("buffer_load_dwordx4 v%d, %s, s%d offen offset:%d lds" % (vD, sr(sK, 4), sKoff, 1024 * j))
            if j == 3:
                k.e("s_add_u32 s%d, s%d, 32768" % (sKoff, sKoff))
        out.append(f)
    return out


def dma_v(k, slot):
    out = []
    for j in range(4):
        def f(j=j):
            if j == 0:
                k.e("s_mov_b32 m0, s%d" % (sM0V + slot))
                k.e("s_nop 0")
            k.e("buffer_load_dwordx4 v%d, %s, s%d offen offset:%d lds" % (vD, sr(sV, 4), sVoff, 1024 * j))
            if j == 3:
                k.e("s_add_u32 s%d, s%d, 32768" % (sVoff, sVoff))
        out.append(f)
    return out


def check(k, sb, slow_blocks):
    lab = k.newlabel("slow")
    back = k.newlabel("back")
    k.e("v_cmp_lt_f32 vcc, s%d, v%d" % (sT, vMax))
    k.e("s_cbranch_vccnz %s" % lab)
    k.label(back)
    slow_blocks.append((lab, back, sb))


def emit_slow(k, lab, back, sb):
    S = vS[sb]
    k.label(lab)
    k.e("v_mov_b32 v%d, v%d" % (vT0, vMax))
    k.e("s_nop 15")
    k.e("v_permlane32_swap_b32 v%d, v%d" % (vT0, vMax))
    k.e("v_max3_f32 v%d, v%d, v%d, 0" % (vMax, vMax, vT0))
    k.e("v_sub_f32 v%d, 0, v%d" % (vT0, vMax))
    k.e("v_exp_f32 v%d, v%d" % (vT0, vT0))
    for r in range(16):
        k.e("v_sub_f32 v%d, v%d, v%d" % (S + r, S + r, vMax))
    for r in range(16):
        k.e("v_sub_f32 v%d, v%d, v%d" % (vNm + r, vNm + r, vMax))
    k.e("v_mul_f32 v%d, v%d, v%d" % (vL0, vL0, vT0))
    k.e("v_mul_f32 v%d, v%d, v%d" % (vL1, vL1, vT0))
    for r in range(64):
        k.e("v_mul_f32 v%d, v%d, v%d" % (vO + r, vO + r, vT0))
    k.e("s_nop 1")
    k.e("s_branch %s" % back)


def spread(n_items, n_gaps, start=0):
    per = [0] * n_gaps
    m = n_gaps - start
    for i in range(n_items):
        per[start + (i * m) // n_items] += 1
    return per


def merge_fillers(lists_and_plans, n_gaps):
    flat, per = [], []
    idx = [0] * len(lists_and_plans)
    for gph in range(n_gaps):
        cnt = 0
        for li, (lst, plan) in enumerate(lists_and_plans):
            for _ in range(plan[gph]):
                if idx[li] < len(lst):
                    flat.append(lst[idx[li]])
                    idx[li] += 1
                    cnt += 1
        per.append(cnt)
    for li, (lst, plan) in enumerate(lists_and_plans):
        assert idx[li] == len(lst)
    return flat, per


def interval(k, p, last, slow_blocks):
    k.c("==== interval parity %d last=%s" % (p, last))
    lists = [(vread(k, p, 0), [2, 2, 2, 2, 0, 0, 0, 0]), (expl(k, 0), spread(44, 8))]
    if not last:
        skipk = k.newlabel("skipk")
        dk = dma_k(k, p)
        dv = dma_v(k, p ^ 1)

        def dk_all():
            k.e("s_add_u32 s%d, s%d, 2" % (sA, sJ))
            k.e("s_cmp_gt_u32 s%d, s%d" % (sA, sJL))
            k.e("s_cbranch_scc1 %s" % skipk)
            for f in dk:
                f()
            k.label(skipk)
        lists.append((dv + [dk_all], [0, 1, 1, 1, 1, 1, 0, 0]))
    fl, per = merge_fillers(lists, 8)
    interleave(k, qk(k, 1), fl, per)
    k.e("s_nop 0")
    if not last:
        lists = [(kread(k, p ^ 1, 0), [2, 2, 2, 2, 0, 0, 0, 0]), (maxl(k, 1), [0, 0, 0, 0, 2, 2, 2, 2])]
        fl, per = merge_fillers(lists, 8)
        interleave(k, pv(k), fl, per)
    else:
        interleave(k, pv(k), [], [])
        k.e("s_nop 7")
        mask_code(k, 1, 1)
        for f in maxl(k, 1):
            f()
    check(k, 1, slow_blocks)
    lists = [(vread(k, p, 1), [2, 2, 2, 2, 0, 0, 0, 0]), (expl(k, 1), spread(44, 8))]
    fl, per = merge_fillers(lists, 8)
    if not last:
        interleave(k, qk(k, 0), fl, per)
    else:
        for f in fl:
            f()
    k.e("s_nop 0")
    if not last:
        nomask = k.newlabel("nomask")

        def maybe_mask():
            k.e("s_add_u32 s%d, s%d, 1" % (sA, sJ))
            k.e("s_cmp_lg_u32 s%d, s%d" % (sA, sJL))
            k.e("s_cbranch_scc1 %s" % nomask)
            mask_code(k, 0, 0)
            k.label(nomask)
        lists = [(kread(k, p ^ 1, 1), [2, 2, 2, 2, 0, 0, 0, 0]), ([maybe_mask] + maxl(k, 0), [0, 0, 0, 0, 3, 2, 2, 2])]
        fl, per = merge_fillers(lists, 8)
        interleave(k, pv(k), fl, per)
        check(k, 0, slow_blocks)
        k.lds_drain("vmcnt(0)")
        k.e("s_barrier")
    else:
        interleave(k, pv(k), [], [])


def gen_attn_kernel():
    k = KB()
    slow_blocks = []
    k.e("s_cmp_ge_u32 s2, 256")
    k.e("s_cbranch_scc1 L_at_end")
    k.e("s_load_dwordx2 s[%d:%d], s[0:1], %d" % (sWS, sWS + 1, ARG_WS))
    k.e("s_and_b32 s%d, s2, 7" % sA)
    k.e("s_bfe_u32 s%d, s2, 0x20003" % sB)
    k.e("s_lshl2_add_u32 s%d, s%d, s%d" % (sHead, sA, sB))
    k.e("s_lshr_b32 s%d, s2, 5" % sPi)
    k.e("v_lshrrev_b32 v%d, 6, v0" % vT0)
    k.e("v_and_b32 v%d, 63, v0" % vT1)
    k.e("v_readfirstlane_b32 s%d, v%d" % (sWave, vT0))
    k.e("v_lshlrev_b32 v%d, 4, v%d" % (vL16, vT1))
    k.e("s_nop 1")
    k.e("s_lshr_b32 s%d, s%d, 2" % (sG, sWave))
    k.e("s_and_b32 s%d, s%d, 3" % (sWq, sWave))
    k.e("s_lshl_b32 s%d, s%d, 12" % (sA, sWave))
    k.e("s_mov_b32 s%d, s%d" % (sM0K, sA))
    k.e("s_add_u32 s%d, s%d, 32768" % (sM0K + 1, sA))
    k.e("s_add_u32 s%d, s%d, 65536" % (sM0V, sA))
    k.e("s_add_u32 s%d, s%d, 98304" % (sM0V + 1, sA))
    k.e("v_add_u32 v%d, s%d, v%d" % (vD, sA, vL16))
    k.e("s_mov_b32 s%d, 0x%08x" % (sT, f32bits(THRESH)))
    k.e("v_mov_b32 v%d, 0x%08x" % (vNeg, f32bits(-1e30)))
    k.e("v_and_b32 v%d, 0x33, v%d" % (vT0, vT1))
    k.e("v_bfe_u32 v%d, v%d, 2, 1" % (vT2, vT1))
    k.e("v_lshl_or_b32 v%d, v%d, 3, v%d" % (vT0, vT2, vT0))
    k.e("v_bfe_u32 v%d, v%d, 3, 1" % (vT2, vT1))
    k.e("v_lshl_or_b32 v%d, v%d, 2, v%d" % (vT0, vT2, vT0))
    k.e("s_lshl_b32 s%d, s%d, 14" % (sA, sG))
    k.e("v_lshl_add_u32 v%d, v%d, 4, s%d" % (vKA, vT0, sA))
    k.e("s_add_u32 s%d, s%d, 65536" % (sB, sA))
    k.e("v_add_u32 v%d, s%d, v%d" % (vVA, sB, vL16))
    k.e("v_and_b32 v%d, 31, v%d" % (vT0, vT1))
    k.e("v_lshrrev_b32 v%d, 5, v%d" % (vT2, vT1))
    k.e("v_lshlrev_b32 v%d, 3, v%d" % (vT2, vT2))
    k.e("v_sub_u32 v%d, v%d, v%d" % (vT0, vT0, vT2))
    k.e("s_lshl_b32 s%d, s%d, 5" % (sA, sWq))
    k.e("s_lshl_b32 s%d, s%d, 6" % (sB, sG))
    k.e("s_sub_u32 s%d, s%d, s%d" % (sA, sA, sB))
    k.e("v_add_u32 v%d, s%d, v%d" % (vThr, sA, vT0))
    k.e("s_waitcnt lgkmcnt(0)")
    k.e("s_lshl_b32 s%d, s%d, 19" % (sA, sHead))
    k.e("s_add_u32 s%d, s%d, %d" % (sB, sA, WS_K))
    srd(k, sK, sWS, "s%d" % sB, 512 * 1024)
    k.e("s_add_u32 s%d, s%d, %d" % (sB, sA, WS_VT))
    srd(k, sV, sWS, "s%d" % sB, 512 * 1024)
    k.e("s_add_u32 s%d, s%d, %d" % (sB, sA, WS_Q))
    srd(k, sQ, sWS, "s%d" % sB, 512 * 1024)
    srd(k, sO, sWS, WS_AH, 2048 * 7680 * 2)
    k.e("s_mov_b32 s%d, 0" % sPhase)
    k.e("s_sub_u32 s%d, 15, s%d" % (sJL, sPi))
    k.label("L_at_qblock")
    k.e("s_mov_b32 s%d, 0" % sKoff)
    k.e("s_mov_b32 s%d, 0" % sVoff)
    k.e("s_mov_b32 s%d, 0" % sJ)
    for f in dma_k(k, 0) + dma_v(k, 0) + dma_k(k, 1):
        f()
    k.e("s_lshl2_add_u32 s%d, s%d, s%d" % (sA, sJL, sWq))
    k.e("s_lshl_b32 s%d, s%d, 13" % (sA, sA))
    k.e("s_add_u32 s%d, s%d, 4096" % (sB, sA))
    for C in range(8):
        k.e("buffer_load_dwordx4 %s, v%d, %s, s%d offen offset:%d" % (vr(vQ + 4 * C, 4), vL16, sr(sQ, 4), sA if C < 4 else sB, (C & 3) * 1024))
    for r in range(64):
        k.e("v_mov_b32 v%d, 0" % (vO + r))
    k.e("v_mov_b32 v%d, 0" % vL0)
    k.e("v_mov_b32 v%d, 0" % vL1)
    k.e("s_waitcnt vmcnt(0)")
    k.e("s_barrier")
    for f in kread(k, 0, 0):
        f()
    for f in qk(k, 0, zero_c=True):
        f()
    for f in kread(k, 0, 1):
        f()
    k.e("s_nop 7")
    k.e("s_cmp_lg_u32 s%d, 0" % sJL)
    k.e("s_cbranch_scc1 L_at_nomask0")
    mask_code(k, 0, 0)
    k.label("L_at_nomask0")
    for f in maxl(k, 0):
        f()
    k.e("v_mov_b32 v%d, v%d" % (vT0, vMax))
    k.e("s_nop 1")
    k.e("v_permlane32_swap_b32 v%d, v%d" % (vT0, vMax))
    k.e("v_max_f32 v%d, v%d, v%d" % (vMax, vMax, vT0))
    for r in range(16):
        k.e("v_sub_f32 v%d, v%d, v%d" % (vS[0] + r, vS[0] + r, vMax))
    for r in range(16):
        k.e("v_sub_f32 v%d, 0, v%d" % (vNm + r, vMax))
    k.lds_drain()
    k.e("s_barrier")
    k.label("L_at_loop")
    k.e("s_cmp_eq_u32 s%d, s%d" % (sJ, sJL))
    k.e("s_cbranch_scc1 L_at_last0")
    interval(k, 0, False, slow_blocks)
    k.e("s_add_u32 s%d, s%d, 1" % (sJ, sJ))
    k.e("s_cmp_eq_u32 s%d, s%d" % (sJ, sJL))
    k.e("s_cbranch_scc1 L_at_last1")
    interval(k, 1, False, slow_blocks)
    k.e("s_add_u32 s%d, s%d, 1" % (sJ, sJ))
    k.e("s_branch L_at_loop")
    k.label("L_at_last0")
    assert k.ldsq == []
    interval(k, 0, True, slow_blocks)
    k.e("s_branch L_at_fin")
    k.label("L_at_last1")
    k.ldsq = []
    interval(k, 1, True, slow_blocks)
    k.label("L_at_fin")
    k.ldsq = []
    k.e("v_add_f32 v%d, v%d, v%d" % (vL0, vL0, vL1))
    k.e("v_mov_b32 v%d, v%d" % (vT0, vL0))
    k.e("s_nop 1")
    k.e("v_permlane32_swap_b32 v%d, v%d" % (vT0, vL0))
    k.e("v_add_f32 v%d, v%d, v%d" % (vL1, vL0, vT0))
    k.e("v_sub_f32 v%d, 0, v%d" % (vL0, vNm))
    k.e("s_waitcnt lgkmcnt(0) vmcnt(0)")
    k.e("s_barrier")
    k.e("s_lshl_b32 s%d, s%d, 13" % (sA, sWave))
    k.e("v_add_u32 v%d, s%d, v%d" % (vT1, sA, vL16))
    k.e("s_lshl_b32 s%d, s%d, 9" % (sA, sWave))
    k.e("s_add_u32 s%d, s%d, 65536" % (sA, sA))
    k.e("v_lshrrev_b32 v%d, 1, v%d" % (vT2, vL16))
    k.e("v_add_u32 v%d, s%d, v%d" % (vT2, sA, vT2))
    k.e("ds_write_b64 v%d, v[%d:%d]" % (vT2, vL0, vL1))
    k.e("s_cmp_eq_u32 s%d, 0" % sG)
    k.e("s_cbranch_scc1 L_at_send23")
    for i in range(8):
        k.e("ds_write_b128 v%d, %s offset:%d" % (vT1, vr(vO + 4 * i, 4), i * 1024))
    k.e("s_waitcnt lgkmcnt(0)")
    for i in range(32):
        k.e("v_mov_b32 v%d, v%d" % (vO + i, vO + 32 + i))
    k.e("s_branch L_at_sent")
    k.label("L_at_send23")
    for i in range(8):
        k.e("ds_write_b128 v%d, %s offset:%d" % (vT1, vr(vO + 32 + 4 * i, 4), i * 1024))
    k.label("L_at_sent")
    k.e("s_waitcnt lgkmcnt(0)")
    k.e("s_barrier")
    k.e("v_xor_b32 v%d, 0x8000, v%d" % (vT1, vT1))
    k.e("v_xor_b32 v%d, 0x800, v%d" % (vT2, vT2))
    k.e("ds_read_b64 v[%d:%d], v%d" % (vTq, vTq + 1, vT2))
    for i in range(8):
        k.e("ds_read_b128 %s, v%d offset:%d" % (vr(vO + 32 + 4 * i, 4), vT1, i * 1024))
    k.e("s_waitcnt lgkmcnt(8)")
    k.e("v_max_f32 v%d, v%d, v%d" % (vT0, vL0, vTq))
    k.e("v_sub_f32 v%d, v%d, v%d" % (vL0, vL0, vT0))
    k.e("v_sub_f32 v%d, v%d, v%d" % (vTq, vTq, vT0))
    k.e("v_exp_f32 v%d, v%d" % (vL0, vL0))
    k.e("v_exp_f32 v%d, v%d" % (vTq, vTq))
    k.e("s_nop 0")
    k.e("v_mul_f32 v%d, v%d, v%d" % (vL1, vL1, vL0))
    k.e("v_fmac_f32 v%d, v%d, v%d" % (vL1, vTq + 1, vTq))
    k.e("v_rcp_f32 v%d, v%d" % (vL1, vL1))
    k.e("s_nop 0")
    k.e("v_mul_f32 v%d, v%d, v%d" % (vL0, vL0, vL1))
    k.e("v_mul_f32 v%d, v%d, v%d" % (vTq, vTq, vL1))
    k.e("s_waitcnt lgkmcnt(0)")
    for i in range(32):
        k.e("v_mul_f32 v%d, v%d, v%d" % (vO + i, vO + i, vL0))
    for i in range(32):
        k.e("v_fmac_f32 v%d, v%d, v%d" % (vO + i, vO + 32 + i, vTq))
    k.e("s_lshl2_add_u32 s%d, s%d, s%d" % (sA, sJL, sWq))
    k.e("s_mul_i32 s%d, s%d, 480" % (sA, sA))
    k.e("s_lshl3_add_u32 s%d, s%d, s%d" % (sA, sHead, sA))
    k.e("s_lshl2_add_u32 s%d, s%d, s%d" % (sA, sG, sA))
    k.e("s_lshl_b32 s%d, s%d, 10" % (sA, sA))
    for i in range(4):
        src = vO + 8 * i
        tq = vKf + 4 * i
        for c in range(4):
            k.e("v_cvt_pk_bf16_f32 v%d, v%d, v%d" % (tq + c, src + 2 * c, src + 2 * c + 1))
        k.e("s_nop 1")
        k.e("v_permlane32_swap_b32 v%d, v%d" % (tq, tq + 2))
        k.e("v_permlane32_swap_b32 v%d, v%d" % (tq + 1, tq + 3))
        k.e("buffer_store_dwordx4 %s, v%d, %s, s%d offen offset:%d" % (vr(tq, 4), vL16, sr(sO, 4), sA, i * 1024))
    k.e("s_cmp_lg_u32 s%d, 0" % sPhase)
    k.e("s_cbranch_scc1 L_at_end")
    k.e("s_mov_b32 s%d, 1" % sPhase)
    k.e("s_mov_b32 s%d, s%d" % (sJL, sPi))
    k.e("s_barrier")
    k.e("s_branch L_at_qblock")
    k.label("L_at_end")
    k.e("s_endpgm")
    for lab, back, sb in slow_blocks:
        emit_slow(k, lab, back, sb)
    return k.text(), NV, 131072
```

```python
from asmlib import *
from gemm import *
MB = 1 << 20
WS_AH = 52 * MB
WS_PART = 84 * MB
ARG_X, ARG_WO, ARG_W2, ARG_B2, ARG_OUT, ARG_WS = 0, 40, 72, 80, 88, 104


def srd(k, d, base, off, nbytes):
    k.e("s_add_u32 s%d, s%d, %s" % (d, base, off))
    k.e("s_addc_u32 s%d, s%d, 0" % (d + 1, base + 1))
    k.e("s_mov_b32 s%d, %s" % (d + 2, nbytes))
    k.e("s_mov_b32 s%d, 0x00020000" % (d + 3))


def gen_out_kernel():
    k = KB()
    g = GemmCfg(TM=2, TN=2, WM=4, WN=2, NS=3, swap=True, amode="frag")
    g.bswitch = (60, 61, 62, 4096 * 2048)
    k.e("s_cmp_ge_u32 s2, 256")
    k.e("s_cbranch_scc1 L_out_end")
    k.e("s_load_dwordx2 s[40:41], s[0:1], %d" % ARG_WO)
    k.e("s_load_dwordx2 s[42:43], s[0:1], %d" % ARG_W2)
    k.e("s_load_dwordx2 s[48:49], s[0:1], %d" % ARG_WS)
    k.e("s_bfe_u32 s50, s2, 0x20001")
    k.e("s_and_b32 s51, s2, 1")
    k.e("s_lshr_b32 s52, s2, 6")
    k.e("s_lshl2_add_u32 s51, s51, s52")
    k.e("s_bfe_u32 s52, s2, 0x30003")
    k.e("s_mov_b32 s%d, %d" % (g.sPitchA, 480 * 1024))
    k.e("s_movk_i32 s%d, 2048" % g.sPitchB)
    k.e("s_movk_i32 s%d, 4096" % g.sAstep)
    k.e("s_mov_b32 s%d, %d" % (g.sBstep, 64 * 2048))
    k.e("s_mul_i32 s%d, s50, %d" % (g.sAoff, 30 * 4096))
    gemm_setup(k, g)
    k.e("s_waitcnt lgkmcnt(0)")
    k.e("s_mul_i32 s54, s51, %d" % (8 * 480 * 1024))
    k.e("s_sub_u32 s55, %d, s54" % (2048 * 7680 * 2))
    k.e("s_add_u32 s54, s54, %d" % WS_AH)
    srd(k, g.sA, 48, "s54", "s55")
    k.e("s_lshl_b32 s54, s52, 8")
    k.e("s_add_u32 s60, s42, s54")
    k.e("s_addc_u32 s61, s43, 0")
    k.e("s_sub_u32 s62, %d, s54" % (3584 * 2048))
    k.e("s_sub_u32 s55, %d, s54" % (4096 * 2048))
    srd(k, g.sB, 40, "s54", "s55")
    k.e("s_mul_i32 s%d, s50, %d" % (g.sBoff, 30 * 64 * 2048))
    k.e("s_cmp_ge_u32 s%d, %d" % (g.sBoff, 4096 * 2048))
    k.e("s_cselect_b32 s%d, s60, s%d" % (g.sB, g.sB))
    k.e("s_cselect_b32 s%d, s61, s%d" % (g.sB + 1, g.sB + 1))
    k.e("s_cselect_b32 s%d, s62, s%d" % (g.sB + 2, g.sB + 2))
    k.e("s_cselect_b32 s54, %d, 0" % (4096 * 2048))
    k.e("s_sub_u32 s%d, s%d, s54" % (g.sBoff, g.sBoff))
    gemm_prologue_dma(k, g)
    acc_zero(k, g)
    gemm_main(k, g, 30, name="o")
    srd(k, g.sO, 48, WS_PART, 32 * MB)
    k.e("s_lshl_b32 s54, s50, 6")
    k.e("s_lshl3_add_u32 s54, s51, s54")
    k.e("s_lshl1_add_u32 s54, s%d, s54" % g.sWm)
    k.e("s_lshl_b32 s54, s54, 5")
    k.e("s_lshl2_add_u32 s54, s52, s54")
    k.e("s_lshl1_add_u32 s54, s%d, s54" % g.sWn)
    k.e("s_lshl_b32 s54, s54, 12")
    for tm in range(g.TM):
        for tn in range(g.TN):
            k.e("s_add_u32 s55, s54, %d" % ((tm * 32 + tn) * 4096))
            for gq in range(4):
                k.e("buffer_store_dwordx4 %s, v%d, %s, s55 offen offset:%d" % (vr(g.acc(tm, tn) + 4 * gq, 4), g.vLane16, sr(g.sO, 4), gq * 1024))
    k.label("L_out_end")
    k.e("s_endpgm")
    return k.text(), g.nvgpr, g.lds_bytes


def gen_red_kernel():
    k = KB()
    k.e("s_cmp_ge_u32 s2, 1024")
    k.e("s_cbranch_scc1 L_red_end")
    k.e("s_load_dwordx2 s[40:41], s[0:1], %d" % ARG_X)
    k.e("s_load_dwordx4 s[44:47], s[0:1], %d" % ARG_B2)
    k.e("s_load_dwordx2 s[48:49], s[0:1], %d" % ARG_WS)
    k.e("v_lshrrev_b32 v1, 6, v0")
    k.e("v_and_b32 v2, 63, v0")
    k.e("v_readfirstlane_b32 s50, v1")
    k.e("v_and_b32 v3, 7, v2")
    k.e("v_lshrrev_b32 v4, 3, v2")
    k.e("s_lshl2_add_u32 s50, s2, s50")
    k.e("s_and_b32 s51, s50, 15")
    k.e("s_bfe_u32 s52, s50, 0x20004")
    k.e("s_lshr_b32 s53, s50, 6")
    k.e("v_lshlrev_b32 v5, 10, v4")
    k.e("v_lshl_add_u32 v5, v3, 4, v5")
    k.e("s_lshl_b32 s54, s53, 5")
    k.e("s_lshl1_add_u32 s54, s51, s54")
    k.e("s_lshl_b32 s54, s54, 12")
    k.e("s_lshl_b32 s55, s52, 7")
    k.e("s_add_u32 s54, s54, s55")
    k.e("v_lshlrev_b32 v6, 11, v3")
    k.e("v_lshl_add_u32 v6, v4, 4, v6")
    k.e("s_lshl_b32 s56, s53, 5")
    k.e("s_lshl3_add_u32 s56, s52, s56")
    k.e("s_lshl_b32 s56, s56, 11")
    k.e("s_lshl_b32 s57, s51, 7")
    k.e("s_add_u32 s56, s56, s57")
    k.e("v_lshlrev_b32 v7, 4, v4")
    k.e("s_waitcnt lgkmcnt(0)")
    srd(k, 4, 48, WS_PART, 32 * MB)
    srd(k, 8, 40, 0, 4 * MB)
    srd(k, 12, 44, 0, 2048)
    srd(k, 16, 46, 0, 4 * MB)
    for s in range(4):
        for h in range(2):
            k.e("buffer_load_dwordx4 %s, v5, s[4:7], s54 offen offset:%d" % (vr(16 + (s * 2 + h) * 4, 4), h * 512))
        if s < 3:
            k.e("s_add_u32 s54, s54, %d" % (8 * MB))
    k.e("buffer_load_dwordx4 v[8:11], v6, s[8:11], s56 offen")
    k.e("buffer_load_dwordx4 v[12:15], v7, s[12:15], s57 offen")
    k.e("s_waitcnt vmcnt(2)")
    for i in range(8):
        k.e("v_add_f32 v%d, v%d, v%d" % (16 + i, 16 + i, 24 + i))
        k.e("v_add_f32 v%d, v%d, v%d" % (32 + i, 32 + i, 40 + i))
    for i in range(8):
        k.e("v_add_f32 v%d, v%d, v%d" % (16 + i, 16 + i, 32 + i))
    k.e("s_waitcnt vmcnt(0)")
    for i in range(4):
        k.e("v_lshlrev_b32 v24, 16, v%d" % (8 + i))
        k.e("v_and_b32 v25, 0xffff0000, v%d" % (8 + i))
        k.e("v_lshlrev_b32 v26, 16, v%d" % (12 + i))
        k.e("v_and_b32 v27, 0xffff0000, v%d" % (12 + i))
        k.e("v_add_f32 v24, v24, v26")
        k.e("v_add_f32 v25, v25, v27")
        k.e("v_add_f32 v%d, v%d, v24" % (16 + 2 * i, 16 + 2 * i))
        k.e("v_add_f32 v%d, v%d, v25" % (17 + 2 * i, 17 + 2 * i))
    for i in range(4):
        k.e("v_cvt_pk_bf16_f32 v%d, v%d, v%d" % (8 + i, 16 + 2 * i, 17 + 2 * i))
    k.e("buffer_store_dwordx4 v[8:11], v6, s[16:19], s56 offen")
    k.label("L_red_end")
    k.e("s_endpgm")
    return k.text(), 48, 0


def fin_kernels():
    return [("out_kernel", 256, 512, gen_out_kernel), ("red_kernel", 1024, 256, gen_red_kernel)]
```

```python
from asmlib import *


class GemmCfg:
    def __init__(self, TM=4, TN=2, WM=2, WN=4, NS=2, swap=True, amode="frag"):
        self.TM, self.TN, self.WM, self.WN, self.NS = TM, TN, WM, WN, NS
        self.swap = swap
        self.amode = amode
        self.BM = 32 * TM * WM
        self.BN = 32 * TN * WN
        self.NW = WM * WN
        self.A_stage = self.BM * 128
        self.B_stage = self.BN * 128
        self.NA = self.A_stage // 1024 // self.NW
        self.NB = self.B_stage // 1024 // self.NW
        self.ND = self.NA + self.NB
        self.lds_bytes = NS * (self.A_stage + self.B_stage)
        assert self.NA <= 4 and self.NB <= 4
        self.vLane16 = 1
        self.vDA = 2
        self.vDB = 6
        self.sep_stage = (NS > 2)
        nst = NS if self.sep_stage else 1
        self.nAaddr = 4 if amode == "row" else 1
        self.vRA = 10
        self.vRB = self.vRA + self.nAaddr * nst
        self.vTmp = (self.vRB + TN * nst + 1) // 2 * 2
        self.fragsz = 4 * (TM + TN)
        self.vF = (self.vTmp + 8 + 3) // 4 * 4
        self.vAcc = (self.vF + 2 * self.fragsz + 15) // 16 * 16
        self.nvgpr = self.vAcc + 16 * TM * TN
        assert self.nvgpr <= 256, self.nvgpr
        self.sA = 4
        self.sB = 8
        self.sO = 12
        self.sAoff = 16
        self.sBoff = 17
        self.sCnt = 18
        self.sWave = 19
        self.sM0A = 20
        self.sM0B = 23
        self.sBstep = 26
        self.sWm = 27
        self.sWn = 28
        self.sPitchA = 29
        self.sPitchB = 30
        self.sT0 = 31
        self.sT1 = 32
        self.sAstep = 33
        self.bswitch = None

    def fA(self, s, tm):
        return self.vF + s * self.fragsz + 4 * tm

    def fB(self, s, tn):
        return self.vF + s * self.fragsz + 4 * self.TM + 4 * tn

    def acc(self, tm, tn):
        return self.vAcc + 16 * (tm * self.TN + tn)

    def ldsA(self, s):
        return s * self.A_stage

    def ldsB(self, s):
        return self.NS * self.A_stage + s * self.B_stage


def log2(x):
    n = x.bit_length() - 1
    assert 1 << n == x
    return n


def gemm_setup(k, g, a_rstride=None):
    t0, t1, t2, t3 = g.vTmp, g.vTmp + 1, g.vTmp + 2, g.vTmp + 3
    lane = g.vTmp + 4
    k.c("---- gemm setup")
    k.e("v_lshrrev_b32 v%d, 6, v0" % t0)
    k.e("v_and_b32 v%d, 63, v0" % lane)
    k.e("v_readfirstlane_b32 s%d, v%d" % (g.sWave, t0))
    k.e("v_lshlrev_b32 v%d, 4, v%d" % (g.vLane16, lane))
    k.e("s_nop 1")
    k.e("s_lshr_b32 s%d, s%d, %d" % (g.sWm, g.sWave, log2(g.WN)))
    k.e("s_and_b32 s%d, s%d, %d" % (g.sWn, g.sWave, g.WN - 1))
    for s in range(g.NS):
        k.e("s_mul_i32 s%d, s%d, %d" % (g.sT0, g.sWave, g.NA * 1024))
        k.e("s_add_u32 s%d, s%d, %d" % (g.sM0A + s, g.sT0, g.ldsA(s)))
        k.e("s_mul_i32 s%d, s%d, %d" % (g.sT0, g.sWave, g.NB * 1024))
        k.e("s_add_u32 s%d, s%d, %d" % (g.sM0B + s, g.sT0, g.ldsB(s)))
    if g.amode == "frag":
        k.e("s_mul_i32 s%d, s%d, %d" % (g.sT0, g.sWave, g.NA))
        k.e("s_lshr_b32 s%d, s%d, 2" % (g.sT1, g.sT0))
        k.e("s_and_b32 s%d, s%d, 3" % (g.sT0, g.sT0))
        k.e("s_mul_i32 s%d, s%d, s%d" % (g.sT1, g.sT1, g.sPitchA))
        k.e("s_lshl_b32 s%d, s%d, 10" % (g.sT0, g.sT0))
        k.e("s_add_u32 s%d, s%d, s%d" % (g.sT0, g.sT0, g.sT1))
        k.e("v_add_u32 v%d, s%d, v%d" % (g.vDA, g.sT0, g.vLane16))
    else:
        assert g.NA == 4
        k.e("s_mul_i32 s%d, s%d, %d" % (g.sT0, g.sWave, 8 * g.NA))
        k.e("v_lshrrev_b32 v%d, 3, v%d" % (t0, lane))
        k.e("v_add_u32 v%d, s%d, v%d" % (t0, g.sT0, t0))
        k.e("v_and_b32 v%d, 7, v%d" % (t1, lane))
        for j in range(g.NA):
            k.e("v_add_u32 v%d, %d, v%d" % (t2, 8 * j, t0))
            k.e("v_bfe_u32 v%d, v%d, 1, 3" % (t3, t2))
            k.e("v_xor_b32 v%d, v%d, v%d" % (t3, t3, t1))
            k.e("v_mul_lo_u32 v%d, v%d, s%d" % (t2, t2, g.sPitchA))
            k.e("v_lshl_add_u32 v%d, v%d, 4, v%d" % (t2, t3, t2))
            k.e("v_subrev_u32 v%d, %d, v%d" % (g.vDA + j, 1024 * j, t2))
    rpi = 1024 // (g.BN * 2)
    cpr = g.BN // 8
    k.e("s_mul_i32 s%d, s%d, %d" % (g.sT0, g.sWave, g.NB * rpi))
    k.e("v_lshrrev_b32 v%d, %d, v%d" % (t0, log2(cpr), lane))
    k.e("v_add_u32 v%d, s%d, v%d" % (t0, g.sT0, t0))
    k.e("v_and_b32 v%d, %d, v%d" % (t1, cpr - 1, lane))
    for j in range(g.NB):
        k.e("v_add_u32 v%d, %d, v%d" % (t2, rpi * j, t0))
        k.e("v_and_b32 v%d, 3, v%d" % (t3, t2))
        k.e("v_lshlrev_b32 v%d, 2, v%d" % (t3, t3))
        k.e("v_xor_b32 v%d, v%d, v%d" % (t3, t3, t1))
        k.e("v_mul_lo_u32 v%d, v%d, s%d" % (t2, t2, g.sPitchB))
        k.e("v_lshl_add_u32 v%d, v%d, 4, v%d" % (t2, t3, t2))
        k.e("v_subrev_u32 v%d, %d, v%d" % (g.vDB + j, 1024 * j, t2))
    nst = g.NS if g.sep_stage else 1
    if g.amode == "frag":
        k.e("s_mul_i32 s%d, s%d, %d" % (g.sT0, g.sWm, g.TM * 4096))
        for s in range(nst):
            k.e("s_add_u32 s%d, s%d, %d" % (g.sT1, g.sT0, g.ldsA(s)))
            k.e("v_add_u32 v%d, s%d, v%d" % (g.vRA + s, g.sT1, g.vLane16))
    else:
        k.e("s_mul_i32 s%d, s%d, %d" % (g.sT0, g.sWm, g.TM * 32 * 128))
        k.e("v_and_b32 v%d, 31, v%d" % (t0, lane))
        k.e("v_bfe_u32 v%d, v%d, 1, 3" % (t1, lane))
        k.e("v_lshrrev_b32 v%d, 5, v%d" % (t2, lane))
        k.e("v_xor_b32 v%d, v%d, v%d" % (t1, t1, t2))
        k.e("v_lshlrev_b32 v%d, 7, v%d" % (t0, t0))
        k.e("v_add_u32 v%d, s%d, v%d" % (t0, g.sT0, t0))
        for s in range(nst):
            for kk in range(4):
                k.e("v_xor_b32 v%d, %d, v%d" % (t2, 2 * kk, t1))
                k.e("v_lshl_add_u32 v%d, v%d, 4, v%d" % (t2, t2, t0))
                k.e("v_add_u32 v%d, %d, v%d" % (g.vRA + s * 4 + kk, g.ldsA(s), t2))
    rowb = g.BN * 2
    k.e("v_bfe_u32 v%d, v%d, 2, 2" % (t0, lane))
    k.e("v_lshrrev_b32 v%d, 5, v%d" % (t1, lane))
    k.e("v_lshl_add_u32 v%d, v%d, 3, v%d" % (t1, t1, t0))
    k.e("v_lshlrev_b32 v%d, %d, v%d" % (t1, log2(rowb), t1))
    k.e("v_and_b32 v%d, 1, v%d" % (t2, lane))
    k.e("v_lshl_add_u32 v%d, v%d, 3, v%d" % (t1, t2, t1))
    k.e("v_bfe_u32 v%d, v%d, 4, 1" % (t2, lane))
    k.e("v_bfe_u32 v%d, v%d, 1, 1" % (t3, lane))
    k.e("v_lshl_add_u32 v%d, v%d, 1, v%d" % (t2, t2, t3))
    k.e("v_lshlrev_b32 v%d, 2, v%d" % (t0, t0))
    for tn in range(g.TN):
        k.e("s_mul_i32 s%d, s%d, %d" % (g.sT0, g.sWn, g.TN * 4))
        k.e("s_add_u32 s%d, s%d, %d" % (g.sT0, g.sT0, tn * 4))
        k.e("v_add_u32 v%d, s%d, v%d" % (t3, g.sT0, t2))
        k.e("v_xor_b32 v%d, v%d, v%d" % (t3, t3, t0))
        k.e("v_lshl_add_u32 v%d, v%d, 4, v%d" % (t3, t3, t1))
        for s in range(nst):
            k.e("v_add_u32 v%d, %d, v%d" % (g.vRB + s * g.TN + tn, g.ldsB(s), t3))


def dma_list(k, g, s):
    out = []

    def a_i(j):
        def f():
            if j == 0:
                k.e("s_mov_b32 m0, s%d" % (g.sM0A + s))
                k.e("s_nop 0")
            va = g.vDA if g.amode == "frag" else g.vDA + j
            k.e("buffer_load_dwordx4 v%d, %s, s%d offen offset:%d lds" % (va, sr(g.sA, 4), g.sAoff, 1024 * j))
            if j == g.NA - 1:
                k.e("s_add_u32 s%d, s%d, s%d" % (g.sAoff, g.sAoff, g.sAstep))
        return f

    def b_i(j):
        def f():
            if j == 0:
                k.e("s_mov_b32 m0, s%d" % (g.sM0B + s))
                k.e("s_nop 0")
            k.e("buffer_load_dwordx4 v%d, %s, s%d offen offset:%d lds" % (g.vDB + j, sr(g.sB, 4), g.sBoff, 1024 * j))
            if j == g.NB - 1:
                k.e("s_add_u32 s%d, s%d, s%d" % (g.sBoff, g.sBoff, g.sBstep))
                if g.bswitch:
                    lo, hi, nrec, sw = g.bswitch
                    k.e("s_cmp_eq_u32 s%d, %d" % (g.sBoff, sw))
                    k.e("s_cselect_b32 s%d, s%d, s%d" % (g.sB, lo, g.sB))
                    k.e("s_cselect_b32 s%d, s%d, s%d" % (g.sB + 1, hi, g.sB + 1))
                    k.e("s_cselect_b32 s%d, s%d, s%d" % (g.sB + 2, nrec, g.sB + 2))
                    k.e("s_cselect_b32 s%d, 0, s%d" % (g.sBoff, g.sBoff))
        return f

    for j in range(g.NA):
        out.append(a_i(j))
    for j in range(g.NB):
        out.append(b_i(j))
    return out


def read_list(k, g, s, kk, fset):
    rowb = g.BN * 2

    def ra(tm):
        def f():
            if g.amode == "frag":
                if g.sep_stage:
                    addr, off = g.vRA + s, tm * 4096 + kk * 1024
                else:
                    addr, off = g.vRA, g.ldsA(s) + tm * 4096 + kk * 1024
            else:
                if g.sep_stage:
                    addr, off = g.vRA + s * 4 + kk, tm * 4096
                else:
                    addr, off = g.vRA + kk, g.ldsA(s) + tm * 4096
            assert off < 65536
            d = g.fA(fset, tm)
            k.lds_op("ds_read_b128 %s, v%d offset:%d" % (vr(d, 4), addr, off), rng(d, 4))
        return f

    def rb(tn, sub):
        def f():
            if g.sep_stage:
                addr, off = g.vRB + s * g.TN + tn, (16 * kk + 4 * sub) * rowb
            else:
                addr, off = g.vRB + tn, s * g.B_stage + (16 * kk + 4 * sub) * rowb
            assert off < 65536
            d = g.fB(fset, tn) + 2 * sub
            k.lds_op("ds_read_b64_tr_b16 %s, v%d offset:%d" % (vr(d, 2), addr, off), rng(d, 2))
        return f

    out = []
    out += [rb(0, 0), rb(0, 1), ra(0)]
    for tn in range(1, g.TN):
        out += [rb(tn, 0), rb(tn, 1)]
    for tm in range(1, g.TM):
        out.append(ra(tm))
    return out


def mfma_list(k, g, fset):
    out = []
    for tm in range(g.TM):
        for tn in range(g.TN):
            def f(tm=tm, tn=tn):
                a, b, c = g.fA(fset, tm), g.fB(fset, tn), g.acc(tm, tn)
                k.lds_need(list(rng(a, 4)) + list(rng(b, 4)))
                if g.swap:
                    a, b = b, a
                k.e("v_mfma_f32_32x32x16_bf16 %s, %s, %s, %s" % (vr(c, 16), vr(a, 4), vr(b, 4), vr(c, 16)))
            out.append(f)
    return out


def gemm_body(k, g, u, dma, last, vmwait):
    nm = g.TM * g.TN
    for kk in range(4):
        cur = kk & 1
        nxt = cur ^ 1
        fillers = []
        if kk == 3:
            if not last:
                k.lds_drain("vmcnt(%d)" % vmwait)
                k.e("s_barrier")
                fillers += read_list(k, g, (u + 1) % g.NS, 0, nxt)
            if dma:
                fillers += dma_list(k, g, u)
        else:
            fillers += read_list(k, g, u, kk + 1, nxt)
        per = max(2, -(-len(fillers) // nm))
        interleave(k, mfma_list(k, g, cur), fillers, [per] * nm)


def gemm_prologue_dma(k, g):
    for s in range(g.NS):
        for f in dma_list(k, g, s):
            f()


def gemm_main(k, g, nk, extra_vm=0, name="g"):
    assert nk % g.NS == 0 and nk >= g.NS
    k.e("s_waitcnt vmcnt(%d)" % ((g.NS - 1) * g.ND + extra_vm))
    k.e("s_barrier")
    for f in read_list(k, g, 0, 0, 0):
        f()
    nloop = (nk - g.NS) // g.NS
    if nloop > 0:
        lab = k.newlabel(name + "_loop")
        k.e("s_mov_b32 s%d, %d" % (g.sCnt, nloop))
        q0 = list(k.ldsq)
        k.label(lab)
        for u in range(g.NS):
            gemm_body(k, g, u, True, False, (g.NS - 2) * g.ND)
        assert k.ldsq == q0, (k.ldsq, q0)
        k.e("s_sub_u32 s%d, s%d, 1" % (g.sCnt, g.sCnt))
        k.e("s_cmp_lg_u32 s%d, 0" % g.sCnt)
        k.e("s_cbranch_scc1 %s" % lab)
    for i in range(g.NS):
        last = i == g.NS - 1
        gemm_body(k, g, i, False, last, max(0, (g.NS - 2 - i)) * g.ND)
    k.e("s_nop 15")


def acc_zero(k, g):
    for r in range(g.vAcc, g.nvgpr):
        k.e("v_mov_b32 v%d, 0" % r)


def pack_store(k, g, src, tq, soff, imm, pre=None, flags=""):
    for i in range(4):
        k.e("v_cvt_pk_bf16_f32 v%d, v%d, v%d" % (tq + i, src + 2 * i, src + 2 * i + 1))
    k.e("s_nop 1")
    k.e("v_permlane32_swap_b32 v%d, v%d" % (tq, tq + 2))
    k.e("v_permlane32_swap_b32 v%d, v%d" % (tq + 1, tq + 3))
    k.e("buffer_store_dwordx4 %s, v%d, %s, s%d offen offset:%d%s" % (vr(tq, 4), g.vLane16, sr(g.sO, 4), soff, imm, flags))
```

```python
import sys, os, math, struct
sys.path.insert(0, os.path.dirname(os.path.abspath(__file__)))
from asmlib import *
from gemm import *

MB = 1 << 20
WS_XN = 0
WS_Q = 4 * MB
WS_K = 20 * MB
WS_VT = 36 * MB
WS_AH = 52 * MB
WS_PART = 84 * MB
WS_SIZE = 268435456

ARG_X, ARG_CKV, ARG_WQ, ARG_WUK, ARG_WUV, ARG_WO, ARG_BX, ARG_W1, ARG_B1, ARG_W2, ARG_B2, ARG_OUT, ARG_DBG, ARG_WS = [8 * i for i in range(14)]


def f32bits(x):
    return struct.unpack("<I", struct.pack("<f", x))[0]


def srd(k, d, base, off_lo_sreg_or_imm, nbytes):
    k.e("s_add_u32 s%d, s%d, %s" % (d, base, off_lo_sreg_or_imm))
    k.e("s_addc_u32 s%d, s%d, 0" % (d + 1, base + 1))
    k.e("s_mov_b32 s%d, %s" % (d + 2, nbytes))
    k.e("s_mov_b32 s%d, 0x00020000" % (d + 3))


def ln_issue_loads(k, g, sX):
    lane = 156
    k.c("---- LN loads")
    k.e("s_lshl_b32 s%d, s2, 14" % g.sT0)
    srd(k, 36, sX, "s%d" % g.sT0, 16384)
    k.e("v_and_b32 v%d, 63, v0" % lane)
    k.e("v_and_b32 v152, 7, v%d" % lane)
    k.e("v_lshrrev_b32 v153, 3, v0")
    k.e("v_lshrrev_b32 v154, 6, v0")
    k.e("v_lshl_add_u32 v153, v154, 3, v153")
    k.e("v_lshlrev_b32 v155, 11, v152")
    k.e("v_lshl_add_u32 v155, v153, 4, v155")
    k.e("buffer_load_dwordx4 v[128:131], v155, s[36:39], 0 offen")
    k.e("buffer_load_dwordx4 v[132:135], v155, s[36:39], 0 offen offset:128")


def ln_reduce(k, v, tmp, ldsaddr_w, ldsaddr_r, off):
    k.e("ds_swizzle_b32 v%d, v%d offset:0x201F" % (tmp, v))
    k.e("s_waitcnt lgkmcnt(0)")
    k.e("v_add_f32 v%d, v%d, v%d" % (v, v, tmp))
    k.e("ds_swizzle_b32 v%d, v%d offset:0x401F" % (tmp, v))
    k.e("s_waitcnt lgkmcnt(0)")
    k.e("v_add_f32 v%d, v%d, v%d" % (v, v, tmp))
    k.e("v_mov_b32 v%d, v%d" % (tmp, v))
    k.e("s_nop 1")
    k.e("v_permlane32_swap_b32 v%d, v%d" % (tmp, v))
    k.e("v_add_f32 v%d, v%d, v%d" % (v, v, tmp))
    k.e("ds_write_b32 v%d, v%d offset:%d" % (ldsaddr_w, v, off))
    k.e("s_waitcnt lgkmcnt(0)")
    k.e("s_barrier")
    k.e("ds_read_b128 v[160:163], v%d offset:%d" % (ldsaddr_r, off))
    k.e("ds_read_b128 v[164:167], v%d offset:%d" % (ldsaddr_r, off + 16))
    k.e("s_waitcnt lgkmcnt(0)")
    k.e("v_add_f32 v160, v160, v161")
    k.e("v_add_f32 v162, v162, v163")
    k.e("v_add_f32 v164, v164, v165")
    k.e("v_add_f32 v166, v166, v167")
    k.e("v_add_f32 v160, v160, v162")
    k.e("v_add_f32 v164, v164, v166")
    k.e("v_add_f32 v%d, v160, v164" % v)


def rbf(k, d, s):
    k.e("v_cvt_pk_bf16_f32 v%d, v%d, v%d" % (d, s, s))
    k.e("v_lshlrev_b32 v%d, 16, v%d" % (d, d))


def ln_compute(k, g, sWS, vm_younger, lnbase):
    k.c("---- LN compute")
    k.e("s_waitcnt vmcnt(%d)" % vm_younger)
    for i in range(8):
        k.e("v_lshlrev_b32 v%d, 16, v%d" % (136 + 2 * i, 128 + i))
        k.e("v_and_b32 v%d, 0xffff0000, v%d" % (137 + 2 * i, 128 + i))
    k.e("v_lshlrev_b32 v158, 5, v152")
    k.e("v_add_u32 v158, %d, v158" % lnbase)
    k.e("v_lshl_add_u32 v157, v154, 2, v158")
    k.e("v_add_f32 v168, v136, v137")
    for i in range(2, 16):
        k.e("v_add_f32 v168, v168, v%d" % (136 + i))
    ln_reduce(k, 168, 169, 157, 158, 0)
    k.e("v_mul_f32 v168, 0x%08x, v168" % f32bits(1.0 / 1024))
    k.e("v_sub_f32 v170, v136, v168")
    k.e("v_mul_f32 v171, v170, v170")
    for i in range(1, 16):
        k.e("v_sub_f32 v170, v%d, v168" % (136 + i))
        k.e("v_fmac_f32 v171, v170, v170")
    ln_reduce(k, 171, 169, 157, 158, 256)
    k.e("v_mul_f32 v171, 0x%08x, v171" % f32bits(1.0 / 1024))
    rbf(k, 168, 168)
    rbf(k, 171, 171)
    k.e("v_add_f32 v171, 0x%08x, v171" % f32bits(1e-5))
    rbf(k, 171, 171)
    k.e("v_sqrt_f32 v171, v171")
    k.e("s_nop 0")
    rbf(k, 171, 171)
    k.e("v_rcp_f32 v171, v171")
    for i in range(16):
        k.e("v_sub_f32 v%d, v%d, v168" % (136 + i, 136 + i))
    for i in range(8):
        k.e("v_cvt_pk_bf16_f32 v%d, v%d, v%d" % (128 + i, 136 + 2 * i, 137 + 2 * i))
    for i in range(8):
        k.e("v_lshlrev_b32 v%d, 16, v%d" % (136 + 2 * i, 128 + i))
        k.e("v_and_b32 v%d, 0xffff0000, v%d" % (137 + 2 * i, 128 + i))
    for i in range(16):
        k.e("v_mul_f32 v%d, v%d, v171" % (136 + i, 136 + i))
    for i in range(8):
        k.e("v_cvt_pk_bf16_f32 v%d, v%d, v%d" % (128 + i, 136 + 2 * i, 137 + 2 * i))
    k.e("s_lshr_b32 s%d, s2, 2" % g.sT0)
    k.e("s_lshl_b32 s%d, s%d, 16" % (g.sT0, g.sT0))
    k.e("s_add_u32 s%d, s%d, %d" % (g.sT0, g.sT0, WS_XN))
    srd(k, 36, sWS, "s%d" % g.sT0, 65536)
    k.e("s_and_b32 s%d, s2, 3" % g.sT0)
    k.e("s_lshl_b32 s%d, s%d, 7" % (g.sT0, g.sT0))
    k.e("v_lshrrev_b32 v155, 1, v153")
    k.e("v_lshlrev_b32 v155, 10, v155")
    k.e("v_and_b32 v159, 1, v153")
    k.e("v_lshl_add_u32 v155, v159, 9, v155")
    k.e("v_lshl_add_u32 v155, v152, 4, v155")
    k.e("v_add_u32 v155, s%d, v155" % g.sT0)
    k.e("s_movk_i32 s%d, 4096" % g.sT1)
    k.e("buffer_store_dwordx4 v[128:131], v155, s[36:39], 0 offen")
    k.e("buffer_store_dwordx4 v[132:135], v155, s[36:39], s%d offen" % g.sT1)
    k.e("s_nop 1")


def gen_kv_kernel():
    k = KB()
    gK = GemmCfg(swap=True, amode="row")
    gV = GemmCfg(swap=False, amode="row")
    g = gK
    k.e("s_cmp_ge_u32 s2, 256")
    k.e("s_cbranch_scc1 L_kv_end")
    k.e("s_load_dwordx4 s[40:43], s[0:1], 0")
    k.e("s_load_dwordx4 s[44:47], s[0:1], 24")
    k.e("s_load_dwordx2 s[48:49], s[0:1], %d" % ARG_WS)
    k.e("s_and_b32 s50, s2, 7")
    k.e("s_lshr_b32 s51, s2, 3")
    k.e("s_and_b32 s52, s51, 3")
    k.e("s_lshl2_add_u32 s50, s50, s52")
    k.e("s_lshr_b32 s51, s51, 2")
    k.e("s_and_b32 s52, s50, 15")
    k.e("s_lshr_b32 s53, s50, 4")
    k.e("s_movk_i32 s%d, 1024" % g.sPitchA)
    k.e("s_movk_i32 s%d, 8192" % g.sPitchB)
    k.e("s_movk_i32 s%d, 128" % g.sAstep)
    k.e("s_mov_b32 s%d, %d" % (g.sBstep, 64 * 8192))
    k.e("s_mov_b32 s%d, 0" % g.sAoff)
    k.e("s_mov_b32 s%d, 0" % g.sBoff)
    gemm_setup(k, g)
    k.e("s_waitcnt lgkmcnt(0)")
    ln_issue_loads(k, g, 40)
    k.e("s_lshl_b32 s54, s51, 18")
    k.e("s_sub_u32 s55, %d, s54" % (2048 * 1024))
    srd(k, g.sA, 42, "s54", "s55")
    k.e("s_cmp_eq_u32 s53, 0")
    k.e("s_cselect_b32 s56, s44, s46")
    k.e("s_cselect_b32 s57, s45, s47")
    k.e("s_lshl_b32 s54, s52, 9")
    k.e("s_sub_u32 s55, %d, s54" % (512 * 8192))
    srd(k, g.sB, 56, "s54", "s55")
    gemm_prologue_dma(k, g)
    ln_compute(k, g, 48, g.NS * g.ND, g.lds_bytes)
    acc_zero(k, g)
    k.e("s_cmp_eq_u32 s53, 0")
    k.e("s_cbranch_scc0 L_kv_V")
    gemm_main(k, gK, 8, extra_vm=2, name="k")
    srd(k, g.sO, 48, WS_K, 16 * MB)
    k.e("s_lshr_b32 s54, s%d, 1" % g.sWn)
    k.e("s_lshl1_add_u32 s54, s52, s54")
    k.e("s_lshl_b32 s54, s54, 19")
    k.e("s_lshl_b32 s55, s51, 3")
    k.e("s_lshl2_add_u32 s55, s%d, s55" % g.sWm)
    k.e("s_lshl_b32 s55, s55, 13")
    k.e("s_add_u32 s54, s54, s55")
    k.e("s_and_b32 s55, s%d, 1" % g.sWn)
    k.e("s_lshl_b32 s55, s55, 12")
    k.e("s_add_u32 s54, s54, s55")
    tq = 0
    for tm in range(4):
        for tn in range(2):
            for p in range(2):
                pack_store(k, g, g.acc(tm, tn) + 8 * p, g.vF + 4 * (tq % 4), 54, (tn * 2 + p) * 1024)
                tq += 1
        if tm < 3:
            k.e("s_add_u32 s54, s54, 8192")
    k.e("s_endpgm")
    k.label("L_kv_V")
    k.ldsq = []
    gemm_main(k, gV, 8, extra_vm=2, name="v")
    srd(k, g.sO, 48, WS_VT, 16 * MB)
    k.e("s_lshr_b32 s54, s%d, 1" % g.sWn)
    k.e("s_lshl1_add_u32 s54, s52, s54")
    k.e("s_lshl_b32 s54, s54, 19")
    k.e("s_lshl_b32 s55, s51, 3")
    k.e("s_lshl2_add_u32 s55, s%d, s55" % g.sWm)
    k.e("s_lshl_b32 s55, s55, 13")
    k.e("s_add_u32 s54, s54, s55")
    k.e("s_and_b32 s55, s%d, 1" % g.sWn)
    k.e("s_lshl_b32 s55, s55, 12")
    k.e("s_add_u32 s54, s54, s55")
    tq = 0
    for tm in range(4):
        for tn in range(2):
            for p in range(2):
                pack_store(k, g, g.acc(tm, tn) + 8 * p, g.vF + 4 * (tq % 4), 54, (tn * 2 + p) * 1024)
                tq += 1
        if tm < 3:
            k.e("s_add_u32 s54, s54, 8192")
    k.label("L_kv_end")
    k.e("s_endpgm")
    return k.text(), g.nvgpr, g.lds_bytes + 1024


QSCALE = math.log2(math.e) / math.sqrt(128.0)
GELU_C1 = -2.0 * math.sqrt(2.0 / math.pi) * math.log2(math.e)
GELU_C2 = GELU_C1 * 0.044715


def gen_qh_kernel():
    k = KB()
    g = GemmCfg(swap=True, amode="frag")
    k.e("s_cmp_ge_u32 s2, 240")
    k.e("s_cbranch_scc1 L_qh_end")
    k.e("s_load_dwordx2 s[40:41], s[0:1], %d" % ARG_WQ)
    k.e("s_load_dwordx4 s[44:47], s[0:1], %d" % ARG_W1)
    k.e("s_load_dwordx2 s[48:49], s[0:1], %d" % ARG_WS)
    k.e("s_and_b32 s50, s2, 7")
    k.e("s_lshr_b32 s51, s2, 3")
    k.e("s_mul_i32 s50, s50, 30")
    k.e("s_add_u32 s50, s50, s51")
    k.e("s_and_b32 s51, s50, 7")
    k.e("s_lshr_b32 s50, s50, 3")
    k.e("s_cmp_ge_u32 s50, 16")
    k.e("s_cselect_b32 s53, 1, 0")
    k.e("s_cselect_b32 s%d, 7, 8" % g.sPitchB)
    k.e("s_lshl_b32 s%d, s%d, 10" % (g.sPitchB, g.sPitchB))
    k.e("s_cmp_ge_u32 s50, 16")
    k.e("s_cselect_b32 s54, 16, 0")
    k.e("s_sub_u32 s52, s50, s54")
    k.e("s_mov_b32 s%d, 65536" % g.sPitchA)
    k.e("s_movk_i32 s%d, 4096" % g.sAstep)
    k.e("s_lshl_b32 s%d, s%d, 6" % (g.sBstep, g.sPitchB))
    k.e("s_mov_b32 s%d, 0" % g.sAoff)
    k.e("s_mov_b32 s%d, 0" % g.sBoff)
    gemm_setup(k, g)
    k.e("s_waitcnt lgkmcnt(0)")
    k.e("s_lshl_b32 s54, s51, 19")
    k.e("s_sub_u32 s55, %d, s54" % (4 * MB))
    k.e("s_add_u32 s54, s54, %d" % WS_XN)
    srd(k, g.sA, 48, "s54", "s55")
    k.e("s_cmp_eq_u32 s53, 0")
    k.e("s_cselect_b32 s56, s40, s44")
    k.e("s_cselect_b32 s57, s41, s45")
    k.e("s_lshl_b32 s54, s52, 9")
    k.e("s_lshl_b32 s55, s%d, 10" % g.sPitchB)
    k.e("s_sub_u32 s55, s55, s54")
    srd(k, g.sB, 56, "s54", "s55")
    gemm_prologue_dma(k, g)
    k.e("s_cmp_eq_u32 s53, 0")
    k.e("s_cbranch_scc0 L_qh_H")
    acc_zero(k, g)
    gemm_main(k, g, 16, name="q")
    srd(k, g.sO, 48, WS_Q, 16 * MB)
    k.e("s_lshr_b32 s54, s%d, 1" % g.sWn)
    k.e("s_lshl1_add_u32 s54, s52, s54")
    k.e("s_lshl_b32 s54, s54, 19")
    k.e("s_lshl_b32 s55, s51, 3")
    k.e("s_lshl2_add_u32 s55, s%d, s55" % g.sWm)
    k.e("s_lshl_b32 s55, s55, 13")
    k.e("s_add_u32 s54, s54, s55")
    k.e("s_and_b32 s55, s%d, 1" % g.sWn)
    k.e("s_lshl_b32 s55, s55, 12")
    k.e("s_add_u32 s54, s54, s55")
    k.e("s_mov_b32 s58, 0x%08x" % f32bits(QSCALE))
    k.e("s_mov_b32 s59, 0x%08x" % f32bits(QSCALE))
    tq = 0
    for tm in range(4):
        for tn in range(2):
            for p in range(2):
                src = g.acc(tm, tn) + 8 * p
                for i in range(4):
                    k.e("v_pk_mul_f32 %s, %s, s[58:59]" % (vr(src + 2 * i, 2), vr(src + 2 * i, 2)))
                pack_store(k, g, src, g.vF + 4 * (tq % 4), 54, (tn * 2 + p) * 1024)
                tq += 1
        if tm < 3:
            k.e("s_add_u32 s54, s54, 8192")
    k.e("s_endpgm")
    k.label("L_qh_H")
    k.ldsq = []
    k.e("s_lshl_b32 s54, s52, 9")
    k.e("s_lshl_b32 s55, s%d, 7" % g.sWn)
    k.e("s_add_u32 s54, s54, s55")
    k.e("s_sub_u32 s55, %d, s54" % (3584 * 2))
    srd(k, g.sO, 46, "s54", "s55")
    t0 = g.vTmp
    k.e("v_bfe_u32 v%d, v0, 5, 1" % t0)
    k.e("v_lshlrev_b32 v%d, 3, v%d" % (t0, t0))
    bq = g.vF
    for tn in range(2):
        for gq in range(4):
            k.e("buffer_load_dwordx2 %s, v%d, %s, 0 offen offset:%d" % (vr(bq + (tn * 4 + gq) * 2, 2), t0, sr(g.sO, 4), tn * 64 + gq * 16))
    k.e("s_waitcnt vmcnt(0)")
    for tn in range(2):
        for r in range(16):
            src = bq + (tn * 4 + (r >> 2)) * 2 + ((r & 3) >> 1)
            d = g.acc(0, tn) + r
            if r & 1:
                k.e("v_and_b32 v%d, 0xffff0000, v%d" % (d, src))
            else:
                k.e("v_lshlrev_b32 v%d, 16, v%d" % (d, src))
    for tm in range(1, 4):
        for tn in range(2):
            for r in range(16):
                k.e("v_mov_b32 v%d, v%d" % (g.acc(tm, tn) + r, g.acc(0, tn) + r))
    gemm_main(k, g, 16, name="h")
    srd(k, g.sO, 48, WS_AH, 2048 * 7680 * 2)
    k.e("s_lshl_b32 s55, s51, 3")
    k.e("s_lshl2_add_u32 s55, s%d, s55" % g.sWm)
    k.e("s_mul_i32 s55, s55, 480")
    k.e("s_lshl_b32 s54, s52, 4")
    k.e("s_add_u32 s54, s54, s55")
    k.e("s_lshl2_add_u32 s54, s%d, s54" % g.sWn)
    k.e("s_add_u32 s54, s54, 256")
    k.e("s_lshl_b32 s54, s54, 10")
    k.e("s_mov_b32 s58, 0x%08x" % f32bits(GELU_C2))
    k.e("s_mov_b32 s59, 0x%08x" % f32bits(GELU_C2))
    k.e("v_mov_b32 v%d, 0x%08x" % (g.vTmp, f32bits(GELU_C1)))
    k.e("v_mov_b32 v%d, 0x%08x" % (g.vTmp + 1, f32bits(GELU_C1)))
    k.e("v_mov_b32 v%d, 1.0" % (g.vTmp + 2))
    k.e("v_mov_b32 v%d, 1.0" % (g.vTmp + 3))
    c1 = vr(g.vTmp, 2)
    one2 = vr(g.vTmp + 2, 2)
    tb = g.vF + 16
    tq = 0
    for tm in range(4):
        for tn in range(2):
            for p in range(2):
                src = g.acc(tm, tn) + 8 * p
                for i in range(4):
                    x = vr(src + 2 * i, 2)
                    t = vr(tb + 2 * i, 2)
                    k.e("v_pk_mul_f32 %s, %s, %s" % (t, x, x))
                for i in range(4):
                    t = vr(tb + 2 * i, 2)
                    k.e("v_pk_fma_f32 %s, %s, s[58:59], %s" % (t, t, c1))
                for i in range(4):
                    x = vr(src + 2 * i, 2)
                    t = vr(tb + 2 * i, 2)
                    k.e("v_pk_mul_f32 %s, %s, %s" % (t, t, x))
                for i in range(8):
                    k.e("v_exp_f32 v%d, v%d" % (tb + i, tb + i))
                for i in range(4):
                    t = vr(tb + 2 * i, 2)
                    k.e("v_pk_add_f32 %s, %s, %s" % (t, t, one2))
                for i in range(8):
                    k.e("v_rcp_f32 v%d, v%d" % (tb + i, tb + i))
                for i in range(4):
                    x = vr(src + 2 * i, 2)
                    t = vr(tb + 2 * i, 2)
                    k.e("v_pk_mul_f32 %s, %s, %s" % (x, x, t))
                pack_store(k, g, src, g.vF + 4 * (tq % 4), 54, (tn * 2 + p) * 1024)
                tq += 1
        if tm < 3:
            k.e("s_add_u32 s54, s54, %d" % (480 * 1024))
    k.label("L_qh_end")
    k.e("s_endpgm")
    return k.text(), g.nvgpr, g.lds_bytes


HEADER = open(os.path.join(os.path.dirname(os.path.abspath(__file__)), "header.txt")).read()


def build(kernels):
    out = [HEADER]
    bodies = []
    descs = []
    for name, grid, block, fn in kernels:
        text, nv, lds = fn()
        out.append("; @launch kernel=%s grid=(%d,1,1) block=(%d,1,1) lds=%d\n" % (name, grid, block, lds))
        bodies.append(kernel_header(name) + text)
        descs.append(".p2align 6\n" + kernel_desc(name, nv))
    out.append('.amdgcn_target "amdgcn-amd-amdhsa--gfx950"\n.text\n')
    out += bodies
    out.append('.section .rodata,"a"\n')
    out += descs
    return "".join(out)


if __name__ == "__main__":
    kernels = [
        ("kv_kernel", 256, 512, gen_kv_kernel),
        ("qh_kernel", 240, 512, gen_qh_kernel),
    ]
    try:
        from attn import gen_attn_kernel
        kernels.append(("attn_kernel", 256, 512, gen_attn_kernel))
        from fin import fin_kernels
        kernels += fin_kernels()
    except ImportError as e:
        print("note:", e)
    s = build(kernels)
    dst = sys.argv[1] if len(sys.argv) > 1 else "parallel_sum__compressed_kv_cla__dense_activation_gelu__prompt.s"
    open(dst, "w").write(s)
    print("wrote", dst, len(s), "bytes")
```

```python
class KB:
    def __init__(self):
        self.lines = []
        self.ldsq = []
        self.uid = 0
        self.vmq = []

    def e(self, s):
        self.lines.append("    " + s)

    def c(self, s):
        self.lines.append("    ; " + s)

    def label(self, l):
        self.lines.append(l + ":")

    def newlabel(self, base):
        KB.guid = getattr(KB, "guid", 0) + 1
        return "L_%s_%d" % (base, KB.guid)

    def lds_op(self, text, dst=()):
        self.e(text)
        self.ldsq.append(frozenset(dst))

    def lds_need(self, regs):
        regs = set(regs)
        idx = -1
        for i, d in enumerate(self.ldsq):
            if d & regs:
                idx = i
        if idx < 0:
            return
        n = len(self.ldsq) - idx - 1
        self.e("s_waitcnt lgkmcnt(%d)" % min(n, 15))
        if n > 15:
            self.ldsq = self.ldsq[len(self.ldsq) - 15:]
        else:
            self.ldsq = self.ldsq[idx + 1:]

    def vm_op(self, text, tag=None):
        self.e(text)
        self.vmq.append(tag)

    def vm_count(self, tags):
        idx = -1
        for i, t in enumerate(self.vmq):
            if t in tags:
                idx = i
        if idx < 0:
            return None
        n = len(self.vmq) - idx - 1
        self.vmq = self.vmq[idx + 1:]
        return min(n, 63)

    def vm_need(self, tags):
        n = self.vm_count(tags)
        if n is not None:
            self.e("s_waitcnt vmcnt(%d)" % n)

    def lds_drain(self, extra=""):
        self.e(("s_waitcnt lgkmcnt(0) " + extra).strip())
        self.ldsq = []

    def text(self):
        return "\n".join(self.lines) + "\n"


def vr(b, n):
    if n == 1:
        return "v%d" % b
    return "v[%d:%d]" % (b, b + n - 1)


def sr(b, n):
    if n == 1:
        return "s%d" % b
    return "s[%d:%d]" % (b, b + n - 1)


def rng(b, n):
    return range(b, b + n)


def interleave(k, mains, fillers, per_gap):
    fi = 0
    for i, m in enumerate(mains):
        m()
        n = per_gap[i] if i < len(per_gap) else 0
        for _ in range(n):
            if fi < len(fillers):
                fillers[fi]()
                fi += 1
    while fi < len(fillers):
        fillers[fi]()
        fi += 1


def kernel_header(name):
    return (
        ".globl %s\n.p2align 8\n.type %s,@function\n%s:\n" % (name, name, name)
    )


def kernel_desc(name, vgpr, sgpr=102, accum=None):
    if accum is None:
        accum = (vgpr + 3) // 4 * 4
    return (
        ".amdhsa_kernel %s\n"
        "  .amdhsa_next_free_vgpr %d\n"
        "  .amdhsa_next_free_sgpr %d\n"
        "  .amdhsa_accum_offset %d\n"
        "  .amdhsa_group_segment_fixed_size 0\n"
        "  .amdhsa_kernarg_size 112\n"
        "  .amdhsa_user_sgpr_count 2\n"
        "  .amdhsa_user_sgpr_kernarg_segment_ptr 1\n"
        "  .amdhsa_system_sgpr_workgroup_id_x 1\n"
        ".end_amdhsa_kernel\n" % (name, vgpr, sgpr, accum)
    )


import os
DIAG = bool(os.environ.get("DIAG"))
DIAG_BASE = 200 * (1 << 20)


def stamp(k, idx, rt=False):
    if not DIAG:
        return
    k.e("%s vcc" % ("s_memrealtime" if rt else "s_memtime"))
    k.e("s_waitcnt lgkmcnt(0)")
    k.e("v_writelane_b32 v%d, vcc_lo, %d" % (k.vst, idx))
    k.e("v_writelane_b32 v%d, vcc_hi, %d" % (k.vst + 1, idx))
    k.ldsq = []


def stamp_rt(k, idx):
    stamp(k, idx, True)


def stamp_flush(k, kid, sws, n=16):
    if not DIAG:
        return
    lab = k.newlabel("nost")
    k.e("s_waitcnt vmcnt(0)")
    stamp(k, n - 2)
    stamp_rt(k, n - 1)
    k.e("v_cmp_gt_u32 vcc, 64, v0")
    k.e("s_cbranch_vccz %s" % lab)
    k.e("s_lshl_b32 s6, s2, 7")
    k.e("s_add_u32 s6, s6, %d" % (DIAG_BASE + kid * 65536))
    k.e("s_add_u32 s4, s%d, s6" % sws)
    k.e("s_addc_u32 s5, s%d, 0" % (sws + 1))
    k.e("s_mov_b32 s6, 128")
    k.e("s_mov_b32 s7, 0x00020000")
    k.e("v_lshlrev_b32 v1, 3, v0")
    k.e("buffer_store_dwordx2 v[%d:%d], v1, s[4:7], 0 offen" % (k.vst, k.vst + 1))
    k.label(lab)
```

```python
import struct
from asmlib import *

MB = 1 << 20
WS_Q = 4 * MB
WS_K = 20 * MB
WS_VT = 36 * MB
WS_AH = 52 * MB
ARG_WS = 104


def f32bits(x):
    return struct.unpack("<I", struct.pack("<f", x))[0]


vL16 = 1
vKA = 2
vVA = 3
vL0, vL1 = 4, 5
vMax = 6
vT0 = 7
vThr = 8
vNeg = 9
vD = 10
vT1 = 11
vT2 = 12
vT3 = 13
vQ = 16
vKf = 48
vVf = 80
vS = [112, 128]
vNm = 144
vP = 160
vTq = 168
vO = 176
NV = 242
sK, sV, sO, sQ = 4, 8, 12, 16
sJ, sJL, sKoff, sVoff, sWave, sG, sWq = 20, 21, 22, 23, 24, 25, 26
sM0K, sM0V = 27, 29
sT, sPhase, sHead, sPi = 31, 32, 33, 34
sA, sB = 35, 36
sMask = 40
sWS = 48
sPf = 52
sPfOff = 56
sWO = 58
sW2 = 60
vPf = 240
vDum = 241
THRESH = 20.0


def srd(k, d, base, off, nbytes):
    k.e("s_add_u32 s%d, s%d, %s" % (d, base, off))
    k.e("s_addc_u32 s%d, s%d, 0" % (d + 1, base + 1))
    k.e("s_mov_b32 s%d, %s" % (d + 2, nbytes))
    k.e("s_mov_b32 s%d, 0x00020000" % (d + 3))


def kread(k, slot, n):
    out = []
    for C in range(8):
        def f(C=C):
            d = vKf + 4 * C
            k.lds_op("ds_read_b128 %s, v%d offset:%d" % (vr(d, 4), vKA, slot * 32768 + n * 8192 + C * 1024), rng(d, 4))
        out.append(f)
    return out


def vread(k, slot, n):
    out = []
    for jj in range(2):
        for R in range(4):
            def f(R=R, jj=jj):
                d = vVf + 4 * (jj * 4 + R)
                k.lds_op("ds_read_b128 %s, v%d offset:%d" % (vr(d, 4), vVA, slot * 32768 + n * 8192 + R * 2048 + jj * 1024), rng(d, 4))
            out.append(f)
    return out


def qk(k, sb, zero_c=False):
    out = []
    for C in range(8):
        def f(C=C):
            a = vKf + 4 * C
            k.lds_need(rng(a, 4))
            if C == 0:
                c = "0" if zero_c else vr(vNm, 16)
            else:
                c = vr(vS[sb], 16)
            k.e("v_mfma_f32_32x32x16_bf16 %s, %s, %s, %s" % (vr(vS[sb], 16), vr(a, 4), vr(vQ + 4 * C, 4), c))
        out.append(f)
    return out


def pv(k):
    out = []
    for jj in range(2):
        for R in range(4):
            def f(R=R, jj=jj):
                a = vVf + 4 * (jj * 4 + R)
                k.lds_need(rng(a, 4))
                o = vO + 16 * R
                k.e("v_mfma_f32_32x32x16_bf16 %s, %s, %s, %s" % (vr(o, 16), vr(a, 4), vr(vP + 4 * jj, 4), vr(o, 16)))
            out.append(f)
    return out


def expl(k, sb):
    S = vS[sb]
    out = []

    def E(r):
        return lambda: k.e("v_exp_f32 v%d, v%d" % (S + r, S + r))

    def A(r):
        l = vL0 if (r & 1) == 0 else vL1
        return lambda: k.e("v_add_f32 v%d, v%d, v%d" % (l, l, S + r))

    def Cv(i):
        return lambda: k.e("v_cvt_pk_bf16_f32 v%d, v%d, v%d" % (vP + i, S + 2 * i, S + 2 * i + 1))
    for i in range(8):
        out += [E(2 * i), E(2 * i + 1)]
        if i > 0:
            out += [Cv(i - 1), A(2 * i - 2), A(2 * i - 1)]
    out += [lambda: k.e("s_nop 0"), Cv(7), A(14), A(15)]
    return out


def maxl(k, sb):
    S = vS[sb]
    out = [lambda: k.e("v_max3_f32 v%d, v%d, v%d, v%d" % (vMax, S, S + 1, S + 2)),
           lambda: k.e("v_max3_f32 v%d, v%d, v%d, v%d" % (vT0, S + 3, S + 4, S + 5))]
    for i in range(6, 14, 4):
        out.append(lambda i=i: k.e("v_max3_f32 v%d, v%d, v%d, v%d" % (vMax, vMax, S + i, S + i + 1)))
        out.append(lambda i=i: k.e("v_max3_f32 v%d, v%d, v%d, v%d" % (vT0, vT0, S + i + 2, S + i + 3)))
    out.append(lambda: k.e("v_max3_f32 v%d, v%d, v%d, v%d" % (vMax, vMax, S + 14, S + 15)))
    out.append(lambda: k.e("v_max_f32 v%d, v%d, v%d" % (vMax, vMax, vT0)))
    return out


def mask_code(k, sb, n):
    S = vS[sb]
    for r0 in range(0, 16, 4):
        for i in range(4):
            r = r0 + i
            c = 16 * (r >> 3) + (r & 7) + 32 * n
            k.e("v_cmp_le_i32 %s, %d, v%d" % (sr(sMask + 2 * i, 2), c, vThr))
        for i in range(4):
            r = r0 + i
            k.e("v_cndmask_b32 v%d, v%d, v%d, %s" % (S + r, vNeg, S + r, sr(sMask + 2 * i, 2)))


def dma_k(k, slot):
    out = []
    for j in range(4):
        def f(j=j):
            if j == 0:
                k.e("s_mov_b32 m0, s%d" % (sM0K + slot))
                k.e("s_nop 0")
            k.e("buffer_load_dwordx4 v%d, %s, s%d offen offset:%d lds" % (vD, sr(sK, 4), sKoff, 1024 * j))
            if j == 3:
                k.e("s_add_u32 s%d, s%d, 32768" % (sKoff, sKoff))
        out.append(f)
    return out


def dma_v(k, slot):
    out = []
    for j in range(4):
        def f(j=j):
            if j == 0:
                k.e("s_mov_b32 m0, s%d" % (sM0V + slot))
                k.e("s_nop 0")
            k.e("buffer_load_dwordx4 v%d, %s, s%d offen offset:%d lds" % (vD, sr(sV, 4), sVoff, 1024 * j))
            if j == 3:
                k.e("s_add_u32 s%d, s%d, 32768" % (sVoff, sVoff))
        out.append(f)
    return out


def check(k, sb, slow_blocks):
    lab = k.newlabel("slow")
    back = k.newlabel("back")
    k.e("v_cmp_lt_f32 vcc, s%d, v%d" % (sT, vMax))
    k.e("s_cbranch_vccnz %s" % lab)
    k.label(back)
    slow_blocks.append((lab, back, sb))


def emit_slow(k, lab, back, sb):
    S = vS[sb]
    k.label(lab)
    k.e("v_mov_b32 v%d, v%d" % (vT0, vMax))
    k.e("s_nop 15")
    k.e("v_permlane32_swap_b32 v%d, v%d" % (vT0, vMax))
    k.e("v_max3_f32 v%d, v%d, v%d, 0" % (vMax, vMax, vT0))
    k.e("v_sub_f32 v%d, 0, v%d" % (vT0, vMax))
    k.e("v_exp_f32 v%d, v%d" % (vT0, vT0))
    for r in range(16):
        k.e("v_sub_f32 v%d, v%d, v%d" % (S + r, S + r, vMax))
    for r in range(16):
        k.e("v_sub_f32 v%d, v%d, v%d" % (vNm + r, vNm + r, vMax))
    k.e("v_mul_f32 v%d, v%d, v%d" % (vL0, vL0, vT0))
    k.e("v_mul_f32 v%d, v%d, v%d" % (vL1, vL1, vT0))
    for r in range(64):
        k.e("v_mul_f32 v%d, v%d, v%d" % (vO + r, vO + r, vT0))
    k.e("s_nop 1")
    k.e("s_branch %s" % back)


def spread(n_items, n_gaps, start=0):
    per = [0] * n_gaps
    m = n_gaps - start
    for i in range(n_items):
        per[start + (i * m) // n_items] += 1
    return per


def merge_fillers(lists_and_plans, n_gaps):
    flat, per = [], []
    idx = [0] * len(lists_and_plans)
    for gph in range(n_gaps):
        cnt = 0
        for li, (lst, plan) in enumerate(lists_and_plans):
            for _ in range(plan[gph]):
                if idx[li] < len(lst):
                    flat.append(lst[idx[li]])
                    idx[li] += 1
                    cnt += 1
        per.append(cnt)
    for li, (lst, plan) in enumerate(lists_and_plans):
        assert idx[li] == len(lst)
    return flat, per


def interval(k, p, last, slow_blocks):
    k.c("==== interval parity %d last=%s" % (p, last))
    lists = [(vread(k, p, 0), [2, 2, 2, 2, 0, 0, 0, 0]), (expl(k, 0), spread(44, 8))]
    if not last:
        skipk = k.newlabel("skipk")
        dk = dma_k(k, p)
        dv = dma_v(k, p ^ 1)

        def dk_all():
            k.e("s_add_u32 s%d, s%d, 2" % (sA, sJ))
            k.e("s_cmp_gt_u32 s%d, s%d" % (sA, sJL))
            k.e("s_cbranch_scc1 %s" % skipk)
            for f in dk:
                f()
            k.label(skipk)
            k.e("buffer_load_dword v%d, v%d, %s, s%d offen" % (vDum, vL16 if True else vPf, sr(sQ if True else sPf, 4), sKoff if True else sPfOff))
            k.e("s_add_u32 s%d, s%d, 524288" % (sPfOff, sPfOff))
        lists.append((dv + [dk_all], [0, 1, 1, 1, 1, 1, 0, 0]))
    fl, per = merge_fillers(lists, 8)
    interleave(k, qk(k, 1), fl, per)
    k.e("s_nop 0")
    if not last:
        lists = [(kread(k, p ^ 1, 0), [2, 2, 2, 2, 0, 0, 0, 0]), (maxl(k, 1), [0, 0, 0, 0, 2, 2, 2, 2])]
        fl, per = merge_fillers(lists, 8)
        interleave(k, pv(k), fl, per)
    else:
        interleave(k, pv(k), [], [])
        k.e("s_nop 7")
        mask_code(k, 1, 1)
        for f in maxl(k, 1):
            f()
    check(k, 1, slow_blocks)
    lists = [(vread(k, p, 1), [2, 2, 2, 2, 0, 0, 0, 0]), (expl(k, 1), spread(44, 8))]
    fl, per = merge_fillers(lists, 8)
    if not last:
        interleave(k, qk(k, 0), fl, per)
    else:
        for f in fl:
            f()
    k.e("s_nop 0")
    if not last:
        nomask = k.newlabel("nomask")

        def maybe_mask():
            k.e("s_add_u32 s%d, s%d, 1" % (sA, sJ))
            k.e("s_cmp_lg_u32 s%d, s%d" % (sA, sJL))
            k.e("s_cbranch_scc1 %s" % nomask)
            mask_code(k, 0, 0)
            k.label(nomask)
        lists = [(kread(k, p ^ 1, 1), [2, 2, 2, 2, 0, 0, 0, 0]), ([maybe_mask] + maxl(k, 0), [0, 0, 0, 0, 3, 2, 2, 2])]
        fl, per = merge_fillers(lists, 8)
        interleave(k, pv(k), fl, per)
        check(k, 0, slow_blocks)
        k.lds_drain("vmcnt(1)")
        k.e("s_barrier")
    else:
        interleave(k, pv(k), [], [])


def gen_attn_kernel():
    k = KB()
    slow_blocks = []
    k.e("s_cmp_ge_u32 s2, 256")
    k.e("s_cbranch_scc1 L_at_end")
    k.vst = 14
    stamp(k, 0); stamp_rt(k, 1)
    k.e("s_load_dwordx2 s[%d:%d], s[0:1], %d" % (sWS, sWS + 1, ARG_WS))
    k.e("s_load_dwordx2 s[%d:%d], s[0:1], 40" % (sWO, sWO + 1))
    k.e("s_load_dwordx2 s[%d:%d], s[0:1], 72" % (sW2, sW2 + 1))
    k.e("s_and_b32 s%d, s2, 7" % sA)
    k.e("s_bfe_u32 s%d, s2, 0x20003" % sB)
    k.e("s_lshl2_add_u32 s%d, s%d, s%d" % (sHead, sA, sB))
    k.e("s_lshr_b32 s%d, s2, 5" % sPi)
    k.e("v_lshrrev_b32 v%d, 6, v0" % vT0)
    k.e("v_and_b32 v%d, 63, v0" % vT1)
    k.e("v_readfirstlane_b32 s%d, v%d" % (sWave, vT0))
    k.e("v_lshlrev_b32 v%d, 4, v%d" % (vL16, vT1))
    k.e("s_nop 1")
    k.e("s_lshr_b32 s%d, s%d, 2" % (sG, sWave))
    k.e("s_and_b32 s%d, s%d, 3" % (sWq, sWave))
    k.e("s_lshl_b32 s%d, s%d, 12" % (sA, sWave))
    k.e("s_mov_b32 s%d, s%d" % (sM0K, sA))
    k.e("s_add_u32 s%d, s%d, 32768" % (sM0K + 1, sA))
    k.e("s_add_u32 s%d, s%d, 65536" % (sM0V, sA))
    k.e("s_add_u32 s%d, s%d, 98304" % (sM0V + 1, sA))
    k.e("v_add_u32 v%d, s%d, v%d" % (vD, sA, vL16))
    k.e("s_mov_b32 s%d, 0x%08x" % (sT, f32bits(THRESH)))
    k.e("v_mov_b32 v%d, 0x%08x" % (vNeg, f32bits(-1e30)))
    k.e("v_and_b32 v%d, 0x33, v%d" % (vT0, vT1))
    k.e("v_bfe_u32 v%d, v%d, 2, 1" % (vT2, vT1))
    k.e("v_lshl_or_b32 v%d, v%d, 3, v%d" % (vT0, vT2, vT0))
    k.e("v_bfe_u32 v%d, v%d, 3, 1" % (vT2, vT1))
    k.e("v_lshl_or_b32 v%d, v%d, 2, v%d" % (vT0, vT2, vT0))
    k.e("s_lshl_b32 s%d, s%d, 14" % (sA, sG))
    k.e("v_lshl_add_u32 v%d, v%d, 4, s%d" % (vKA, vT0, sA))
    k.e("s_add_u32 s%d, s%d, 65536" % (sB, sA))
    k.e("v_add_u32 v%d, s%d, v%d" % (vVA, sB, vL16))
    k.e("v_and_b32 v%d, 31, v%d" % (vT0, vT1))
    k.e("v_lshrrev_b32 v%d, 5, v%d" % (vT2, vT1))
    k.e("v_lshlrev_b32 v%d, 3, v%d" % (vT2, vT2))
    k.e("v_sub_u32 v%d, v%d, v%d" % (vT0, vT0, vT2))
    k.e("s_lshl_b32 s%d, s%d, 5" % (sA, sWq))
    k.e("s_lshl_b32 s%d, s%d, 6" % (sB, sG))
    k.e("s_sub_u32 s%d, s%d, s%d" % (sA, sA, sB))
    k.e("v_add_u32 v%d, s%d, v%d" % (vThr, sA, vT0))
    k.e("s_waitcnt lgkmcnt(0)")
    k.e("s_lshl_b32 s%d, s%d, 19" % (sA, sHead))
    k.e("s_add_u32 s%d, s%d, %d" % (sB, sA, WS_K))
    srd(k, sK, sWS, "s%d" % sB, 512 * 1024)
    k.e("s_add_u32 s%d, s%d, %d" % (sB, sA, WS_VT))
    srd(k, sV, sWS, "s%d" % sB, 512 * 1024)
    k.e("s_add_u32 s%d, s%d, %d" % (sB, sA, WS_Q))
    srd(k, sQ, sWS, "s%d" % sB, 512 * 1024)
    srd(k, sO, sWS, WS_AH, 2048 * 7680 * 2)
    k.e("s_cmp_lt_u32 s2, 128")
    k.e("s_cselect_b32 s%d, s%d, s%d" % (sWO, sWO, sW2))
    k.e("s_cselect_b32 s%d, s%d, s%d" % (sWO + 1, sWO + 1, sW2 + 1))
    k.e("s_cselect_b32 s%d, 8, 7" % sA)
    k.e("s_lshl_b32 s%d, s%d, 20" % (sA, sA))
    srd(k, sPf, sWO, 0, "s%d" % sA)
    k.e("s_and_b32 s%d, s2, 127" % sA)
    k.e("s_lshl3_add_u32 s%d, s%d, s%d" % (sA, sA, sWave))
    k.e("s_lshl_b32 s%d, s%d, 9" % (sA, sA))
    k.e("v_lshrrev_b32 v%d, 7, v%d" % (vPf, vL16))
    k.e("v_lshl_add_u32 v%d, v%d, 6, s%d" % (vPf, vPf, sA))
    k.e("s_mov_b32 s%d, 0" % sPfOff)
    k.e("s_mov_b32 s%d, 0" % sPhase)
    k.e("s_sub_u32 s%d, 15, s%d" % (sJL, sPi))
    k.label("L_at_qblock")
    k.e("s_mov_b32 s%d, 0" % sKoff)
    k.e("s_mov_b32 s%d, 0" % sVoff)
    k.e("s_mov_b32 s%d, 0" % sJ)
    for f in dma_k(k, 0) + dma_v(k, 0) + dma_k(k, 1):
        f()
    k.e("s_lshl2_add_u32 s%d, s%d, s%d" % (sA, sJL, sWq))
    k.e("s_lshl_b32 s%d, s%d, 13" % (sA, sA))
    k.e("s_add_u32 s%d, s%d, 4096" % (sB, sA))
    for C in range(8):
        k.e("buffer_load_dwordx4 %s, v%d, %s, s%d offen offset:%d" % (vr(vQ + 4 * C, 4), vL16, sr(sQ, 4), sA if C < 4 else sB, (C & 3) * 1024))
    k.e("buffer_load_dword v%d, v%d, %s, s%d offen" % (vDum, vL16 if True else vPf, sr(sQ if True else sPf, 4), sKoff if True else sPfOff))
    k.e("s_add_u32 s%d, s%d, 524288" % (sPfOff, sPfOff))
    for r in range(64):
        k.e("v_mov_b32 v%d, 0" % (vO + r))
    k.e("v_mov_b32 v%d, 0" % vL0)
    k.e("v_mov_b32 v%d, 0" % vL1)
    k.e("s_waitcnt vmcnt(1)")
    k.e("s_barrier")
    for f in kread(k, 0, 0):
        f()
    for f in qk(k, 0, zero_c=True):
        f()
    for f in kread(k, 0, 1):
        f()
    k.e("s_nop 7")
    k.e("s_cmp_lg_u32 s%d, 0" % sJL)
    k.e("s_cbranch_scc1 L_at_nomask0")
    mask_code(k, 0, 0)
    k.label("L_at_nomask0")
    for f in maxl(k, 0):
        f()
    k.e("v_mov_b32 v%d, v%d" % (vT0, vMax))
    k.e("s_nop 1")
    k.e("v_permlane32_swap_b32 v%d, v%d" % (vT0, vMax))
    k.e("v_max_f32 v%d, v%d, v%d" % (vMax, vMax, vT0))
    for r in range(16):
        k.e("v_sub_f32 v%d, v%d, v%d" % (vS[0] + r, vS[0] + r, vMax))
    for r in range(16):
        k.e("v_sub_f32 v%d, 0, v%d" % (vNm + r, vMax))
    k.lds_drain()
    k.e("s_barrier")
    if DIAG:
        k.e("s_cmp_lg_u32 s%d, 0" % sPhase)
        k.e("s_cbranch_scc1 L_at_loop")
        stamp(k, 3)
    k.label("L_at_loop")
    k.e("s_cmp_eq_u32 s%d, s%d" % (sJ, sJL))
    k.e("s_cbranch_scc1 L_at_last0")
    interval(k, 0, False, slow_blocks)
    k.e("s_add_u32 s%d, s%d, 1" % (sJ, sJ))
    k.e("s_cmp_eq_u32 s%d, s%d" % (sJ, sJL))
    k.e("s_cbranch_scc1 L_at_last1")
    interval(k, 1, False, slow_blocks)
    k.e("s_add_u32 s%d, s%d, 1" % (sJ, sJ))
    k.e("s_branch L_at_loop")
    k.label("L_at_last0")
    assert k.ldsq == []
    interval(k, 0, True, slow_blocks)
    k.e("s_branch L_at_fin")
    k.label("L_at_last1")
    k.ldsq = []
    interval(k, 1, True, slow_blocks)
    k.label("L_at_fin")
    k.ldsq = []
    stamp(k, 5)
    k.e("v_add_f32 v%d, v%d, v%d" % (vL0, vL0, vL1))
    k.e("v_mov_b32 v%d, v%d" % (vT0, vL0))
    k.e("s_nop 1")
    k.e("v_permlane32_swap_b32 v%d, v%d" % (vT0, vL0))
    k.e("v_add_f32 v%d, v%d, v%d" % (vL1, vL0, vT0))
    k.e("v_sub_f32 v%d, 0, v%d" % (vL0, vNm))
    k.e("s_waitcnt lgkmcnt(0) vmcnt(0)")
    k.e("s_barrier")
    k.e("s_lshl_b32 s%d, s%d, 13" % (sA, sWave))
    k.e("v_add_u32 v%d, s%d, v%d" % (vT1, sA, vL16))
    k.e("s_lshl_b32 s%d, s%d, 9" % (sA, sWave))
    k.e("s_add_u32 s%d, s%d, 65536" % (sA, sA))
    k.e("v_lshrrev_b32 v%d, 1, v%d" % (vT2, vL16))
    k.e("v_add_u32 v%d, s%d, v%d" % (vT2, sA, vT2))
    k.e("ds_write_b64 v%d, v[%d:%d]" % (vT2, vL0, vL1))
    k.e("s_cmp_eq_u32 s%d, 0" % sG)
    k.e("s_cbranch_scc1 L_at_send23")
    for i in range(8):
        k.e("ds_write_b128 v%d, %s offset:%d" % (vT1, vr(vO + 4 * i, 4), i * 1024))
    k.e("s_waitcnt lgkmcnt(0)")
    for i in range(32):
        k.e("v_mov_b32 v%d, v%d" % (vO + i, vO + 32 + i))
    k.e("s_branch L_at_sent")
    k.label("L_at_send23")
    for i in range(8):
        k.e("ds_write_b128 v%d, %s offset:%d" % (vT1, vr(vO + 32 + 4 * i, 4), i * 1024))
    k.label("L_at_sent")
    k.e("s_waitcnt lgkmcnt(0)")
    k.e("s_barrier")
    k.e("v_xor_b32 v%d, 0x8000, v%d" % (vT1, vT1))
    k.e("v_xor_b32 v%d, 0x800, v%d" % (vT2, vT2))
    k.e("ds_read_b64 v[%d:%d], v%d" % (vTq, vTq + 1, vT2))
    for i in range(8):
        k.e("ds_read_b128 %s, v%d offset:%d" % (vr(vO + 32 + 4 * i, 4), vT1, i * 1024))
    k.e("s_waitcnt lgkmcnt(8)")
    k.e("v_max_f32 v%d, v%d, v%d" % (vT0, vL0, vTq))
    k.e("v_sub_f32 v%d, v%d, v%d" % (vL0, vL0, vT0))
    k.e("v_sub_f32 v%d, v%d, v%d" % (vTq, vTq, vT0))
    k.e("v_exp_f32 v%d, v%d" % (vL0, vL0))
    k.e("v_exp_f32 v%d, v%d" % (vTq, vTq))
    k.e("s_nop 0")
    k.e("v_mul_f32 v%d, v%d, v%d" % (vL1, vL1, vL0))
    k.e("v_fmac_f32 v%d, v%d, v%d" % (vL1, vTq + 1, vTq))
    k.e("v_rcp_f32 v%d, v%d" % (vL1, vL1))
    k.e("s_nop 0")
    k.e("v_mul_f32 v%d, v%d, v%d" % (vL0, vL0, vL1))
    k.e("v_mul_f32 v%d, v%d, v%d" % (vTq, vTq, vL1))
    k.e("s_waitcnt lgkmcnt(0)")
    for i in range(32):
        k.e("v_mul_f32 v%d, v%d, v%d" % (vO + i, vO + i, vL0))
    for i in range(32):
        k.e("v_fmac_f32 v%d, v%d, v%d" % (vO + i, vO + 32 + i, vTq))
    k.e("s_lshl2_add_u32 s%d, s%d, s%d" % (sA, sJL, sWq))
    k.e("s_mul_i32 s%d, s%d, 480" % (sA, sA))
    k.e("s_lshl3_add_u32 s%d, s%d, s%d" % (sA, sHead, sA))
    k.e("s_lshl2_add_u32 s%d, s%d, s%d" % (sA, sG, sA))
    k.e("s_lshl_b32 s%d, s%d, 10" % (sA, sA))
    for i in range(4):
        src = vO + 8 * i
        tq = vKf + 4 * i
        for c in range(4):
            k.e("v_cvt_pk_bf16_f32 v%d, v%d, v%d" % (tq + c, src + 2 * c, src + 2 * c + 1))
        k.e("s_nop 1")
        k.e("v_permlane32_swap_b32 v%d, v%d" % (tq, tq + 2))
        k.e("v_permlane32_swap_b32 v%d, v%d" % (tq + 1, tq + 3))
        k.e("buffer_store_dwordx4 %s, v%d, %s, s%d offen offset:%d %s" % (vr(tq, 4), vL16, sr(sO, 4), sA, i * 1024, os.environ.get("STFLAGS", "sc1")))
    k.e("s_cmp_lg_u32 s%d, 0" % sPhase)
    k.e("s_cbranch_scc1 L_at_flush")
    stamp(k, 4)
    k.e("s_mov_b32 s%d, 1" % sPhase)
    k.e("s_mov_b32 s%d, s%d" % (sJL, sPi))
    k.e("s_barrier")
    k.e("s_branch L_at_qblock")
    k.label("L_at_flush")
    stamp_flush(k, 2, sWS)
    k.label("L_at_end")
    k.e("s_endpgm")
    for lab, back, sb in slow_blocks:
        emit_slow(k, lab, back, sb)
    return k.text(), NV, 131072
```

```python
from asmlib import *
from gemm import *
MB = 1 << 20
WS_AH = 52 * MB
WS_PART = 84 * MB
ARG_X, ARG_WO, ARG_W2, ARG_B2, ARG_OUT, ARG_WS = 0, 40, 72, 80, 88, 104


def srd(k, d, base, off, nbytes):
    k.e("s_add_u32 s%d, s%d, %s" % (d, base, off))
    k.e("s_addc_u32 s%d, s%d, 0" % (d + 1, base + 1))
    k.e("s_mov_b32 s%d, %s" % (d + 2, nbytes))
    k.e("s_mov_b32 s%d, 0x00020000" % (d + 3))


def gen_out_kernel():
    k = KB()
    g = GemmCfg(TM=2, TN=2, WM=4, WN=2, NS=3, vRB=14, vTmp=20, vF=28)
    j = Job("frag", True, 4, 8, 16, 17, 33, 26, 29, 30, 2, 6, 10, "O")
    j.bswitch = (60, 61, 62, 4096 * 2048)
    k.e("s_cmp_ge_u32 s2, 256")
    k.e("s_cbranch_scc1 L_out_end")
    k.vst = 60
    stamp(k, 0); stamp_rt(k, 1)
    k.e("s_load_dwordx2 s[40:41], s[0:1], %d" % ARG_WO)
    k.e("s_load_dwordx2 s[42:43], s[0:1], %d" % ARG_W2)
    k.e("s_load_dwordx2 s[48:49], s[0:1], %d" % ARG_WS)
    k.e("s_bfe_u32 s50, s2, 0x20001")
    k.e("s_and_b32 s51, s2, 1")
    k.e("s_lshr_b32 s52, s2, 6")
    k.e("s_lshl2_add_u32 s51, s51, s52")
    k.e("s_bfe_u32 s52, s2, 0x30003")
    k.e("s_mov_b32 s%d, %d" % (j.sPitchA, 480 * 1024))
    k.e("s_movk_i32 s%d, 2048" % j.sPitchB)
    k.e("s_movk_i32 s%d, 4096" % j.sAstep)
    k.e("s_mov_b32 s%d, %d" % (j.sBstep, 64 * 2048))
    k.e("s_mul_i32 s%d, s50, %d" % (j.sAoff, 30 * 4096))
    gemm_setup_common(k, g)
    gemm_setup_job(k, g, j)
    k.e("s_waitcnt lgkmcnt(0)")
    k.e("s_mul_i32 s54, s51, %d" % (8 * 480 * 1024))
    k.e("s_sub_u32 s55, %d, s54" % (2048 * 7680 * 2))
    k.e("s_add_u32 s54, s54, %d" % WS_AH)
    srd(k, j.sA, 48, "s54", "s55")
    k.e("s_lshl_b32 s54, s52, 8")
    k.e("s_add_u32 s60, s42, s54")
    k.e("s_addc_u32 s61, s43, 0")
    k.e("s_sub_u32 s62, %d, s54" % (3584 * 2048))
    k.e("s_sub_u32 s55, %d, s54" % (4096 * 2048))
    srd(k, j.sB, 40, "s54", "s55")
    k.e("s_mul_i32 s%d, s50, %d" % (j.sBoff, 30 * 64 * 2048))
    k.e("s_cmp_ge_u32 s%d, %d" % (j.sBoff, 4096 * 2048))
    k.e("s_cselect_b32 s%d, s60, s%d" % (j.sB, j.sB))
    k.e("s_cselect_b32 s%d, s61, s%d" % (j.sB + 1, j.sB + 1))
    k.e("s_cselect_b32 s%d, s62, s%d" % (j.sB + 2, j.sB + 2))
    k.e("s_cselect_b32 s54, %d, 0" % (4096 * 2048))
    k.e("s_sub_u32 s%d, s%d, s54" % (j.sBoff, j.sBoff))
    for s in range(g.NS):
        for f in dma_list(k, g, j, s, "dma%d" % s):
            f()
    acc_zero(k, g)
    stamp(k, 2)
    k.vm_need(["dma0"])
    k.e("s_barrier")
    stamp(k, 3)
    for f in read_list(k, g, j, 0, 0, 0):
        f()
    gemm_loop(k, g, j, 0, 27, "o")
    gemm_tail(k, g, j, 0)
    stamp(k, 4)
    srd(k, g.sO, 48, WS_PART, 32 * MB)
    k.e("s_lshl_b32 s54, s50, 6")
    k.e("s_lshl3_add_u32 s54, s51, s54")
    k.e("s_lshl1_add_u32 s54, s%d, s54" % g.sWm)
    k.e("s_lshl_b32 s54, s54, 5")
    k.e("s_lshl2_add_u32 s54, s52, s54")
    k.e("s_lshl1_add_u32 s54, s%d, s54" % g.sWn)
    k.e("s_lshl_b32 s54, s54, 12")
    for tm in range(g.TM):
        for tn in range(g.TN):
            k.e("s_add_u32 s55, s54, %d" % ((tm * 32 + tn) * 4096))
            for gq in range(4):
                k.e("buffer_store_dwordx4 %s, v%d, %s, s55 offen offset:%d %s" % (vr(g.acc(tm, tn) + 4 * gq, 4), g.vLane16, sr(g.sO, 4), gq * 1024, STFLAGS))
    stamp_flush(k, 3, 48)
    k.label("L_out_end")
    k.e("s_endpgm")
    return k.text(), g.nvgpr, g.lds_bytes


def gen_red_kernel():
    k = KB()
    k.e("s_cmp_ge_u32 s2, 1024")
    k.e("s_cbranch_scc1 L_red_end")
    k.e("s_load_dwordx2 s[40:41], s[0:1], %d" % ARG_X)
    k.e("s_load_dwordx4 s[44:47], s[0:1], %d" % ARG_B2)
    k.e("s_load_dwordx2 s[48:49], s[0:1], %d" % ARG_WS)
    k.e("v_lshrrev_b32 v1, 6, v0")
    k.e("v_and_b32 v2, 63, v0")
    k.e("v_readfirstlane_b32 s50, v1")
    k.e("v_and_b32 v3, 7, v2")
    k.e("v_lshrrev_b32 v4, 3, v2")
    k.e("s_lshl2_add_u32 s50, s2, s50")
    k.e("s_and_b32 s51, s50, 15")
    k.e("s_bfe_u32 s52, s50, 0x20004")
    k.e("s_lshr_b32 s53, s50, 6")
    k.e("v_lshlrev_b32 v5, 10, v4")
    k.e("v_lshl_add_u32 v5, v3, 4, v5")
    k.e("s_lshl_b32 s54, s53, 5")
    k.e("s_lshl1_add_u32 s54, s51, s54")
    k.e("s_lshl_b32 s54, s54, 12")
    k.e("s_lshl_b32 s55, s52, 7")
    k.e("s_add_u32 s54, s54, s55")
    k.e("v_lshlrev_b32 v6, 11, v3")
    k.e("v_lshl_add_u32 v6, v4, 4, v6")
    k.e("s_lshl_b32 s56, s53, 5")
    k.e("s_lshl3_add_u32 s56, s52, s56")
    k.e("s_lshl_b32 s56, s56, 11")
    k.e("s_lshl_b32 s57, s51, 7")
    k.e("s_add_u32 s56, s56, s57")
    k.e("v_lshlrev_b32 v7, 4, v4")
    k.e("s_waitcnt lgkmcnt(0)")
    srd(k, 4, 48, WS_PART, 32 * MB)
    srd(k, 8, 40, 0, 4 * MB)
    srd(k, 12, 44, 0, 2048)
    srd(k, 16, 46, 0, 4 * MB)
    for s in range(4):
        for h in range(2):
            k.e("buffer_load_dwordx4 %s, v5, s[4:7], s54 offen offset:%d" % (vr(16 + (s * 2 + h) * 4, 4), h * 512))
        if s < 3:
            k.e("s_add_u32 s54, s54, %d" % (8 * MB))
    k.e("buffer_load_dwordx4 v[8:11], v6, s[8:11], s56 offen")
    k.e("buffer_load_dwordx4 v[12:15], v7, s[12:15], s57 offen")
    k.e("s_waitcnt vmcnt(2)")
    for i in range(8):
        k.e("v_add_f32 v%d, v%d, v%d" % (16 + i, 16 + i, 24 + i))
        k.e("v_add_f32 v%d, v%d, v%d" % (32 + i, 32 + i, 40 + i))
    for i in range(8):
        k.e("v_add_f32 v%d, v%d, v%d" % (16 + i, 16 + i, 32 + i))
    k.e("s_waitcnt vmcnt(0)")
    for i in range(4):
        k.e("v_lshlrev_b32 v24, 16, v%d" % (8 + i))
        k.e("v_and_b32 v25, 0xffff0000, v%d" % (8 + i))
        k.e("v_lshlrev_b32 v26, 16, v%d" % (12 + i))
        k.e("v_and_b32 v27, 0xffff0000, v%d" % (12 + i))
        k.e("v_add_f32 v24, v24, v26")
        k.e("v_add_f32 v25, v25, v27")
        k.e("v_add_f32 v%d, v%d, v24" % (16 + 2 * i, 16 + 2 * i))
        k.e("v_add_f32 v%d, v%d, v25" % (17 + 2 * i, 17 + 2 * i))
    for i in range(4):
        k.e("v_cvt_pk_bf16_f32 v%d, v%d, v%d" % (8 + i, 16 + 2 * i, 17 + 2 * i))
    k.e("buffer_store_dwordx4 v[8:11], v6, s[16:19], s56 offen")
    k.label("L_red_end")
    k.e("s_endpgm")
    return k.text(), 48, 0


def fin_kernels():
    return [("out_kernel", 256, 512, gen_out_kernel), ("red_kernel", 1024, 256, gen_red_kernel)]
```

```python
from asmlib import *

STFLAGS = os.environ.get("STFLAGS", "sc1")


def log2(x):
    n = x.bit_length() - 1
    assert 1 << n == x
    return n


class Job:
    def __init__(self, amode, swap, sA, sB, sAoff, sBoff, sAstep, sBstep, sPitchA, sPitchB, vDA, vDB, vRA, name="j"):
        self.amode, self.swap = amode, swap
        self.sA, self.sB, self.sAoff, self.sBoff = sA, sB, sAoff, sBoff
        self.sAstep, self.sBstep, self.sPitchA, self.sPitchB = sAstep, sBstep, sPitchA, sPitchB
        self.vDA, self.vDB, self.vRA = vDA, vDB, vRA
        self.bswitch = None
        self.name = name
        self.sAoff2 = None
        self.sBoff2 = None


class GemmCfg:
    def __init__(self, TM=4, TN=2, WM=2, WN=4, NS=2, vRB=14, vTmp=16, vF=24):
        self.TM, self.TN, self.WM, self.WN, self.NS = TM, TN, WM, WN, NS
        self.BM = 32 * TM * WM
        self.BN = 32 * TN * WN
        self.NW = WM * WN
        self.A_stage = self.BM * 128
        self.B_stage = self.BN * 128
        self.NA = self.A_stage // 1024 // self.NW
        self.NB = self.B_stage // 1024 // self.NW
        self.ND = self.NA + self.NB
        self.lds_bytes = NS * (self.A_stage + self.B_stage)
        assert self.NA <= 4 and self.NB <= 4
        self.sep_stage = (NS > 2)
        self.nst = NS if self.sep_stage else 1
        self.vLane16 = 1
        self.vRB = vRB
        self.vTmp = vTmp
        self.fragsz = 4 * (TM + TN)
        self.vF = vF
        self.vAcc = (self.vF + 2 * self.fragsz + 15) // 16 * 16
        self.nvgpr = self.vAcc + 16 * TM * TN
        assert self.nvgpr <= 256, self.nvgpr
        self.sO = 12
        self.sCnt = 18
        self.sWave = 19
        self.sM0A = 20
        self.sM0B = 23
        self.sWm = 27
        self.sWn = 28
        self.sT0 = 31
        self.sT1 = 32
        self.sVW = self.sWave

    def fA(self, s, tm):
        return self.vF + s * self.fragsz + 4 * tm

    def fB(self, s, tn):
        return self.vF + s * self.fragsz + 4 * self.TM + 4 * tn

    def acc(self, tm, tn):
        return self.vAcc + 16 * (tm * self.TN + tn)

    def ldsA(self, s):
        return s * self.A_stage

    def ldsB(self, s):
        return self.NS * self.A_stage + s * self.B_stage


def gemm_setup_common(k, g):
    t0, t1, t2, t3 = g.vTmp, g.vTmp + 1, g.vTmp + 2, g.vTmp + 3
    lane = g.vTmp + 4
    k.c("---- gemm setup (common)")
    k.e("v_lshrrev_b32 v%d, 6, v0" % t0)
    k.e("v_and_b32 v%d, 63, v0" % lane)
    k.e("v_readfirstlane_b32 s%d, v%d" % (g.sWave, t0))
    k.e("v_lshlrev_b32 v%d, 4, v%d" % (g.vLane16, lane))
    k.e("s_nop 1")
    k.e("s_lshr_b32 s%d, s%d, %d" % (g.sWm, g.sWave, log2(g.WN)))
    k.e("s_and_b32 s%d, s%d, %d" % (g.sWn, g.sWave, g.WN - 1))
    if g.sVW != g.sWave:
        k.e("s_and_b32 s%d, s%d, 3" % (g.sVW, g.sWave))
        k.e("s_lshl_b32 s%d, s%d, 1" % (g.sVW, g.sVW))
    for s in range(g.NS):
        k.e("s_mul_i32 s%d, s%d, %d" % (g.sT0, g.sVW, g.NA * 1024))
        k.e("s_add_u32 s%d, s%d, %d" % (g.sM0A + s, g.sT0, g.ldsA(s)))
        k.e("s_mul_i32 s%d, s%d, %d" % (g.sT0, g.sVW, g.NB * 1024))
        k.e("s_add_u32 s%d, s%d, %d" % (g.sM0B + s, g.sT0, g.ldsB(s)))
    rowb = g.BN * 2
    k.e("v_bfe_u32 v%d, v%d, 2, 2" % (t0, lane))
    k.e("v_lshrrev_b32 v%d, 5, v%d" % (t1, lane))
    k.e("v_lshl_add_u32 v%d, v%d, 3, v%d" % (t1, t1, t0))
    k.e("v_lshlrev_b32 v%d, %d, v%d" % (t1, log2(rowb), t1))
    k.e("v_and_b32 v%d, 1, v%d" % (t2, lane))
    k.e("v_lshl_add_u32 v%d, v%d, 3, v%d" % (t1, t2, t1))
    k.e("v_bfe_u32 v%d, v%d, 4, 1" % (t2, lane))
    k.e("v_bfe_u32 v%d, v%d, 1, 1" % (t3, lane))
    k.e("v_lshl_add_u32 v%d, v%d, 1, v%d" % (t2, t2, t3))
    k.e("v_lshlrev_b32 v%d, 2, v%d" % (t0, t0))
    for tn in range(g.TN):
        k.e("s_mul_i32 s%d, s%d, %d" % (g.sT0, g.sWn, g.TN * 4))
        k.e("s_add_u32 s%d, s%d, %d" % (g.sT0, g.sT0, tn * 4))
        k.e("v_add_u32 v%d, s%d, v%d" % (t3, g.sT0, t2))
        k.e("v_xor_b32 v%d, v%d, v%d" % (t3, t3, t0))
        k.e("v_lshl_add_u32 v%d, v%d, 4, v%d" % (t3, t3, t1))
        for s in range(g.nst):
            k.e("v_add_u32 v%d, %d, v%d" % (g.vRB + s * g.TN + tn, g.ldsB(s), t3))


def gemm_setup_job(k, g, j):
    t0, t1, t2, t3 = g.vTmp, g.vTmp + 1, g.vTmp + 2, g.vTmp + 3
    lane = g.vTmp + 4
    k.c("---- gemm setup job %s" % j.name)
    if j.amode == "frag":
        k.e("s_mul_i32 s%d, s%d, %d" % (g.sT0, g.sVW, g.NA))
        k.e("s_lshr_b32 s%d, s%d, 2" % (g.sT1, g.sT0))
        k.e("s_and_b32 s%d, s%d, 3" % (g.sT0, g.sT0))
        k.e("s_mul_i32 s%d, s%d, s%d" % (g.sT1, g.sT1, j.sPitchA))
        k.e("s_lshl_b32 s%d, s%d, 10" % (g.sT0, g.sT0))
        k.e("s_add_u32 s%d, s%d, s%d" % (g.sT0, g.sT0, g.sT1))
        k.e("v_add_u32 v%d, s%d, v%d" % (j.vDA, g.sT0, g.vLane16))
    else:
        assert g.NA == 4
        k.e("s_mul_i32 s%d, s%d, %d" % (g.sT0, g.sVW, 8 * g.NA))
        k.e("v_lshrrev_b32 v%d, 3, v%d" % (t0, lane))
        k.e("v_add_u32 v%d, s%d, v%d" % (t0, g.sT0, t0))
        k.e("v_and_b32 v%d, 7, v%d" % (t1, lane))
        for i in range(g.NA):
            k.e("v_add_u32 v%d, %d, v%d" % (t2, 8 * i, t0))
            k.e("v_bfe_u32 v%d, v%d, 1, 3" % (t3, t2))
            k.e("v_xor_b32 v%d, v%d, v%d" % (t3, t3, t1))
            k.e("v_mul_lo_u32 v%d, v%d, s%d" % (t2, t2, j.sPitchA))
            k.e("v_lshl_add_u32 v%d, v%d, 4, v%d" % (t2, t3, t2))
            k.e("v_subrev_u32 v%d, %d, v%d" % (j.vDA + i, 1024 * i, t2))
    rpi = 1024 // (g.BN * 2)
    cpr = g.BN // 8
    k.e("s_mul_i32 s%d, s%d, %d" % (g.sT0, g.sVW, g.NB * rpi))
    if j.sAoff2 is not None:
        assert g.NA == 4
        if j.amode == "frag":
            k.e("s_add_u32 s%d, s%d, s%d" % (j.sAoff2, j.sAoff, j.sPitchA))
        else:
            k.e("s_lshl_b32 s%d, s%d, 5" % (j.sAoff2, j.sPitchA))
            k.e("s_add_u32 s%d, s%d, s%d" % (j.sAoff2, j.sAoff2, j.sAoff))
        k.e("s_mul_i32 s%d, s%d, %d" % (j.sBoff2, j.sPitchB, g.NB * rpi))
        k.e("s_add_u32 s%d, s%d, s%d" % (j.sBoff2, j.sBoff2, j.sBoff))
    k.e("v_lshrrev_b32 v%d, %d, v%d" % (t0, log2(cpr), lane))
    k.e("v_add_u32 v%d, s%d, v%d" % (t0, g.sT0, t0))
    k.e("v_and_b32 v%d, %d, v%d" % (t1, cpr - 1, lane))
    for i in range(g.NB):
        k.e("v_add_u32 v%d, %d, v%d" % (t2, rpi * i, t0))
        k.e("v_and_b32 v%d, 3, v%d" % (t3, t2))
        k.e("v_lshlrev_b32 v%d, 2, v%d" % (t3, t3))
        k.e("v_xor_b32 v%d, v%d, v%d" % (t3, t3, t1))
        k.e("v_mul_lo_u32 v%d, v%d, s%d" % (t2, t2, j.sPitchB))
        k.e("v_lshl_add_u32 v%d, v%d, 4, v%d" % (t2, t3, t2))
        k.e("v_subrev_u32 v%d, %d, v%d" % (j.vDB + i, 1024 * i, t2))
    if j.amode == "frag":
        k.e("s_mul_i32 s%d, s%d, %d" % (g.sT0, g.sWm, g.TM * 4096))
        for s in range(g.nst):
            k.e("s_add_u32 s%d, s%d, %d" % (g.sT1, g.sT0, g.ldsA(s)))
            k.e("v_add_u32 v%d, s%d, v%d" % (j.vRA + s, g.sT1, g.vLane16))
    else:
        k.e("s_mul_i32 s%d, s%d, %d" % (g.sT0, g.sWm, g.TM * 32 * 128))
        k.e("v_and_b32 v%d, 31, v%d" % (t0, lane))
        k.e("v_bfe_u32 v%d, v%d, 1, 3" % (t1, lane))
        k.e("v_lshrrev_b32 v%d, 5, v%d" % (t2, lane))
        k.e("v_xor_b32 v%d, v%d, v%d" % (t1, t1, t2))
        k.e("v_lshlrev_b32 v%d, 7, v%d" % (t0, t0))
        k.e("v_add_u32 v%d, s%d, v%d" % (t0, g.sT0, t0))
        for s in range(g.nst):
            for kk in range(4):
                k.e("v_xor_b32 v%d, %d, v%d" % (t2, 2 * kk, t1))
                k.e("v_lshl_add_u32 v%d, v%d, 4, v%d" % (t2, t2, t0))
                k.e("v_add_u32 v%d, %d, v%d" % (j.vRA + s * 4 + kk, g.ldsA(s), t2))


def dma_list(k, g, j, s, tag="dma"):
    out = []
    halves = [0, 1] if j.sAoff2 is not None else [0]

    def a_i(i, h):
        def f():
            off = j.sAoff2 if h else j.sAoff
            if i == 0:
                if h:
                    k.e("s_add_u32 m0, s%d, %d" % (g.sM0A + s, g.NA * 1024))
                else:
                    k.e("s_mov_b32 m0, s%d" % (g.sM0A + s))
                k.e("s_nop 0")
            va = j.vDA if j.amode == "frag" else j.vDA + i
            k.vm_op("buffer_load_dwordx4 v%d, %s, s%d offen offset:%d lds" % (va, sr(j.sA, 4), off, 1024 * i), tag)
            if i == g.NA - 1:
                k.e("s_add_u32 s%d, s%d, s%d" % (off, off, j.sAstep))
        return f

    def b_i(i, h):
        def f():
            off = j.sBoff2 if h else j.sBoff
            if i == 0:
                if h:
                    k.e("s_add_u32 m0, s%d, %d" % (g.sM0B + s, g.NB * 1024))
                else:
                    k.e("s_mov_b32 m0, s%d" % (g.sM0B + s))
                k.e("s_nop 0")
            k.vm_op("buffer_load_dwordx4 v%d, %s, s%d offen offset:%d lds" % (j.vDB + i, sr(j.sB, 4), off, 1024 * i), tag)
            if i == g.NB - 1:
                k.e("s_add_u32 s%d, s%d, s%d" % (off, off, j.sBstep))
                if j.bswitch:
                    lo, hi, nrec, sw = j.bswitch
                    k.e("s_cmp_eq_u32 s%d, %d" % (j.sBoff, sw))
                    k.e("s_cselect_b32 s%d, s%d, s%d" % (j.sB, lo, j.sB))
                    k.e("s_cselect_b32 s%d, s%d, s%d" % (j.sB + 1, hi, j.sB + 1))
                    k.e("s_cselect_b32 s%d, s%d, s%d" % (j.sB + 2, nrec, j.sB + 2))
                    k.e("s_cselect_b32 s%d, 0, s%d" % (j.sBoff, j.sBoff))
        return f

    for h in halves:
        for i in range(g.NB):
            out.append(b_i(i, h))
    for h in halves:
        for i in range(g.NA):
            out.append(a_i(i, h))
    return out


def read_list(k, g, j, s, kk, fset):
    rowb = g.BN * 2

    def ra(tm):
        def f():
            if j.amode == "frag":
                if g.sep_stage:
                    addr, off = j.vRA + s, tm * 4096 + kk * 1024
                else:
                    addr, off = j.vRA, g.ldsA(s) + tm * 4096 + kk * 1024
            else:
                if g.sep_stage:
                    addr, off = j.vRA + s * 4 + kk, tm * 4096
                else:
                    addr, off = j.vRA + kk, g.ldsA(s) + tm * 4096
            assert off < 65536
            d = g.fA(fset, tm)
            k.lds_op("ds_read_b128 %s, v%d offset:%d" % (vr(d, 4), addr, off), rng(d, 4))
        return f

    def rb(tn, sub):
        def f():
            if g.sep_stage:
                addr, off = g.vRB + s * g.TN + tn, (16 * kk + 4 * sub) * rowb
            else:
                addr, off = g.vRB + tn, s * g.B_stage + (16 * kk + 4 * sub) * rowb
            assert off < 65536
            d = g.fB(fset, tn) + 2 * sub
            k.lds_op("ds_read_b64_tr_b16 %s, v%d offset:%d" % (vr(d, 2), addr, off), rng(d, 2))
        return f

    out = [rb(0, 0), rb(0, 1), ra(0)]
    for tn in range(1, g.TN):
        out += [rb(tn, 0), rb(tn, 1)]
    for tm in range(1, g.TM):
        out.append(ra(tm))
    return out


def mfma_list(k, g, j, fset, cinit=None, pre=None):
    out = []
    for tm in range(g.TM):
        for tn in range(g.TN):
            def f(tm=tm, tn=tn):
                if pre:
                    pre(tm, tn)
                a, b, c = g.fA(fset, tm), g.fB(fset, tn), g.acc(tm, tn)
                k.lds_need(list(rng(a, 4)) + list(rng(b, 4)))
                if j.swap:
                    a, b = b, a
                cs = cinit(tm, tn) if cinit else vr(c, 16)
                k.e("v_mfma_f32_32x32x16_bf16 %s, %s, %s, %s" % (vr(c, 16), vr(a, 4), vr(b, 4), cs))
            out.append(f)
    return out


def gemm_body(k, g, u, jc, jn, jd, need_tags, dma_tag, extra=None, cinit=None, pre=None, post_barrier=None, vmwait=None, carry=None, ncarry=0):
    nm = g.TM * g.TN
    extra = dict(extra or {})
    carry_out = []
    if carry:
        extra[0] = list(carry) + list(extra.get(0, []))
    for kk in range(4):
        cur = kk & 1
        nxt = cur ^ 1
        fillers = []
        if kk == 3:
            if jn is not None:
                if vmwait is None:
                    n = k.vm_count(need_tags)
                else:
                    n = vmwait
                k.lds_drain("vmcnt(%d)" % n if n is not None else "")
                k.e("s_barrier")
                if post_barrier:
                    post_barrier()
                fillers += read_list(k, g, jn, (u + 1) % g.NS, 0, nxt)
            if jd is not None:
                dl = dma_list(k, g, jd, u, dma_tag)
                if ncarry:
                    carry_out = dl[len(dl) - ncarry:]
                    dl = dl[:len(dl) - ncarry]
                fillers += dl
        else:
            fillers += read_list(k, g, jc, u, kk + 1, nxt)
        ex = list(extra.get(kk, []))
        if kk == 3 or not ex:
            fillers += ex
            per = [max(2, -(-len(fillers) // nm))] * nm
        else:
            per = []
            nf, ne = len(fillers), len(ex)
            merged = []
            fi = ei = 0
            for gph in range(nm):
                c = 0
                for _ in range(2):
                    if fi < nf:
                        merged.append(fillers[fi]); fi += 1; c += 1
                tgt = ((gph + 1) * ne) // nm
                while ei < tgt:
                    merged.append(ex[ei]); ei += 1; c += 1
                per.append(c)
            fillers = merged
        interleave(k, mfma_list(k, g, jc, cur, cinit if kk == 0 else None, pre if kk == 0 else None), fillers, per)
    return carry_out


def gemm_loop(k, g, j, first_stage, ntiles_dma, name, extra3=None):
    assert ntiles_dma % g.NS == 0
    nloop = ntiles_dma // g.NS
    if nloop == 0:
        return
    lab = k.newlabel(name + "_loop")
    k.e("s_mov_b32 s%d, %d" % (g.sCnt, nloop))
    q0 = list(k.ldsq)
    k.label(lab)
    for i in range(g.NS):
        nx = len(extra3) if extra3 else 0
        gemm_body(k, g, (first_stage + i) % g.NS, j, j, j, None, "dma", vmwait=(g.NS - 2) * (g.ND + nx) + nx,
                  extra={3: extra3} if extra3 else None)
    assert k.ldsq == q0, (k.ldsq, q0)
    k.e("s_sub_u32 s%d, s%d, 1" % (g.sCnt, g.sCnt))
    k.e("s_cmp_lg_u32 s%d, 0" % g.sCnt)
    k.e("s_cbranch_scc1 %s" % lab)
    k.vmq = []


def gemm_tail(k, g, j, first_stage, nx=0):
    for i in range(g.NS):
        last = i == g.NS - 1
        gemm_body(k, g, (first_stage + i) % g.NS, j, None if last else j, None, None, None, vmwait=max(0, (g.NS - 2 - i)) * (g.ND + nx) + nx)
    k.e("s_nop 15")


def acc_zero(k, g):
    for r in range(g.vAcc, g.nvgpr):
        k.e("v_mov_b32 v%d, 0" % r)


def pack_only(k, src, tq):
    for i in range(4):
        k.e("v_cvt_pk_bf16_f32 v%d, v%d, v%d" % (tq + i, src + 2 * i, src + 2 * i + 1))
    k.e("s_nop 1")
    k.e("v_permlane32_swap_b32 v%d, v%d" % (tq, tq + 2))
    k.e("v_permlane32_swap_b32 v%d, v%d" % (tq + 1, tq + 3))


def pack_store(k, g, src, tq, soff, imm, flags=None):
    if flags is None:
        flags = (" " + STFLAGS) if STFLAGS else ""
    for i in range(4):
        k.e("v_cvt_pk_bf16_f32 v%d, v%d, v%d" % (tq + i, src + 2 * i, src + 2 * i + 1))
    k.e("s_nop 1")
    k.e("v_permlane32_swap_b32 v%d, v%d" % (tq, tq + 2))
    k.e("v_permlane32_swap_b32 v%d, v%d" % (tq + 1, tq + 3))
    k.vm_op("buffer_store_dwordx4 %s, v%d, %s, s%d offen offset:%d%s" % (vr(tq, 4), g.vLane16, sr(g.sO, 4), soff, imm, flags), "st")
```

```python
import math, struct
from asmlib import *
from gemm import *

MB = 1 << 20
WS_XN = 0
WS_Q = 4 * MB
WS_K = 20 * MB
WS_VT = 36 * MB
WS_AH = 52 * MB
ARG_X, ARG_CKV, ARG_WQ, ARG_WUK, ARG_WUV, ARG_WO, ARG_BX, ARG_W1, ARG_B1, ARG_W2, ARG_B2, ARG_OUT, ARG_DBG, ARG_WS = [8 * i for i in range(14)]
QSCALE = math.log2(math.e) / math.sqrt(128.0)
GELU_C1 = -2.0 * math.sqrt(2.0 / math.pi) * math.log2(math.e)
GELU_C2 = GELU_C1 * 0.044715
TRFLAGS = os.environ.get("TRFLAGS", " sc1")
FORCE_HELP = int(os.environ.get("FORCE_HELP", "0"))


def f32bits(x):
    return struct.unpack("<I", struct.pack("<f", x))[0]


def srd(k, d, base, off, nbytes):
    k.e("s_add_u32 s%d, s%d, %s" % (d, base, off))
    k.e("s_addc_u32 s%d, s%d, 0" % (d + 1, base + 1))
    k.e("s_mov_b32 s%d, %s" % (d + 2, nbytes))
    k.e("s_mov_b32 s%d, 0x00020000" % (d + 3))


sX, sCKV = 40, 42
sWUK, sWUV = 44, 46
sWS = 48
sWQ, sW1, sB1 = 50, 52, 54
sWO, sW2 = 56, 58
sDBG = 60
sMtA, sNtA, sIsV = 62, 63, 96
sMtB, sNtB, sIsH = 97, 98, 99
sStA = 100
sLnX, sLnO = 36, 80
sPf = 84
sBs = 56
sDb = 88
sRow = 34
sPfOff, sPfStep = 92, 93
sBias = 94
PFD = 3
sTa, sTb = 35, 101
vBias = 208
vPk = 240
vRaw = 248
vLn = 208


def wave_sum(k, v, t):
    out = []
    for ctl in ["quad_perm:[1,0,3,2]", "quad_perm:[2,3,0,1]", "row_half_mirror", "row_mirror"]:
        out.append(lambda: k.e("s_nop 1"))
        out.append(lambda ctl=ctl: k.e("v_add_f32_dpp v%d, v%d, v%d %s row_mask:0xf bank_mask:0xf" % (v, v, v, ctl)))
    for sw in ["v_permlane16_swap_b32", "v_permlane32_swap_b32"]:
        out.append(lambda: k.e("v_mov_b32 v%d, v%d" % (t, v)))
        out.append(lambda: k.e("s_nop 1"))
        out.append(lambda sw=sw: k.e("%s v%d, v%d" % (sw, t, v)))
        out.append(lambda: k.e("v_add_f32 v%d, v%d, v%d" % (v, v, t)))
    return out


def ln_load(k, g):
    t = g.vTmp
    k.e("s_lshl_b32 s%d, s%d, 11" % (sTa, sRow))
    k.e("v_lshlrev_b32 v%d, 1, v%d" % (t, g.vLane16))
    k.vm_op("buffer_load_dwordx4 %s, v%d, %s, s%d offen" % (vr(vRaw, 4), t, sr(sLnX, 4), sTa), "ln")
    k.vm_op("buffer_load_dwordx4 %s, v%d, %s, s%d offen offset:16" % (vr(vRaw + 4, 4), t, sr(sLnX, 4), sTa), "ln")


def ln_steps(k, g, via_lds=False):
    X = vLn
    S, V, T = vLn + 16, vLn + 17, vLn + 18
    D = vLn + 19
    A = vLn + 20
    o = []
    E = lambda s: (lambda: k.e(s))
    o.append(lambda: k.vm_need(["ln"]))
    for i in range(8):
        o.append(E("v_lshlrev_b32 v%d, 16, v%d" % (X + 2 * i, vRaw + i)))
        o.append(E("v_and_b32 v%d, 0xffff0000, v%d" % (X + 2 * i + 1, vRaw + i)))
    o.append(E("v_add_f32 v%d, v%d, v%d" % (S, X, X + 1)))
    o.append(E("v_add_f32 v%d, v%d, v%d" % (T, X + 2, X + 3)))
    for i in range(4, 16, 2):
        o.append(E("v_add_f32 v%d, v%d, v%d" % (S, S, X + i)))
        o.append(E("v_add_f32 v%d, v%d, v%d" % (T, T, X + i + 1)))
    o.append(E("v_add_f32 v%d, v%d, v%d" % (S, S, T)))
    o += wave_sum(k, S, T)
    o.append(E("v_mul_f32 v%d, 0x%08x, v%d" % (S, f32bits(1.0 / 1024), S)))
    o.append(E("v_sub_f32 v%d, v%d, v%d" % (D, X, S)))
    o.append(E("v_mul_f32 v%d, v%d, v%d" % (V, D, D)))
    for i in range(1, 16):
        o.append(E("v_sub_f32 v%d, v%d, v%d" % (D, X + i, S)))
        o.append(E("v_fmac_f32 v%d, v%d, v%d" % (V, D, D)))
    o += wave_sum(k, V, T)
    o.append(E("v_mul_f32 v%d, 0x%08x, v%d" % (V, f32bits(1.0 / 1024), V)))

    def rbf(r):
        return [E("v_cvt_pk_bf16_f32 v%d, v%d, v%d" % (r, r, r)), E("v_lshlrev_b32 v%d, 16, v%d" % (r, r))]
    o += rbf(S) + rbf(V)
    o.append(E("v_add_f32 v%d, 0x%08x, v%d" % (V, f32bits(1e-5), V)))
    o += rbf(V)
    o.append(E("v_sqrt_f32 v%d, v%d" % (V, V)))
    o.append(E("s_nop 0"))
    o += rbf(V)
    o.append(E("v_rcp_f32 v%d, v%d" % (V, V)))
    for i in range(16):
        o.append(E("v_sub_f32 v%d, v%d, v%d" % (X + i, X + i, S)))
    for i in range(8):
        o.append(E("v_cvt_pk_bf16_f32 v%d, v%d, v%d" % (vRaw + i, X + 2 * i, X + 2 * i + 1)))
    for i in range(8):
        o.append(E("v_lshlrev_b32 v%d, 16, v%d" % (X + 2 * i, vRaw + i)))
        o.append(E("v_and_b32 v%d, 0xffff0000, v%d" % (X + 2 * i + 1, vRaw + i)))
    for i in range(16):
        o.append(E("v_mul_f32 v%d, v%d, v%d" % (X + i, X + i, V)))
    for i in range(8):
        o.append(E("v_cvt_pk_bf16_f32 v%d, v%d, v%d" % (vRaw + i, X + 2 * i, X + 2 * i + 1)))
    if via_lds:
        def wr():
            k.e("s_lshl_b32 s%d, s%d, 4" % (sTa, g.sWave))
            k.e("s_add_u32 s%d, s%d, %d" % (sTa, sTa, g.lds_bytes))
            k.e("v_lshl_add_u32 v%d, v%d, 4, s%d" % (A, g.vLane16, sTa))
            k.lds_op("ds_write_b128 v%d, %s" % (A, vr(vRaw, 4)))
            k.lds_op("ds_write_b128 v%d, %s offset:128" % (A, vr(vRaw + 4, 4)))
        o.append(wr)
        return o
    o.append(E("v_lshlrev_b32 v%d, 6, v%d" % (A, g.vLane16)))

    def st():
        k.e("s_lshr_b32 s%d, s%d, 5" % (sTa, sRow))
        k.e("s_lshl_b32 s%d, s%d, 16" % (sTa, sTa))
        k.e("s_and_b32 s%d, s%d, 31" % (sTb, sRow))
        k.e("s_lshl4_add_u32 s%d, s%d, s%d" % (sTa, sTb, sTa))
        k.vm_op("buffer_store_dwordx4 %s, v%d, %s, s%d offen sc1" % (vr(vRaw, 4), A, sr(sLnO, 4), sTa), "lnst")
        k.vm_op("buffer_store_dwordx4 %s, v%d, %s, s%d offen offset:512 sc1" % (vr(vRaw + 4, 4), A, sr(sLnO, 4), sTa), "lnst")
        k.e("s_nop 1")
    o.append(st)
    return o


def ln_store_steps(k, g):
    A, B = vLn + 20, vLn + 21
    o = []

    def rd():
        k.e("s_lshl_b32 s%d, s%d, 11" % (sTa, g.sWave))
        k.e("s_add_u32 s%d, s%d, %d" % (sTa, sTa, g.lds_bytes))
        k.e("v_add_u32 v%d, s%d, v%d" % (A, sTa, g.vLane16))
        k.lds_op("ds_read_b128 %s, v%d" % (vr(vRaw, 4), A), rng(vRaw, 4))
        k.lds_op("ds_read_b128 %s, v%d offset:1024" % (vr(vRaw + 4, 4), A), rng(vRaw + 4, 4))
    o.append(rd)

    def addr():
        k.e("v_lshrrev_b32 v%d, 8, v%d" % (A, g.vLane16))
        k.e("v_lshlrev_b32 v%d, 10, v%d" % (A, A))
        k.e("v_bfe_u32 v%d, v%d, 7, 1" % (B, g.vLane16))
        k.e("v_lshl_add_u32 v%d, v%d, 9, v%d" % (A, B, A))
        k.e("v_and_b32 v%d, 0x70, v%d" % (B, g.vLane16))
        k.e("v_add_u32 v%d, v%d, v%d" % (A, A, B))
        k.e("s_lshr_b32 s%d, s2, 2" % sTa)
        k.e("s_lshl_b32 s%d, s%d, 16" % (sTa, sTa))
        k.e("s_lshl_b32 s%d, s%d, 13" % (sTb, g.sWave))
        k.e("s_add_u32 s%d, s%d, s%d" % (sTa, sTa, sTb))
        k.e("s_and_b32 s%d, s2, 3" % sTb)
        k.e("s_lshl_b32 s%d, s%d, 7" % (sTb, sTb))
        k.e("s_add_u32 s%d, s%d, s%d" % (sTa, sTa, sTb))
        k.e("s_add_u32 s%d, s%d, 4096" % (sTb, sTa))
    o.append(addr)

    def st():
        k.lds_need(rng(vRaw, 8))
        k.vm_op("buffer_store_dwordx4 %s, v%d, %s, s%d offen sc1" % (vr(vRaw, 4), A, sr(sLnO, 4), sTa), "lnst")
        k.vm_op("buffer_store_dwordx4 %s, v%d, %s, s%d offen sc1" % (vr(vRaw + 4, 4), A, sr(sLnO, 4), sTb), "lnst")
        k.e("s_nop 1")
    o.append(st)
    return o


def split_list(lst, n):
    m = len(lst)
    return [lst[(i * m) // n:((i + 1) * m) // n] for i in range(n)]


def gen_proj_kernel():
    k = KB()
    g = GemmCfg(vRB=14, vTmp=16, vF=24)
    g.sVW = 3
    assert g.vAcc == 80 and g.nvgpr == 208
    jK = Job("row", True, 4, 8, 16, 17, 33, 26, 29, 30, 2, 6, 10, "K")
    jV = Job("row", False, 4, 8, 16, 17, 33, 26, 29, 30, 2, 6, 10, "V")
    jB = Job("frag", True, 64, 68, 72, 73, 74, 75, 76, 77, 72, 73, 77, "B")
    for j in (jK, jV):
        j.sAoff2, j.sBoff2 = 18, 22
    jB.sAoff2, jB.sBoff2 = 25, 94
    vPf, vDummy, vPoll = g.vTmp + 5, g.vTmp + 6, g.vTmp + 7
    PFS = int(os.environ.get("PFS", "6"))
    NCARRY = int(os.environ.get("NCARRY", "8"))
    k.e("s_cmp_ge_u32 s2, 256")
    k.e("s_cbranch_scc1 L_pj_end")
    k.vst = 78
    stamp(k, 0); stamp_rt(k, 1)
    k.e("s_load_dwordx4 s[40:43], s[0:1], 0")
    k.e("s_load_dwordx4 s[44:47], s[0:1], 24")
    k.e("s_load_dwordx2 s[48:49], s[0:1], %d" % ARG_WS)
    k.e("s_load_dwordx2 s[50:51], s[0:1], %d" % ARG_WQ)
    k.e("s_load_dwordx4 s[52:55], s[0:1], %d" % ARG_W1)
    k.e("s_load_dwordx2 s[56:57], s[0:1], %d" % ARG_WO)
    k.e("s_load_dwordx2 s[58:59], s[0:1], %d" % ARG_W2)
    k.e("s_load_dwordx2 s[60:61], s[0:1], %d" % ARG_DBG)
    k.e("s_and_b32 s%d, s2, 7" % sTa)
    k.e("s_bfe_u32 s%d, s2, 0x20003" % sTb)
    k.e("s_lshl2_add_u32 s%d, s%d, s%d" % (sTa, sTa, sTb))
    k.e("s_lshr_b32 s%d, s2, 5" % sMtA)
    k.e("s_and_b32 s%d, s%d, 15" % (sNtA, sTa))
    k.e("s_lshr_b32 s%d, s%d, 4" % (sIsV, sTa))
    k.e("s_movk_i32 s%d, 1024" % jK.sPitchA)
    k.e("s_movk_i32 s%d, 8192" % jK.sPitchB)
    k.e("s_movk_i32 s%d, 128" % jK.sAstep)
    k.e("s_mov_b32 s%d, %d" % (jK.sBstep, 64 * 8192))
    k.e("s_mov_b32 s%d, 0" % jK.sAoff)
    k.e("s_mov_b32 s%d, 0" % jK.sBoff)
    gemm_setup_common(k, g)
    gemm_setup_job(k, g, jK)
    k.e("s_waitcnt lgkmcnt(0)")
    k.e("s_lshl_b32 s%d, s%d, 18" % (sTa, sMtA))
    k.e("s_sub_u32 s%d, %d, s%d" % (sTb, 2048 * 1024, sTa))
    srd(k, jK.sA, sCKV, "s%d" % sTa, "s%d" % sTb)
    k.e("s_cmp_eq_u32 s%d, 0" % sIsV)
    k.e("s_cselect_b32 s78, s%d, s%d" % (sWUK, sWUV))
    k.e("s_cselect_b32 s79, s%d, s%d" % (sWUK + 1, sWUV + 1))
    k.e("s_lshl_b32 s%d, s%d, 9" % (sTa, sNtA))
    k.e("s_sub_u32 s%d, %d, s%d" % (sTb, 512 * 8192, sTa))
    srd(k, jK.sB, 78, "s%d" % sTa, "s%d" % sTb)
    srd(k, sLnX, sX, 0, 4 * MB)
    k.e("s_lshl3_add_u32 s%d, s2, s%d" % (sRow, g.sWave))

    def pf(base, nbytes, off):
        def f():
            srd(k, sPf, base, 0, nbytes)
            k.e("s_mov_b32 s%d, %d" % (sPfOff, off))
            k.e("buffer_load_dword v%d, v%d, %s, s%d offen" % (vDummy, vPf, sr(sPf, 4), sPfOff))
        return f
    PFW = 1024 * 64 << PFS

    def pf_all(base, nbytes):
        return [pf(base, nbytes, o) for o in range(0, nbytes, PFW)]

    k.e("s_and_b32 s%d, s%d, 3" % (sTa, g.sWave))
    k.e("s_lshl2_add_u32 s%d, s2, s%d" % (sTa, sTa))
    k.e("s_lshl_b32 s%d, s%d, %d" % (sTa, sTa, 6 + PFS))
    k.e("v_lshlrev_b32 v%d, %d, v%d" % (vPf, PFS - 4, g.vLane16))
    k.e("v_add_u32 v%d, s%d, v%d" % (vPf, sTa, vPf))
    k.e("s_cmp_ge_u32 s%d, 4" % g.sWave)
    k.e("s_cbranch_scc1 L_pj_startP")
    for s_ in range(2):
        for f in dma_list(k, g, jK, s_, "dma%d" % s_):
            f()
    ln_load(k, g)
    vmqD = list(k.vmq)
    k.e("s_branch L_pj_start2")
    k.label("L_pj_startP")
    k.vmq = []
    ln_load(k, g)
    vmqP = list(k.vmq)
    for f in pf_all(sCKV, 2 * MB) + pf_all(sWUK, 4 * MB) + pf_all(sWUV, 4 * MB):
        f()
        vmqP.append("pf")
    k.label("L_pj_start2")
    srd(k, sLnO, sWS, WS_XN, 4 * MB)
    srd(k, sDb, sDBG, 0, 256)
    k.e("s_sub_u32 s%d, s2, 240" % sTa)
    k.e("s_cmp_lt_u32 s2, 240")
    k.e("s_cselect_b32 s%d, s2, s%d" % (sTa, sTa))
    k.e("s_and_b32 s%d, s%d, 7" % (sTb, sTa))
    k.e("s_lshr_b32 s%d, s%d, 3" % (sTa, sTa))
    k.e("s_mul_i32 s%d, s%d, 30" % (sTb, sTb))
    k.e("s_add_u32 s%d, s%d, s%d" % (sTa, sTa, sTb))
    k.e("s_and_b32 s%d, s%d, 7" % (sMtB, sTa))
    k.e("s_lshr_b32 s%d, s%d, 3" % (sTa, sTa))
    k.e("s_cmp_ge_u32 s%d, 16" % sTa)
    k.e("s_cselect_b32 s%d, 1, 0" % sIsH)
    k.e("s_cselect_b32 s%d, 7, 8" % jB.sPitchB)
    k.e("s_cselect_b32 s%d, 16, 0" % sTb)
    k.e("s_sub_u32 s%d, s%d, s%d" % (sNtB, sTa, sTb))
    k.e("s_lshl_b32 s%d, s%d, 10" % (jB.sPitchB, jB.sPitchB))
    k.e("s_mov_b32 s%d, 65536" % jB.sPitchA)
    k.e("s_movk_i32 s%d, 4096" % jB.sAstep)
    k.e("s_lshl_b32 s%d, s%d, 6" % (jB.sBstep, jB.sPitchB))
    k.e("s_mov_b32 s%d, 0" % jB.sAoff)
    k.e("s_mov_b32 s%d, 0" % jB.sBoff)
    gemm_setup_job(k, g, jB)
    k.e("s_lshl_b32 s%d, s%d, 19" % (sTa, sMtB))
    k.e("s_sub_u32 s%d, %d, s%d" % (sTb, 4 * MB, sTa))
    k.e("s_add_u32 s%d, s%d, %d" % (sTa, sTa, WS_XN))
    srd(k, jB.sA, sWS, "s%d" % sTa, "s%d" % sTb)
    k.e("s_cmp_eq_u32 s%d, 0" % sIsH)
    k.e("s_cselect_b32 s78, s%d, s%d" % (sWQ, sW1))
    k.e("s_cselect_b32 s79, s%d, s%d" % (sWQ + 1, sW1 + 1))
    k.e("s_lshl_b32 s%d, s%d, 9" % (sTa, sNtB))
    k.e("s_lshl_b32 s%d, s%d, 10" % (sTb, jB.sPitchB))
    k.e("s_sub_u32 s%d, s%d, s%d" % (sTb, sTb, sTa))
    srd(k, jB.sB, 78, "s%d" % sTa, "s%d" % sTb)
    k.e("s_lshr_b32 s%d, s%d, 1" % (sTa, g.sWn))
    k.e("s_lshl1_add_u32 s%d, s%d, s%d" % (sTa, sNtA, sTa))
    k.e("s_lshl_b32 s%d, s%d, 19" % (sStA, sTa))
    k.e("s_lshl_b32 s%d, s%d, 3" % (sTa, sMtA))
    k.e("s_lshl2_add_u32 s%d, s%d, s%d" % (sTa, g.sWm, sTa))
    k.e("s_lshl_b32 s%d, s%d, 13" % (sTa, sTa))
    k.e("s_add_u32 s%d, s%d, s%d" % (sStA, sStA, sTa))
    k.e("s_and_b32 s%d, s%d, 1" % (sTa, g.sWn))
    k.e("s_lshl_b32 s%d, s%d, 12" % (sTa, sTa))
    k.e("s_add_u32 s%d, s%d, s%d" % (sStA, sStA, sTa))
    k.e("s_lshl_b32 s%d, s%d, 24" % (sTa, sIsV))
    k.e("s_add_u32 s%d, s%d, %d" % (sTa, sTa, WS_K))
    srd(k, g.sO, sWS, "s%d" % sTa, 16 * MB)

    def signal():
        lab = k.newlabel("nosig")
        k.e("s_cmp_lg_u32 s%d, 4" % g.sWave)
        k.e("s_cbranch_scc1 %s" % lab)
        if FORCE_HELP:
            k.e("s_and_b32 s%d, s2, 15" % sTa)
            k.e("s_cmp_eq_u32 s%d, 3" % sTa)
            k.e("s_cbranch_scc1 %s" % lab)
        k.e("v_mov_b32 v%d, s2" % g.vTmp)
        k.e("v_mov_b32 v%d, 1" % (g.vTmp + 1))
        k.e("s_mov_b64 exec, 1")
        k.e("buffer_store_byte v%d, v%d, %s, 0 offen sc1" % (g.vTmp + 1, g.vTmp, sr(sDb, 4)))
        k.e("s_mov_b64 exec, -1")
        k.label(lab)
        k.vmq.append("sig")

    def bias_loads():
        out = []

        def setup():
            k.e("s_lshl_b32 s%d, s%d, 9" % (sTa, sNtB))
            k.e("s_lshl_b32 s%d, s%d, 7" % (sTb, g.sWn))
            k.e("s_add_u32 s%d, s%d, s%d" % (sTa, sTa, sTb))
            k.e("s_sub_u32 s%d, %d, s%d" % (sTb, 3584 * 2, sTa))
            k.e("s_cmp_eq_u32 s%d, 0" % sIsH)
            k.e("s_cselect_b32 s%d, 0, s%d" % (sTb, sTb))
            k.e("s_cselect_b32 s%d, 0, s%d" % (sTa, sTa))
            srd(k, sLnX, sB1, "s%d" % sTa, "s%d" % sTb)
            k.e("v_bfe_u32 v%d, v0, 5, 1" % vPoll)
            k.e("v_lshlrev_b32 v%d, 3, v%d" % (vPoll, vPoll))
        out.append(setup)
        for tn in range(2):
            for gq in range(4):
                out.append(lambda tn=tn, gq=gq: k.vm_op("buffer_load_dwordx2 %s, v%d, %s, 0 offen offset:%d" % (vr(vPk + (tn * 4 + gq) * 2, 2), vPoll, sr(sLnX, 4), tn * 64 + gq * 16), "bias"))
        return out

    def bias_unpack():
        out = [lambda: k.vm_need(["bias"])]
        for tn in range(2):
            for r in range(16):
                src = vPk + (tn * 4 + (r >> 2)) * 2 + ((r & 3) >> 1)
                d = vBias + 16 * tn + r
                if r & 1:
                    out.append(lambda d=d, src=src: k.e("v_and_b32 v%d, 0xffff0000, v%d" % (d, src)))
                else:
                    out.append(lambda d=d, src=src: k.e("v_lshlrev_b32 v%d, 16, v%d" % (d, src)))
        return out

    def poll_issue():
        k.e("v_lshrrev_b32 v%d, 2, v%d" % (g.vTmp, g.vLane16))
        k.vm_op("buffer_load_dword v%d, v%d, %s, 0 offen sc1" % (vPoll, g.vTmp, sr(sDb, 4)), "poll")

    slow = []

    def poll_check():
        lab, back = k.newlabel("pollslow"), k.newlabel("pollback")
        k.e("v_cmp_ne_u32 vcc, 0x01010101, v%d" % vPoll)
        k.e("s_cbranch_vccnz %s" % lab)
        k.label(back)
        slow.append((lab, back))

    def trk(f):
        def h():
            f()
            k.vmq.append("pf")
        return h

    quads = [208 + 4 * i for i in range(12)] + [2, 6, 10, 16]

    def kvstore(i):
        def f():
            tm, r = i // 4, i % 4
            k.vm_op("buffer_store_dwordx4 %s, v%d, %s, s%d offen offset:%d%s" % (vr(quads[i], 4), g.vLane16, sr(g.sO, 4), sStA, r * 1024, TRFLAGS), "st")
            if r == 3:
                k.e("s_add_u32 s%d, s%d, 8192" % (sStA, sStA))
        return f

    stamp(k, 2)
    k.e("s_cmp_ge_u32 s%d, 4" % g.sWave)
    k.e("s_cbranch_scc1 L_pj_roleP")
    for role in ("D", "P"):
        D = role == "D"
        if not D:
            k.label("L_pj_roleP")
        k.ldsq = []
        k.vmq = list(vmqD if D else vmqP)
        if D:
            k.vm_need(["dma0"])
        k.e("s_barrier")
        stamp(k, 3)
        state0 = (list(k.ldsq), list(k.vmq))
        k.e("s_cmp_eq_u32 s%d, 0" % sIsV)
        k.e("s_cbranch_scc0 L_pj_V%s" % role)
        end_state = None
        pfB = [trk(f) for f in pf_all(sWQ, 8 * MB) + pf_all(sW1, 1024 * 7168)]
        pfB = pfB[0::2] + pfB[1::2] if len(pfB) == 4 else pfB
        pfO = [trk(f) for f in pf_all(sWO, 8 * MB) + pf_all(sW2, 3584 * 2048)]
        for jA in (jK, jV):
            if jA is jV:
                k.label("L_pj_V%s" % role)
                k.ldsq, k.vmq = list(state0[0]), list(state0[1])
            for f in read_list(k, g, jA, 0, 0, 0):
                f()
            lnp = split_list(ln_steps(k, g, via_lds=True), 6)
            lns = ln_store_steps(k, g)
            carry = []
            pfsplit = split_list(pfB, 4)
            for t in range(8):
                extra = {}
                post = None
                need = ["dma%d" % (t + 1)]
                if t == 0:
                    extra = {0: lnp[0], 1: lnp[1], 2: lnp[2]}
                elif t == 1:
                    extra = {0: lnp[3], 1: lnp[4], 2: lnp[5]}
                elif t == 2:
                    extra = {0: lns[0:2], 1: lns[2:3]}
                elif t == 3:
                    need.append("lnst")
                    if not D:
                        post = signal
                elif t == 5 and D:
                    extra = {2: [poll_issue]}
                elif t == 6 and D:
                    need.append("poll")
                    post = poll_check
                if not D and 3 <= t < 7:
                    extra[3] = pfsplit[t - 3]
                jd = (jA if t < 6 else jB) if D else None
                jn = jA if t < 7 else jB
                carry = gemm_body(k, g, t % 2, jA, jn, jd, need, "dma%d" % (t + 2), extra=extra,
                                  cinit=(lambda tm, tn: "0") if t == 0 else None, post_barrier=post,
                                  carry=carry, ncarry=NCARRY if D else 0)
            st = (list(k.ldsq), list(k.vmq))
            if end_state is None:
                end_state = st
                k.e("s_branch L_pj_T%s" % role)
            else:
                assert st == end_state
        k.label("L_pj_T%s" % role)
        if DIAG:
            stamp(k, 5)
        cnt = [0]

        def pre(tm, tn):
            for p in range(2):
                pack_only(k, g.acc(tm, tn) + 8 * p, quads[cnt[0]])
                cnt[0] += 1
        pfsplit = split_list(pfO, 8)
        for t in range(8, 24):
            last = t == 23
            ex = {1: [kvstore(t - 8)]}
            if not D and 9 <= t < 17:
                ex[3] = pfsplit[t - 9]
            if t == 20:
                ex[0] = bias_loads()
            if t == 21:
                bu = split_list(bias_unpack(), 3)
                ex[0] = bu[0]; ex[1] = ex[1] + bu[1]; ex[2] = bu[2]
            carry = gemm_body(k, g, t % 2, jB, None if last else jB, jB if (t < 22 and D) else None, ["dma%d" % (t + 1)], "dma%d" % (t + 2), extra=ex,
                              cinit=(lambda tm, tn: "0") if t == 8 else None, pre=pre if t == 8 else None,
                              carry=carry, ncarry=NCARRY if D else 0)
            if t == 8:
                cont = k.newlabel("cont")
                k.e("s_cmp_lt_u32 s2, 240")
                k.e("s_cbranch_scc1 %s" % cont)
                sv = (list(k.ldsq), list(k.vmq))
                for i in range(1, 16):
                    kvstore(i)()
                k.e("s_branch L_pj_flush")
                k.label(cont)
                k.ldsq, k.vmq = sv
        if D:
            k.e("s_branch L_pj_epi")
    k.label("L_pj_epi")
    k.e("s_nop 15")
    stamp(k, 4)
    k.e("s_cmp_eq_u32 s%d, 0" % sIsH)
    k.e("s_cbranch_scc0 L_pj_H")
    srd(k, g.sO, sWS, WS_Q, 16 * MB)
    k.e("s_lshr_b32 s%d, s%d, 1" % (sTa, g.sWn))
    k.e("s_lshl1_add_u32 s%d, s%d, s%d" % (sTa, sNtB, sTa))
    k.e("s_lshl_b32 s%d, s%d, 19" % (sStA, sTa))
    k.e("s_lshl_b32 s%d, s%d, 3" % (sTa, sMtB))
    k.e("s_lshl2_add_u32 s%d, s%d, s%d" % (sTa, g.sWm, sTa))
    k.e("s_lshl_b32 s%d, s%d, 13" % (sTa, sTa))
    k.e("s_add_u32 s%d, s%d, s%d" % (sStA, sStA, sTa))
    k.e("s_and_b32 s%d, s%d, 1" % (sTa, g.sWn))
    k.e("s_lshl_b32 s%d, s%d, 12" % (sTa, sTa))
    k.e("s_add_u32 s%d, s%d, s%d" % (sStA, sStA, sTa))
    k.e("s_mov_b32 s78, 0x%08x" % f32bits(QSCALE))
    k.e("s_mov_b32 s79, 0x%08x" % f32bits(QSCALE))
    tq = 0
    for tm in range(4):
        for tn in range(2):
            for p in range(2):
                src = g.acc(tm, tn) + 8 * p
                for i in range(4):
                    k.e("v_pk_mul_f32 %s, %s, s[78:79]" % (vr(src + 2 * i, 2), vr(src + 2 * i, 2)))
                pack_store(k, g, src, vPk + 4 * (tq % 4), sStA, (tn * 2 + p) * 1024)
                tq += 1
        if tm < 3:
            k.e("s_add_u32 s%d, s%d, 8192" % (sStA, sStA))
    k.e("s_branch L_pj_flush")
    k.label("L_pj_H")
    srd(k, g.sO, sWS, WS_AH, 2048 * 7680 * 2)
    k.e("s_lshl_b32 s%d, s%d, 3" % (sTa, sMtB))
    k.e("s_lshl2_add_u32 s%d, s%d, s%d" % (sTa, g.sWm, sTa))
    k.e("s_mul_i32 s%d, s%d, 480" % (sTa, sTa))
    k.e("s_lshl_b32 s%d, s%d, 4" % (sStA, sNtB))
    k.e("s_add_u32 s%d, s%d, s%d" % (sStA, sStA, sTa))
    k.e("s_lshl2_add_u32 s%d, s%d, s%d" % (sStA, g.sWn, sStA))
    k.e("s_add_u32 s%d, s%d, 256" % (sStA, sStA))
    k.e("s_lshl_b32 s%d, s%d, 10" % (sStA, sStA))
    k.e("s_mov_b32 s78, 0x%08x" % f32bits(GELU_C2))
    k.e("s_mov_b32 s79, 0x%08x" % f32bits(GELU_C2))
    k.e("v_mov_b32 v%d, 0x%08x" % (g.vTmp, f32bits(GELU_C1)))
    k.e("v_mov_b32 v%d, 0x%08x" % (g.vTmp + 1, f32bits(GELU_C1)))
    k.e("v_mov_b32 v%d, 1.0" % (g.vTmp + 2))
    k.e("v_mov_b32 v%d, 1.0" % (g.vTmp + 3))
    c1 = vr(g.vTmp, 2)
    one2 = vr(g.vTmp + 2, 2)
    tq = 0
    for tm in range(4):
        for tn in range(2):
            for p in range(2):
                src = g.acc(tm, tn) + 8 * p
                tb = g.vF + 8 * (tq % 2)
                for i in range(4):
                    k.e("v_pk_add_f32 %s, %s, %s" % (vr(src + 2 * i, 2), vr(src + 2 * i, 2), vr(vBias + 16 * tn + 8 * p + 2 * i, 2)))
                for i in range(4):
                    k.e("v_pk_mul_f32 %s, %s, %s" % (vr(tb + 2 * i, 2), vr(src + 2 * i, 2), vr(src + 2 * i, 2)))
                for i in range(4):
                    k.e("v_pk_fma_f32 %s, %s, s[78:79], %s" % (vr(tb + 2 * i, 2), vr(tb + 2 * i, 2), c1))
                for i in range(4):
                    k.e("v_pk_mul_f32 %s, %s, %s" % (vr(tb + 2 * i, 2), vr(tb + 2 * i, 2), vr(src + 2 * i, 2)))
                for i in range(8):
                    k.e("v_exp_f32 v%d, v%d" % (tb + i, tb + i))
                for i in range(4):
                    k.e("v_pk_add_f32 %s, %s, %s" % (vr(tb + 2 * i, 2), vr(tb + 2 * i, 2), one2))
                for i in range(8):
                    k.e("v_rcp_f32 v%d, v%d" % (tb + i, tb + i))
                for i in range(4):
                    k.e("v_pk_mul_f32 %s, %s, %s" % (vr(src + 2 * i, 2), vr(src + 2 * i, 2), vr(tb + 2 * i, 2)))
                pack_store(k, g, src, vPk + 4 * (tq % 4), sStA, (tn * 2 + p) * 1024)
                tq += 1
        if tm < 3:
            k.e("s_add_u32 s%d, s%d, %d" % (sStA, sStA, 480 * 1024))
    k.label("L_pj_flush")
    stamp_flush(k, 0, sWS)
    k.label("L_pj_end")
    k.e("s_endpgm")
    for lab, back in slow:
        spin, helpl, rowl = k.newlabel("spin"), k.newlabel("help"), k.newlabel("rowl")
        k.label(lab)
        k.e("s_mov_b32 s78, 0")
        k.label(spin)
        k.e("v_lshrrev_b32 v%d, 2, v%d" % (g.vTmp, g.vLane16))
        k.e("buffer_load_dword v%d, v%d, %s, 0 offen sc1" % (vPoll, g.vTmp, sr(sDb, 4)))
        k.e("s_waitcnt vmcnt(0)")
        k.e("v_cmp_ne_u32 vcc, 0x01010101, v%d" % vPoll)
        k.e("s_cbranch_vccz %s" % back)
        k.e("s_add_u32 s78, s78, 1")
        k.e("s_cmp_ge_u32 s78, 32")
        k.e("s_cbranch_scc1 %s" % helpl)
        k.e("s_sleep 8")
        k.e("s_branch %s" % spin)
        k.label(helpl)
        k.e("s_ff1_i32_b64 s79, vcc")
        k.e("s_nop 3")
        k.e("v_readlane_b32 s%d, v%d, s79" % (sTa, vPoll))
        k.e("s_nop 3")
        k.e("s_xor_b32 s%d, s%d, 0x01010101" % (sTa, sTa))
        k.e("s_ff1_i32_b32 s%d, s%d" % (sTa, sTa))
        k.e("s_lshr_b32 s%d, s%d, 3" % (sTa, sTa))
        k.e("s_lshl2_add_u32 s79, s79, s%d" % sTa)
        k.e("s_lshl_b32 s%d, s79, 3" % sRow)
        k.e("s_mov_b32 s78, 8")
        k.label(rowl)
        sv = (list(k.ldsq), list(k.vmq))
        k.vmq = []
        ln_load(k, g)
        for f in ln_steps(k, g):
            f()
        k.e("s_add_u32 s%d, s%d, 1" % (sRow, sRow))
        k.e("s_sub_u32 s78, s78, 1")
        k.e("s_cmp_lg_u32 s78, 0")
        k.e("s_cbranch_scc1 %s" % rowl)
        k.e("s_waitcnt vmcnt(0)")
        k.e("v_mov_b32 v%d, s79" % g.vTmp)
        k.e("v_mov_b32 v%d, 1" % (g.vTmp + 1))
        k.e("s_mov_b64 exec, 1")
        k.e("buffer_store_byte v%d, v%d, %s, 0 offen sc1" % (g.vTmp + 1, g.vTmp, sr(sDb, 4)))
        k.e("s_mov_b64 exec, -1")
        k.ldsq, k.vmq = sv
        k.e("s_mov_b32 s78, 31")
        k.e("s_branch %s" % spin)
    return k.text(), 256, g.lds_bytes + 16384
```

```python
import sys, os
sys.path.insert(0, os.path.dirname(os.path.abspath(__file__)))
from asmlib import *
from ao import gen_mega_kernel

HEADER = open(os.path.join(os.path.dirname(os.path.abspath(__file__)), "header.txt")).read()


def build(kernels):
    out = [HEADER]
    bodies, descs = [], []
    for name, grid, block, fn in kernels:
        text, nv, lds = fn()
        out.append("; @launch kernel=%s grid=(%d,1,1) block=(%d,1,1) lds=%d\n" % (name, grid, block, lds))
        bodies.append(kernel_header(name) + text)
        descs.append(".p2align 6\n" + kernel_desc(name, nv))
    out.append('.amdgcn_target "amdgcn-amd-amdhsa--gfx950"\n.text\n')
    out += bodies
    out.append('.section .rodata,"a"\n')
    out += descs
    return "".join(out)


if __name__ == "__main__":
    kernels = [("mega_kernel", 256, 512, gen_mega_kernel)]
    s = build(kernels)
    dst = sys.argv[1] if len(sys.argv) > 1 else "parallel_sum__compressed_kv_cla__dense_activation_gelu__prompt.s"
    open(dst, "w").write(s)
    print("wrote", dst, len(s), "bytes")
```

```python
import struct
from asmlib import *

MB = 1 << 20
WS_Q = 4 * MB
WS_K = 20 * MB
WS_VT = 36 * MB
WS_AH = 52 * MB
ARG_WS = 104
STF = os.environ.get("STFLAGS", "sc1")


def f32bits(x):
    return struct.unpack("<I", struct.pack("<f", x))[0]


vL16 = 1
vKA = 2
vVA = 3
vL0, vL1 = 4, 5
vMax = 6
vT0 = 7
vThr = 8
vNeg = 9
vD = 10
vT1 = 11
vT2 = 12
vT3 = 13
vQ = 16
vKf = 48
vVf = 80
vS = [112, 128]
vNm = 144
vP = 160
vE = 168
vLa, vLb = 174, 175
vO = 176
NV = 240
sK, sV, sO, sQ = 4, 8, 12, 16
sJ, sJL, sKoff, sVoff, sWave, sG, sWq = 20, 21, 22, 23, 24, 25, 26
sM0K, sM0V = 27, 29
sT, sPhase, sHead, sPi = 31, 32, 33, 34
sA, sB = 35, 36
sPar = 37
sMask = 40
sWS = 48
THRESH = 2.0 ** 24
XCH = 131072


def srd(k, d, base, off, nbytes):
    k.e("s_add_u32 s%d, s%d, %s" % (d, base, off))
    k.e("s_addc_u32 s%d, s%d, 0" % (d + 1, base + 1))
    k.e("s_mov_b32 s%d, %s" % (d + 2, nbytes))
    k.e("s_mov_b32 s%d, 0x00020000" % (d + 3))


def kread(k, slot, n):
    out = []
    for C in range(8):
        def f(C=C):
            d = vKf + 4 * C
            k.lds_op("ds_read_b128 %s, v%d offset:%d" % (vr(d, 4), vKA, slot * 32768 + n * 8192 + C * 1024), rng(d, 4))
        out.append(f)
    return out


def vread(k, slot, n):
    out = []
    for jj in range(2):
        for R in range(4):
            def f(R=R, jj=jj):
                d = vVf + 4 * (jj * 4 + R)
                k.lds_op("ds_read_b128 %s, v%d offset:%d" % (vr(d, 4), vVA, slot * 32768 + n * 8192 + R * 2048 + jj * 1024), rng(d, 4))
            out.append(f)
    return out


def qk(k, sb, zero_c=False):
    out = []
    for C in range(8):
        def f(C=C):
            a = vKf + 4 * C
            k.lds_need(rng(a, 4))
            if C == 0:
                c = "0" if zero_c else vr(vNm, 16)
            else:
                c = vr(vS[sb], 16)
            k.e("v_mfma_f32_32x32x16_bf16 %s, %s, %s, %s" % (vr(vS[sb], 16), vr(a, 4), vr(vQ + 4 * C, 4), c))
        out.append(f)
    return out


def pv(k):
    out = []
    for jj in range(2):
        for R in range(4):
            def f(R=R, jj=jj):
                a = vVf + 4 * (jj * 4 + R)
                k.lds_need(rng(a, 4))
                o = vO + 16 * R
                k.e("v_mfma_f32_32x32x16_bf16 %s, %s, %s, %s" % (vr(o, 16), vr(a, 4), vr(vP + 4 * jj, 4), vr(o, 16)))
            out.append(f)
    return out


def exp_half(k, sb, h):
    S = vS[sb] + 8 * h
    L = vLa if h == 0 else vLb
    out = []
    E = lambda s: (lambda: k.e(s))
    for i in range(4):
        e0, e1 = vE + 2 * (i % 3), vE + 2 * (i % 3) + 1
        out.append(E("v_exp_f32 v%d, v%d" % (e0, S + 2 * i)))
        out.append(E("v_exp_f32 v%d, v%d" % (e1, S + 2 * i + 1)))
        if i > 0:
            p0, p1 = vE + 2 * ((i - 1) % 3), vE + 2 * ((i - 1) % 3) + 1
            out.append(E("v_cvt_pk_bf16_f32 v%d, v%d, v%d" % (vP + 4 * h + i - 1, p0, p1)))
            if i == 1:
                out.append(E("v_add_f32 v%d, v%d, v%d" % (L, p0, p1)))
            else:
                out.append(E("v_add_f32 v%d, v%d, v%d" % (L, L, p0)))
                out.append(E("v_add_f32 v%d, v%d, v%d" % (L, L, p1)))
    p0, p1 = vE + 0, vE + 1
    out.append(E("s_nop 0"))
    out.append(E("v_cvt_pk_bf16_f32 v%d, v%d, v%d" % (vP + 4 * h + 3, p0, p1)))
    out.append(E("v_add_f32 v%d, v%d, v%d" % (L, L, p0)))
    out.append(E("v_add_f32 v%d, v%d, v%d" % (L, L, p1)))
    return out


def max_code(k, sb):
    S = vS[sb]
    k.e("v_max3_f32 v%d, v%d, v%d, v%d" % (vMax, S, S + 1, S + 2))
    k.e("v_max3_f32 v%d, v%d, v%d, v%d" % (vT0, S + 3, S + 4, S + 5))
    for i in range(6, 14, 4):
        k.e("v_max3_f32 v%d, v%d, v%d, v%d" % (vMax, vMax, S + i, S + i + 1))
        k.e("v_max3_f32 v%d, v%d, v%d, v%d" % (vT0, vT0, S + i + 2, S + i + 3))
    k.e("v_max3_f32 v%d, v%d, v%d, v%d" % (vMax, vMax, S + 14, S + 15))
    k.e("v_max_f32 v%d, v%d, v%d" % (vMax, vMax, vT0))
    k.e("v_mov_b32 v%d, v%d" % (vT0, vMax))
    k.e("s_nop 1")
    k.e("v_permlane32_swap_b32 v%d, v%d" % (vT0, vMax))
    k.e("v_max_f32 v%d, v%d, v%d" % (vMax, vMax, vT0))


def mask_code(k, sb, n):
    S = vS[sb]
    for r0 in range(0, 16, 4):
        for i in range(4):
            r = r0 + i
            c = 16 * (r >> 3) + (r & 7) + 32 * n
            k.e("v_cmp_le_i32 %s, %d, v%d" % (sr(sMask + 2 * i, 2), c, vThr))
        for i in range(4):
            r = r0 + i
            k.e("v_cndmask_b32 v%d, v%d, v%d, %s" % (S + r, vNeg, S + r, sr(sMask + 2 * i, 2)))


def dma_k(k, slot):
    out = []
    for j in range(4):
        def f(j=j):
            if j == 0:
                k.e("s_mov_b32 m0, s%d" % (sM0K + slot))
                k.e("s_nop 0")
            k.e("buffer_load_dwordx4 v%d, %s, s%d offen offset:%d lds" % (vD, sr(sK, 4), sKoff, 1024 * j))
            if j == 3:
                k.e("s_add_u32 s%d, s%d, 32768" % (sKoff, sKoff))
        out.append(f)
    return out


def dma_v(k, slot):
    out = []
    for j in range(4):
        def f(j=j):
            if j == 0:
                k.e("s_mov_b32 m0, s%d" % (sM0V + slot))
                k.e("s_nop 0")
            k.e("buffer_load_dwordx4 v%d, %s, s%d offen offset:%d lds" % (vD, sr(sV, 4), sVoff, 1024 * j))
            if j == 3:
                k.e("s_add_u32 s%d, s%d, 32768" % (sVoff, sVoff))
        out.append(f)
    return out


def q_loads(k, sqb):
    k.e("s_lshl2_add_u32 s%d, s%d, s%d" % (sA, sqb, sWq))
    k.e("s_lshl_b32 s%d, s%d, 13" % (sA, sA))
    k.e("s_add_u32 s%d, s%d, 4096" % (sB, sA))
    for C in range(8):
        k.e("buffer_load_dwordx4 %s, v%d, %s, s%d offen offset:%d" % (vr(vQ + 4 * C, 4), vL16, sr(sQ, 4), sA if C < 4 else sB, (C & 3) * 1024))


def check(k, sb, h, other_valid, nredo, slow_blocks):
    lab = k.newlabel("slow")
    back = k.newlabel("back")
    L = vLa if h == 0 else vLb
    k.e("v_cmp_nge_f32 vcc, s%d, v%d" % (sT, L))
    k.e("s_cbranch_vccnz %s" % lab)
    k.label(back)
    k.e("v_add_f32 v%d, v%d, v%d" % (vL0, vL0, L))
    slow_blocks.append((lab, back, sb, h, other_valid, nredo))


def emit_slow(k, lab, back, sb, h, other_valid, nredo):
    S = vS[sb]
    So = vS[sb ^ 1]
    k.label(lab)
    k.e("s_nop 15")
    max_code(k, sb)
    k.e("v_max_f32 v%d, 0, v%d" % (vMax, vMax))
    k.e("v_sub_f32 v%d, 0, v%d" % (vT0, vMax))
    k.e("v_exp_f32 v%d, v%d" % (vT0, vT0))
    for r in range(16):
        k.e("v_sub_f32 v%d, v%d, v%d" % (S + r, S + r, vMax))
    if other_valid:
        for r in range(16):
            k.e("v_sub_f32 v%d, v%d, v%d" % (So + r, So + r, vMax))
    for r in range(16):
        k.e("v_sub_f32 v%d, v%d, v%d" % (vNm + r, vNm + r, vMax))
    k.e("v_mul_f32 v%d, v%d, v%d" % (vL0, vL0, vT0))
    for r in range(64):
        k.e("v_mul_f32 v%d, v%d, v%d" % (vO + r, vO + r, vT0))
    for f in exp_half(k, sb, h):
        f()
    if h == 0:
        for f in exp_half(k, sb, 1)[:nredo]:
            f()
    k.e("s_nop 1")
    k.e("s_branch %s" % back)


def spread(n_items, n_gaps, start=0):
    per = [0] * n_gaps
    m = n_gaps - start
    for i in range(n_items):
        per[start + (i * m) // n_items] += 1
    return per


def merge_fillers(lists_and_plans, n_gaps):
    flat, per = [], []
    idx = [0] * len(lists_and_plans)
    for gph in range(n_gaps):
        cnt = 0
        for li, (lst, plan) in enumerate(lists_and_plans):
            for _ in range(plan[gph]):
                if idx[li] < len(lst):
                    flat.append(lst[idx[li]])
                    idx[li] += 1
                    cnt += 1
        per.append(cnt)
    for li, (lst, plan) in enumerate(lists_and_plans):
        assert idx[li] == len(lst), (li, idx[li], len(lst))
    return flat, per


NB1 = int(os.environ.get("AT_NB1", "8"))


def half_step(k, p, n, last, slow_blocks, dma=None, post_qk=None):
    cur = n
    nxt = cur ^ 1
    do_qk = not (last and n == 1)
    e0 = exp_half(k, cur, 0)
    e1 = exp_half(k, cur, 1)
    ea = e0 + e1[:NB1]
    eb = e1[NB1:]
    lists = [(vread(k, p, n), [2, 2, 2, 2, 0, 0, 0, 0]), (ea, spread(len(ea), 8))]
    if dma:
        lists.append((dma, spread(len(dma), 7, 1) + [0]))
    fl, per = merge_fillers(lists, 8)
    if do_qk:
        interleave(k, qk(k, nxt), fl, per)
    else:
        for f in fl:
            f()
    if post_qk:
        post_qk()
    check(k, cur, 0, do_qk, NB1, slow_blocks)
    k.e("s_nop 0")
    pvl = pv(k)
    kr = kread(k, p ^ 1, n) if not last else []
    lists = [(eb, spread(len(eb), 4))]
    if kr:
        lists.append((kr[:4], [1, 1, 1, 1]))
    fl, per = merge_fillers(lists, 4)
    interleave(k, pvl[:4], fl, per)
    check(k, cur, 1, do_qk, 0, slow_blocks)
    k.e("s_nop 0")
    tail = list(kr[4:])
    if do_qk:
        if last:
            tail.append(lambda: mask_code(k, nxt, 1))
        elif n == 1:
            nomask = k.newlabel("nomask")

            def maybe_mask():
                k.e("s_add_u32 s%d, s%d, 1" % (sA, sJ))
                k.e("s_cmp_lg_u32 s%d, s%d" % (sA, sJL))
                k.e("s_cbranch_scc1 %s" % nomask)
                mask_code(k, nxt, 0)
                k.label(nomask)
            tail.append(maybe_mask)
    interleave(k, pvl[4:], tail, [2, 2, 1, 0])


def interval(k, p, last, slow_blocks):
    k.c("==== interval parity %d last=%s" % (p, last))
    if not last:
        skipk = k.newlabel("skipk")
        dk = dma_k(k, p)
        dv = dma_v(k, p ^ 1)

        def dk_all():
            k.e("s_add_u32 s%d, s%d, 2" % (sA, sJ))
            k.e("s_cmp_gt_u32 s%d, s%d" % (sA, sJL))
            k.e("s_cbranch_scc1 %s" % skipk)
            for f in dk:
                f()
            k.label(skipk)
        half_step(k, p, 0, False, slow_blocks, dma=dv + [dk_all])
        half_step(k, p, 1, False, slow_blocks)
        k.lds_drain("vmcnt(0)")
        k.e("s_barrier")
    else:
        nonext = k.newlabel("nonext")
        noq = k.newlabel("noq")

        def next_loads():
            k.e("s_cmp_lg_u32 s%d, 0" % sPhase)
            k.e("s_cbranch_scc1 %s" % nonext)
            k.e("s_mov_b32 s%d, 0" % sKoff)
            k.e("s_mov_b32 s%d, 0" % sVoff)
            for f in dma_k(k, p ^ 1) + dma_v(k, p ^ 1):
                f()
            k.label(nonext)

        def next_q():
            k.e("s_cmp_lg_u32 s%d, 0" % sPhase)
            k.e("s_cbranch_scc1 %s" % noq)
            q_loads(k, sPi)
            k.label(noq)
        half_step(k, p, 0, True, slow_blocks, dma=[next_loads], post_qk=next_q)
        half_step(k, p, 1, True, slow_blocks)
        k.e("s_mov_b32 s%d, %d" % (sPar, p ^ 1))


def first_subtile(k, p):
    for f in kread(k, p, 0):
        f()
    for f in qk(k, 0, zero_c=True):
        f()
    for f in kread(k, p, 1):
        f()
    k.e("s_nop 7")
    lab = k.newlabel("nomask0")
    k.e("s_cmp_lg_u32 s%d, 0" % sJL)
    k.e("s_cbranch_scc1 %s" % lab)
    mask_code(k, 0, 0)
    k.label(lab)
    max_code(k, 0)
    for r in range(16):
        k.e("v_sub_f32 v%d, v%d, v%d" % (vS[0] + r, vS[0] + r, vMax))
    for r in range(16):
        k.e("v_sub_f32 v%d, 0, v%d" % (vNm + r, vMax))
    k.lds_drain("vmcnt(0)")
    k.e("s_barrier")


def gen_attn_kernel():
    k = KB()
    slow_blocks = []
    k.e("s_cmp_ge_u32 s2, 256")
    k.e("s_cbranch_scc1 L_at_end")
    k.vst = 14
    stamp(k, 0); stamp_rt(k, 1)
    k.e("s_load_dwordx2 s[%d:%d], s[0:1], %d" % (sWS, sWS + 1, ARG_WS))
    k.e("s_and_b32 s%d, s2, 7" % sA)
    k.e("s_bfe_u32 s%d, s2, 0x20003" % sB)
    k.e("s_lshl2_add_u32 s%d, s%d, s%d" % (sHead, sA, sB))
    k.e("s_lshr_b32 s%d, s2, 5" % sPi)
    k.e("v_lshrrev_b32 v%d, 6, v0" % vT0)
    k.e("v_and_b32 v%d, 63, v0" % vT1)
    k.e("v_readfirstlane_b32 s%d, v%d" % (sWave, vT0))
    k.e("v_lshlrev_b32 v%d, 4, v%d" % (vL16, vT1))
    k.e("s_nop 1")
    k.e("s_lshr_b32 s%d, s%d, 2" % (sG, sWave))
    k.e("s_and_b32 s%d, s%d, 3" % (sWq, sWave))
    k.e("s_lshl_b32 s%d, s%d, 12" % (sA, sWave))
    k.e("s_mov_b32 s%d, s%d" % (sM0K, sA))
    k.e("s_add_u32 s%d, s%d, 32768" % (sM0K + 1, sA))
    k.e("s_add_u32 s%d, s%d, 65536" % (sM0V, sA))
    k.e("s_add_u32 s%d, s%d, 98304" % (sM0V + 1, sA))
    k.e("v_add_u32 v%d, s%d, v%d" % (vD, sA, vL16))
    k.e("s_sub_u32 s%d, 15, s%d" % (sJL, sPi))
    k.e("s_mov_b32 s%d, 0" % sKoff)
    k.e("s_mov_b32 s%d, 0" % sVoff)
    k.e("s_waitcnt lgkmcnt(0)")
    k.e("s_lshl_b32 s%d, s%d, 19" % (sA, sHead))
    k.e("s_add_u32 s%d, s%d, %d" % (sB, sA, WS_K))
    srd(k, sK, sWS, "s%d" % sB, 512 * 1024)
    k.e("s_add_u32 s%d, s%d, %d" % (sB, sA, WS_Q))
    srd(k, sQ, sWS, "s%d" % sB, 512 * 1024)
    k.e("s_add_u32 s%d, s%d, %d" % (sB, sA, WS_VT))
    srd(k, sV, sWS, "s%d" % sB, 512 * 1024)
    for f in dma_k(k, 0):
        f()
    q_loads(k, sJL)
    for f in dma_v(k, 0) + dma_k(k, 1):
        f()
    srd(k, sO, sWS, WS_AH, 2048 * 7680 * 2)
    k.e("s_mov_b32 s%d, 0x%08x" % (sT, f32bits(THRESH)))
    k.e("v_mov_b32 v%d, 0x%08x" % (vNeg, f32bits(-1e30)))
    k.e("v_and_b32 v%d, 0x33, v%d" % (vT0, vT1))
    k.e("v_bfe_u32 v%d, v%d, 2, 1" % (vT2, vT1))
    k.e("v_lshl_or_b32 v%d, v%d, 3, v%d" % (vT0, vT2, vT0))
    k.e("v_bfe_u32 v%d, v%d, 3, 1" % (vT2, vT1))
    k.e("v_lshl_or_b32 v%d, v%d, 2, v%d" % (vT0, vT2, vT0))
    k.e("s_lshl_b32 s%d, s%d, 14" % (sA, sG))
    k.e("v_lshl_add_u32 v%d, v%d, 4, s%d" % (vKA, vT0, sA))
    k.e("s_add_u32 s%d, s%d, 65536" % (sB, sA))
    k.e("v_add_u32 v%d, s%d, v%d" % (vVA, sB, vL16))
    k.e("v_and_b32 v%d, 31, v%d" % (vT0, vT1))
    k.e("v_lshrrev_b32 v%d, 5, v%d" % (vT2, vT1))
    k.e("v_lshlrev_b32 v%d, 3, v%d" % (vT2, vT2))
    k.e("v_sub_u32 v%d, v%d, v%d" % (vT0, vT0, vT2))
    k.e("s_lshl_b32 s%d, s%d, 5" % (sA, sWq))
    k.e("s_lshl_b32 s%d, s%d, 6" % (sB, sG))
    k.e("s_sub_u32 s%d, s%d, s%d" % (sA, sA, sB))
    k.e("v_add_u32 v%d, s%d, v%d" % (vThr, sA, vT0))
    k.e("s_mov_b32 s%d, 0" % sPhase)
    k.e("s_mov_b32 s%d, 0" % sPar)
    k.label("L_at_qblock")
    k.e("s_mov_b32 s%d, 0" % sJ)
    for r in range(64):
        k.e("v_mov_b32 v%d, 0" % (vO + r))
    k.e("v_mov_b32 v%d, 0" % vL0)
    k.e("s_waitcnt vmcnt(8)")
    k.e("s_barrier")
    k.e("s_cmp_lg_u32 s%d, 0" % sPar)
    k.e("s_cbranch_scc1 L_at_first1")
    first_subtile(k, 0)
    if DIAG:
        k.e("s_cmp_lg_u32 s%d, 0" % sPhase)
        k.e("s_cbranch_scc1 L_at_st5")
        stamp(k, 3)
        k.e("s_branch L_at_loop")
        k.label("L_at_st5")
        stamp(k, 5)
    k.label("L_at_loop")
    k.e("s_cmp_eq_u32 s%d, s%d" % (sJ, sJL))
    k.e("s_cbranch_scc1 L_at_last0")
    interval(k, 0, False, slow_blocks)
    k.e("s_add_u32 s%d, s%d, 1" % (sJ, sJ))
    k.label("L_at_loop1")
    k.e("s_cmp_eq_u32 s%d, s%d" % (sJ, sJL))
    k.e("s_cbranch_scc1 L_at_last1")
    interval(k, 1, False, slow_blocks)
    k.e("s_add_u32 s%d, s%d, 1" % (sJ, sJ))
    k.e("s_branch L_at_loop")
    k.label("L_at_first1")
    k.ldsq = []
    first_subtile(k, 1)
    stamp(k, 5)
    k.e("s_branch L_at_loop1")
    k.label("L_at_last0")
    k.ldsq = []
    interval(k, 0, True, slow_blocks)
    k.e("s_branch L_at_fin")
    k.label("L_at_last1")
    k.ldsq = []
    interval(k, 1, True, slow_blocks)
    k.label("L_at_fin")
    k.ldsq = []
    if DIAG:
        k.e("s_cmp_lg_u32 s%d, 0" % sPhase)
        k.e("s_cbranch_scc1 L_at_st2")
        stamp(k, 4)
        k.e("s_branch L_at_st3")
        k.label("L_at_st2")
        stamp(k, 2)
        k.label("L_at_st3")
    k.e("v_mov_b32 v%d, v%d" % (vT0, vL0))
    k.e("s_nop 1")
    k.e("v_permlane32_swap_b32 v%d, v%d" % (vT0, vL0))
    k.e("v_add_f32 v%d, v%d, v%d" % (vL1, vL0, vT0))
    k.e("v_sub_f32 v%d, 0, v%d" % (vL0, vNm))
    k.e("s_xor_b32 s%d, s%d, 1" % (sA, sPar))
    k.e("s_lshl_b32 s%d, s%d, 15" % (sA, sA))
    k.e("s_add_u32 s%d, s%d, 65536" % (sB, sA))
    k.e("s_cmp_eq_u32 s%d, 0" % sG)
    k.e("s_cselect_b32 s%d, s%d, %d" % (sMask, sA, XCH))
    k.e("s_cselect_b32 s%d, %d, s%d" % (sMask + 1, XCH, sA))
    k.e("s_lshl_b32 s%d, s%d, 13" % (sA, sWq))
    k.e("s_add_u32 s%d, s%d, s%d" % (sMask, sMask, sA))
    k.e("s_add_u32 s%d, s%d, s%d" % (sMask + 1, sMask + 1, sA))
    k.e("v_add_u32 v%d, s%d, v%d" % (vT1, sMask, vL16))
    k.e("v_add_u32 v%d, s%d, v%d" % (vT3, sMask + 1, vL16))
    k.e("s_lshl_b32 s%d, s%d, 9" % (sA, sWave))
    k.e("s_add_u32 s%d, s%d, s%d" % (sA, sA, sB))
    k.e("v_lshrrev_b32 v%d, 1, v%d" % (vT2, vL16))
    k.e("v_add_u32 v%d, s%d, v%d" % (vT2, sA, vT2))
    k.e("s_cmp_eq_u32 s%d, 0" % sG)
    k.e("s_cbranch_scc1 L_at_send23")
    for i in range(8):
        k.e("ds_write_b128 v%d, %s offset:%d" % (vT1, vr(vO + 4 * i, 4), i * 1024))
    k.e("s_waitcnt lgkmcnt(0)")
    for i in range(32):
        k.e("v_mov_b32 v%d, v%d" % (vO + i, vO + 32 + i))
    k.e("s_branch L_at_sent")
    k.label("L_at_send23")
    for i in range(8):
        k.e("ds_write_b128 v%d, %s offset:%d" % (vT1, vr(vO + 32 + 4 * i, 4), i * 1024))
    k.label("L_at_sent")
    k.e("s_waitcnt lgkmcnt(0)")
    k.e("s_barrier")
    k.e("ds_write_b64 v%d, v[%d:%d]" % (vT2, vL0, vL1))
    for i in range(8):
        k.e("ds_read_b128 %s, v%d offset:%d" % (vr(vO + 32 + 4 * i, 4), vT3, i * 1024))
    k.e("v_xor_b32 v%d, 0x800, v%d" % (vT2, vT2))
    k.e("s_waitcnt lgkmcnt(0)")
    k.e("s_barrier")
    k.e("ds_read_b64 v[%d:%d], v%d" % (vE, vE + 1, vT2))
    k.e("s_waitcnt lgkmcnt(0)")
    k.e("v_max_f32 v%d, v%d, v%d" % (vT0, vL0, vE))
    k.e("v_sub_f32 v%d, v%d, v%d" % (vL0, vL0, vT0))
    k.e("v_sub_f32 v%d, v%d, v%d" % (vE, vE, vT0))
    k.e("v_exp_f32 v%d, v%d" % (vL0, vL0))
    k.e("v_exp_f32 v%d, v%d" % (vE, vE))
    k.e("s_nop 0")
    k.e("v_mul_f32 v%d, v%d, v%d" % (vL1, vL1, vL0))
    k.e("v_fmac_f32 v%d, v%d, v%d" % (vL1, vE + 1, vE))
    k.e("v_rcp_f32 v%d, v%d" % (vL1, vL1))
    k.e("s_nop 0")
    k.e("v_mul_f32 v%d, v%d, v%d" % (vL0, vL0, vL1))
    k.e("v_mul_f32 v%d, v%d, v%d" % (vE, vE, vL1))
    for i in range(32):
        k.e("v_mul_f32 v%d, v%d, v%d" % (vO + i, vO + i, vL0))
    for i in range(32):
        k.e("v_fmac_f32 v%d, v%d, v%d" % (vO + i, vO + 32 + i, vE))
    k.e("s_lshl2_add_u32 s%d, s%d, s%d" % (sA, sJL, sWq))
    k.e("s_mul_i32 s%d, s%d, 480" % (sA, sA))
    k.e("s_lshl3_add_u32 s%d, s%d, s%d" % (sA, sHead, sA))
    k.e("s_lshl2_add_u32 s%d, s%d, s%d" % (sA, sG, sA))
    k.e("s_lshl_b32 s%d, s%d, 10" % (sA, sA))
    for i in range(4):
        src = vO + 8 * i
        tq = vKf + 4 * i
        for c in range(4):
            k.e("v_cvt_pk_bf16_f32 v%d, v%d, v%d" % (tq + c, src + 2 * c, src + 2 * c + 1))
        k.e("s_nop 1")
        k.e("v_permlane32_swap_b32 v%d, v%d" % (tq, tq + 2))
        k.e("v_permlane32_swap_b32 v%d, v%d" % (tq + 1, tq + 3))
        k.e("buffer_store_dwordx4 %s, v%d, %s, s%d offen offset:%d %s" % (vr(tq, 4), vL16, sr(sO, 4), sA, i * 1024, STF))
    k.e("s_cmp_lg_u32 s%d, 0" % sPhase)
    k.e("s_cbranch_scc1 L_at_flush")
    k.e("s_mov_b32 s%d, 1" % sPhase)
    k.e("s_mov_b32 s%d, s%d" % (sJL, sPi))
    k.e("s_xor_b32 s%d, s%d, 1" % (sA, sPar))
    k.e("s_lshl_b32 s%d, s%d, 15" % (sA, sA))
    k.e("s_add_u32 m0, s%d, s%d" % (sM0K, sA))
    k.e("s_nop 0")
    for j in range(4):
        k.e("buffer_load_dwordx4 v%d, %s, s%d offen offset:%d lds" % (vD, sr(sK, 4), sKoff, 1024 * j))
    k.e("s_add_u32 s%d, s%d, 32768" % (sKoff, sKoff))
    k.e("s_branch L_at_qblock")
    k.label("L_at_flush")
    stamp_flush(k, 2, sWS)
    k.label("L_at_end")
    k.e("s_endpgm")
    for args in slow_blocks:
        emit_slow(k, *args)
    return k.text(), NV, 163840
```

```python
from asmlib import *
from gemm import *
import attn as AT
MB = 1 << 20
WS_AH = 52 * MB
WS_PART = 84 * MB
ARG_X, ARG_WO, ARG_W2, ARG_B2, ARG_OUT, ARG_DBG, ARG_WS = 0, 40, 72, 80, 88, 96, 104
FORCE_HELP = int(os.environ.get("FORCE_HELP", "0"))


def srd(k, d, base, off, nbytes):
    k.e("s_add_u32 s%d, s%d, %s" % (d, base, off))
    k.e("s_addc_u32 s%d, s%d, 0" % (d + 1, base + 1))
    k.e("s_mov_b32 s%d, %s" % (d + 2, nbytes))
    k.e("s_mov_b32 s%d, 0x00020000" % (d + 3))


def gen_ao_kernel():
    k = KB()
    slow_blocks = []
    k.e("s_cmp_ge_u32 s2, 256")
    k.e("s_cbranch_scc1 L_ao_end")
    k.vst = 14
    stamp(k, 0); stamp_rt(k, 1)
    k.e("s_mov_b32 s%d, s2" % AT.sTask)
    if FORCE_HELP:
        k.e("s_and_b32 s3, s2, 63")
        k.e("s_cmp_eq_u32 s3, 5")
        k.e("s_cbranch_scc0 L_at_task")
        k.e("s_add_u32 s%d, s2, 1" % AT.sTask)
    AT.emit_attn(k, slow_blocks)
    k.e("v_readfirstlane_b32 s3, v%d" % AT.vChk)
    k.e("s_lshl_b32 s63, s%d, 5" % AT.sPi)
    k.e("s_add_u32 s63, s63, s%d" % AT.sHead)
    k.e("s_cmp_lt_i32 s3, 0")
    k.e("s_cbranch_scc1 L_ao_out")
    k.e("s_waitcnt vmcnt(0)")
    k.e("s_barrier")
    AT.flag_store(k, 63, 256)
    k.e("s_mov_b32 s%d, s3" % AT.sTask)
    k.e("s_branch L_at_task")
    k.label("L_ao_out")
    if DIAG:
        k.e("v_mov_b32 v60, v14")
        k.e("v_mov_b32 v61, v15")
        k.vst = 60
    g = GemmCfg(TM=2, TN=2, WM=4, WN=2, NS=3, vRB=14, vTmp=20, vF=28)
    j = Job("frag", True, 4, 8, 16, 17, 33, 26, 29, 30, 2, 6, 10, "O")
    sFl = AT.sFl
    k.ldsq, k.vmq = [], ["st"] * 4
    k.e("s_load_dwordx2 s[40:41], s[0:1], %d" % ARG_WO)
    k.e("s_load_dwordx2 s[42:43], s[0:1], %d" % ARG_W2)
    k.e("s_load_dwordx2 s[44:45], s[0:1], %d" % ARG_DBG)
    k.e("s_bfe_u32 s64, s2, 0x20001")
    k.e("s_and_b32 s65, s2, 1")
    k.e("s_lshr_b32 s66, s2, 6")
    k.e("s_lshl2_add_u32 s65, s65, s66")
    k.e("s_bfe_u32 s66, s2, 0x30003")
    k.e("s_mov_b32 s%d, %d" % (j.sPitchA, 480 * 1024))
    k.e("s_movk_i32 s%d, 2048" % j.sPitchB)
    k.e("s_movk_i32 s%d, 4096" % j.sAstep)
    k.e("s_mov_b32 s%d, %d" % (j.sBstep, 64 * 2048))
    k.e("s_mul_i32 s%d, s64, %d" % (j.sAoff, 14 * 4096))
    k.e("s_add_u32 s%d, s%d, %d" % (j.sAoff, j.sAoff, 64 * 4096))
    k.e("s_mul_i32 s%d, s64, %d" % (j.sBoff, 14 * 64 * 2048))
    gemm_setup_common(k, g)
    gemm_setup_job(k, g, j)
    k.e("s_mul_i32 s67, s65, %d" % (8 * 480 * 1024))
    k.e("s_sub_u32 s68, %d, s67" % (2048 * 7680 * 2))
    k.e("s_add_u32 s67, s67, %d" % WS_AH)
    srd(k, j.sA, AT.sWS, "s67", "s68")
    k.e("s_waitcnt lgkmcnt(0)")
    k.e("s_lshl_b32 s67, s66, 8")
    k.e("s_sub_u32 s68, %d, s67" % (3584 * 2048))
    srd(k, j.sB, 42, "s67", "s68")
    k.e("s_barrier")
    for s in range(g.NS):
        for f in dma_list(k, g, j, s, "dma%d" % s):
            f()
    srd(k, 56, AT.sWS, AT.WS_FLAGS + 4096, 32768)
    k.vm_need(["dma0"])
    k.e("s_barrier")
    lab = k.newlabel("nofl")
    k.e("s_cmp_lg_u32 s%d, 0" % g.sWave)
    k.e("s_cbranch_scc1 %s" % lab)
    k.e("v_mov_b32 v%d, 0" % g.vTmp)
    k.e("v_mov_b32 v%d, 1" % (g.vTmp + 1))
    k.e("s_mov_b64 exec, 1")
    k.e("buffer_store_byte v%d, v%d, %s, s63 offen offset:256 sc1" % (g.vTmp + 1, g.vTmp, sr(sFl, 4)))
    k.e("s_mov_b64 exec, -1")
    k.label(lab)
    stamp(k, 3)
    for f in read_list(k, g, j, 0, 0, 0):
        f()
    vPoll, vPA = g.vTmp + 6, g.vTmp + 7
    slow = []

    def poll_issue():
        k.e("v_and_b32 v%d, 63, v0" % vPA)
        k.e("v_and_b32 v%d, 3, v%d" % (vPA, vPA))
        k.e("v_lshrrev_b32 v%d, 1, v%d" % (vPoll, vPA))
        k.e("v_and_b32 v%d, 1, v%d" % (vPA, vPA))
        k.e("v_lshlrev_b32 v%d, 2, v%d" % (vPA, vPA))
        k.e("v_lshl_add_u32 v%d, v%d, 5, v%d" % (vPA, vPoll, vPA))
        k.e("s_lshl_b32 s67, s65, 6")
        k.e("s_lshl3_add_u32 s67, s64, s67")
        k.e("v_add_u32 v%d, s67, v%d" % (vPA, vPA))
        k.vm_op("buffer_load_dword v%d, v%d, %s, 0 offen offset:256 sc1" % (vPoll, vPA, sr(sFl, 4)), "poll")

    def poll_check_and_switch():
        lab, back = k.newlabel("pslow"), k.newlabel("pback")
        k.e("v_cmp_ne_u32 vcc, 0x01010101, v%d" % vPoll)
        k.e("s_cbranch_vccnz %s" % lab)
        k.label(back)
        slow.append((lab, back))
        k.e("s_mul_i32 s%d, s64, %d" % (j.sAoff, 16 * 4096))
        k.e("s_mul_i32 s%d, s64, %d" % (j.sBoff, 16 * 64 * 2048))
        k.e("s_lshl_b32 s67, s66, 8")
        k.e("s_sub_u32 s68, %d, s67" % (4096 * 2048))
        srd(k, j.sB, 40, "s67", "s68")

    for t in range(3):
        gemm_body(k, g, t, j, j, j, None, "dma", vmwait=g.ND, cinit=(lambda tm, tn: "0") if t == 0 else None)
    gemm_loop(k, g, j, 0, 6, "oa")
    gemm_body(k, g, 0, j, j, j, None, "dma", vmwait=g.ND)
    gemm_body(k, g, 1, j, j, j, None, "dma", vmwait=g.ND, extra={0: [poll_issue]})
    gemm_body(k, g, 2, j, j, j, None, "dma", vmwait=g.ND, post_barrier=poll_check_and_switch)
    gemm_loop(k, g, j, 0, 15, "ob")
    gemm_tail(k, g, j, 0)
    stamp(k, 4)
    vTk = g.vTmp + 5
    OWN = 128
    k.e("s_load_dwordx2 s[40:41], s[0:1], %d" % ARG_X)
    k.e("s_load_dwordx4 s[44:47], s[0:1], %d" % ARG_B2)
    k.e("s_lshl3_add_u32 s67, s65, s66")
    k.e("s_lshl_b32 s70, s67, 19")
    k.e("s_lshl_b32 s71, s%d, 14" % g.sWave)
    k.e("s_add_u32 s70, s70, s71")
    srd(k, g.sO, AT.sWS, WS_PART, 32 * MB)
    k.e("s_lshl3_add_u32 s67, s67, s%d" % g.sWave)
    k.e("s_lshl_b32 s67, s67, 6")
    k.e("s_lshl_b32 s71, s64, 17")
    k.e("s_add_u32 s71, s71, s70")
    for sp in range(4):
        if sp < 3:
            k.e("s_cmp_lg_u32 s64, %d" % sp)
            k.e("s_cbranch_scc1 L_ao_v%d" % (sp + 1))
        for t4 in range(4):
            if t4 == sp:
                continue
            k.e("s_add_u32 s72, s71, %d" % (t4 * 4096))
            for i in range(4):
                k.e("buffer_store_dwordx4 %s, v%d, %s, s72 offen offset:%d sc1" % (vr(g.vAcc + 16 * t4 + 4 * i, 4), g.vLane16, sr(g.sO, 4), i * 1024))
        for i in range(16):
            k.e("v_mov_b32 v%d, v%d" % (OWN + i, g.vAcc + 16 * sp + i))
        if sp < 3:
            k.e("s_branch L_ao_v4")
            k.label("L_ao_v%d" % (sp + 1))
    k.label("L_ao_v4")
    vX = g.vTmp
    k.e("v_and_b32 v%d, 31, v0" % vX)
    k.e("v_lshlrev_b32 v%d, 11, v%d" % (vX, vX))
    k.e("v_bfe_u32 v%d, v0, 5, 1" % (vX + 1))
    k.e("v_lshl_add_u32 v%d, v%d, 4, v%d" % (vX, vX + 1, vX))
    k.e("v_lshlrev_b32 v%d, 4, v%d" % (vX + 1, vX + 1))
    k.e("s_lshl_b32 s72, s65, 2")
    k.e("s_add_u32 s72, s72, s%d" % g.sWm)
    k.e("s_lshl_b32 s72, s72, 17")
    k.e("s_lshl1_add_u32 s73, s66, s%d" % g.sWn)
    k.e("s_lshl_b32 s73, s73, 7")
    k.e("v_mov_b32 v%d, s67" % vPA)
    k.e("s_waitcnt lgkmcnt(0)")
    srd(k, 4, 40, 0, 4 * MB)
    srd(k, 8, 44, 0, 2048)
    srd(k, 80, 46, 0, 4 * MB)

    def xb_loads(sq):
        k.e("s_and_b32 s76, s%d, 1" % sq)
        k.e("s_lshl_b32 s76, s76, 6")
        k.e("s_add_u32 s76, s76, s73")
        k.e("s_lshr_b32 s77, s%d, 1" % sq)
        k.e("s_lshl_b32 s77, s77, 16")
        k.e("s_add_u32 s77, s77, s72")
        k.e("s_add_u32 s77, s77, s76")
        for p in range(2):
            k.e("buffer_load_dwordx4 %s, v%d, s[4:7], s77 offen offset:%d" % (vr(28 + 4 * p, 4), vX, p * 32))
            k.e("buffer_load_dwordx4 %s, v%d, s[8:11], s76 offen offset:%d" % (vr(36 + 4 * p, 4), vX + 1, p * 32))

    def finish(b0):
        k.e("s_nop 1")
        for p in range(2):
            for i in range(4):
                k.e("v_permlane32_swap_b32 v%d, v%d" % (b0 + 8 * p + i, b0 + 8 * p + 4 + i))
        T = 44
        for p in range(2):
            b = b0 + 8 * p
            x4, b4 = 28 + 4 * p, 36 + 4 * p
            for i in range(4):
                k.e("v_lshlrev_b32 v%d, 16, v%d" % (T, x4 + i))
                k.e("v_and_b32 v%d, 0xffff0000, v%d" % (T + 1, x4 + i))
                k.e("v_lshlrev_b32 v%d, 16, v%d" % (T + 2, b4 + i))
                k.e("v_and_b32 v%d, 0xffff0000, v%d" % (T + 3, b4 + i))
                k.e("v_pk_add_f32 %s, %s, %s" % (vr(T, 2), vr(T, 2), vr(T + 2, 2)))
                k.e("v_pk_add_f32 %s, %s, %s" % (vr(b + 2 * i, 2), vr(b + 2 * i, 2), vr(T, 2)))
            for i in range(4):
                k.e("v_cvt_pk_bf16_f32 v%d, v%d, v%d" % (48 + 4 * p + i, b + 2 * i, b + 2 * i + 1))
            k.e("buffer_store_dwordx4 %s, v%d, s[80:83], s77 offen offset:%d" % (vr(48 + 4 * p, 4), vX, p * 32))
    k.e("s_waitcnt vmcnt(0)")
    stamp(k, 5)
    k.e("v_mov_b32 v%d, 1" % vTk)
    k.e("s_mov_b64 exec, 1")
    k.e("buffer_atomic_add v%d, v%d, s[56:59], 0 offen sc0 sc1" % (vTk, vPA))
    k.e("s_mov_b64 exec, -1")
    xb_loads(64)
    k.e("s_waitcnt vmcnt(4)")
    k.e("v_readfirstlane_b32 s69, v%d" % vTk)
    k.e("s_mov_b32 s74, 0")
    k.e("s_and_b32 s75, s69, 0xff")
    k.e("s_cmp_eq_u32 s75, 3")
    k.e("s_cbranch_scc0 L_ao_wait")
    k.e("s_lshr_b32 s74, s69, 8")
    k.e("s_branch L_ao_own")
    k.label("L_ao_wait")
    k.e("s_mov_b32 s75, %d" % (4 if FORCE_HELP else 4000))
    k.label("L_ao_spin")
    k.e("buffer_load_dword v%d, v%d, s[56:59], 0 offen sc1" % (vTk, vPA))
    k.e("s_waitcnt vmcnt(0)")
    k.e("v_readfirstlane_b32 s69, v%d" % vTk)
    k.e("s_and_b32 s69, s69, 0xff")
    k.e("s_cmp_eq_u32 s69, 4")
    k.e("s_cbranch_scc1 L_ao_own")
    k.e("s_sleep 2")
    k.e("s_sub_u32 s75, s75, 1")
    k.e("s_cmp_lg_u32 s75, 0")
    k.e("s_cbranch_scc1 L_ao_spin")
    k.e("s_lshl_b32 s75, s64, 12")
    k.e("s_add_u32 s75, s75, s71")
    for i in range(4):
        k.e("buffer_store_dwordx4 %s, v%d, %s, s75 offen offset:%d sc1" % (vr(OWN + 4 * i, 4), g.vLane16, sr(g.sO, 4), i * 1024))
    k.e("s_waitcnt vmcnt(0)")
    k.e("s_lshl_b32 s69, 0x100, s64")
    k.e("v_mov_b32 v%d, s69" % vTk)
    k.e("s_mov_b64 exec, 1")
    k.e("buffer_atomic_or v%d, v%d, s[56:59], 0 offen sc0 sc1" % (vTk, vPA))
    k.e("s_mov_b64 exec, -1")
    k.e("s_waitcnt vmcnt(0)")
    k.e("v_readfirstlane_b32 s69, v%d" % vTk)
    k.e("s_and_b32 s69, s69, 0xff")
    k.e("s_cmp_eq_u32 s69, 4")
    k.e("s_cbranch_scc0 L_ao_flush")
    k.label("L_ao_own")
    stamp(k, 2)
    for i3 in range(1, 4):
        k.e("s_add_u32 s75, s64, %d" % i3)
        k.e("s_and_b32 s75, s75, 3")
        k.e("s_lshl_b32 s75, s75, 17")
        k.e("s_add_u32 s75, s75, s70")
        k.e("s_lshl_b32 s69, s64, 12")
        k.e("s_add_u32 s75, s75, s69")
        for i in range(4):
            k.e("buffer_load_dwordx4 %s, v%d, %s, s75 offen offset:%d sc1" % (vr(64 + 16 * i3 + 4 * i, 4), g.vLane16, sr(g.sO, 4), i * 1024))
    k.e("s_waitcnt vmcnt(8)")
    for i in range(8):
        k.e("v_pk_add_f32 %s, %s, %s" % (vr(OWN + 2 * i, 2), vr(OWN + 2 * i, 2), vr(80 + 2 * i, 2)))
    k.e("s_waitcnt vmcnt(0)")
    for i in range(8):
        k.e("v_pk_add_f32 %s, %s, %s" % (vr(96 + 2 * i, 2), vr(96 + 2 * i, 2), vr(112 + 2 * i, 2)))
    for i in range(8):
        k.e("v_pk_add_f32 %s, %s, %s" % (vr(OWN + 2 * i, 2), vr(OWN + 2 * i, 2), vr(96 + 2 * i, 2)))
    finish(OWN)
    k.label("L_ao_q")
    k.e("s_cmp_eq_u32 s74, 0")
    k.e("s_cbranch_scc1 L_ao_flush")
    k.e("s_ff1_i32_b32 s75, s74")
    k.e("s_bitset0_b32 s74, s75")
    k.e("s_lshl_b32 s71, s75, 12")
    k.e("s_add_u32 s71, s71, s70")
    for sp in range(4):
        for i in range(4):
            k.e("buffer_load_dwordx4 %s, v%d, %s, s71 offen offset:%d sc1" % (vr(64 + 16 * sp + 4 * i, 4), g.vLane16, sr(g.sO, 4), i * 1024))
        if sp < 3:
            k.e("s_add_u32 s71, s71, 131072")
    xb_loads(75)
    k.e("s_waitcnt vmcnt(0)")
    for i in range(8):
        k.e("v_pk_add_f32 %s, %s, %s" % (vr(64 + 2 * i, 2), vr(64 + 2 * i, 2), vr(80 + 2 * i, 2)))
    for i in range(8):
        k.e("v_pk_add_f32 %s, %s, %s" % (vr(96 + 2 * i, 2), vr(96 + 2 * i, 2), vr(112 + 2 * i, 2)))
    for i in range(8):
        k.e("v_pk_add_f32 %s, %s, %s" % (vr(64 + 2 * i, 2), vr(64 + 2 * i, 2), vr(96 + 2 * i, 2)))
    finish(64)
    k.e("s_branch L_ao_q")
    k.label("L_ao_flush")
    stamp_flush(k, 2, AT.sWS)
    k.label("L_ao_end")
    k.e("s_endpgm")
    for args in slow_blocks:
        AT.emit_slow(k, *args)
    for lab, back in slow:
        k.label(lab)
        k.e("s_sleep 2")
        k.e("buffer_load_dword v%d, v%d, %s, 0 offen offset:256 sc1" % (vPoll, vPA, sr(sFl, 4)))
        k.e("s_waitcnt vmcnt(0)")
        k.e("v_cmp_ne_u32 vcc, 0x01010101, v%d" % vPoll)
        k.e("s_cbranch_vccnz %s" % lab)
        k.e("s_branch %s" % back)
    return k.text(), 256, 163840
```

```python
import struct
from asmlib import *

MB = 1 << 20
WS_Q = 4 * MB
WS_K = 20 * MB
WS_VT = 36 * MB
WS_AH = 52 * MB
ARG_WS = 104
STF = os.environ.get("STFLAGS", "sc1")


def f32bits(x):
    return struct.unpack("<I", struct.pack("<f", x))[0]


vL16 = 1
vKA = 2
vVA = 3
vL0, vL1 = 4, 5
vMax = 6
vT0 = 7
vThr = 8
vNeg = 9
vD = 10
vT1 = 11
vT2 = 12
vT3 = 13
vQ = 16
vKf = 48
vVf = 80
vS = [112, 128]
vNm = 144
vP = 160
vE = 168
vLa, vLb = 174, 175
vO = 176
NV = 242
sK, sV, sO, sQ = 4, 8, 12, 16
sJ, sJL, sKoff, sVoff, sWave, sG, sWq = 20, 21, 22, 23, 24, 25, 26
sM0K, sM0V = 27, 29
sT, sPhase, sHead, sPi = 31, 32, 33, 34
sA, sB = 35, 36
sPar = 37
sMask = 40
sWS = 48
THRESH = 2.0 ** 24
XCH = 131072


def srd(k, d, base, off, nbytes):
    k.e("s_add_u32 s%d, s%d, %s" % (d, base, off))
    k.e("s_addc_u32 s%d, s%d, 0" % (d + 1, base + 1))
    k.e("s_mov_b32 s%d, %s" % (d + 2, nbytes))
    k.e("s_mov_b32 s%d, 0x00020000" % (d + 3))


def kread(k, slot, n):
    out = []
    for C in range(8):
        def f(C=C):
            d = vKf + 4 * C
            k.lds_op("ds_read_b128 %s, v%d offset:%d" % (vr(d, 4), vKA, slot * 32768 + n * 8192 + C * 1024), rng(d, 4))
        out.append(f)
    return out


def vread(k, slot, n):
    out = []
    for jj in range(2):
        for R in range(4):
            def f(R=R, jj=jj):
                d = vVf + 4 * (jj * 4 + R)
                k.lds_op("ds_read_b128 %s, v%d offset:%d" % (vr(d, 4), vVA, slot * 32768 + n * 8192 + R * 2048 + jj * 1024), rng(d, 4))
            out.append(f)
    return out


def qk(k, sb, zero_c=False):
    out = []
    for C in range(8):
        def f(C=C):
            a = vKf + 4 * C
            k.lds_need(rng(a, 4))
            if C == 0:
                c = "0" if zero_c else vr(vNm, 16)
            else:
                c = vr(vS[sb], 16)
            k.e("v_mfma_f32_32x32x16_bf16 %s, %s, %s, %s" % (vr(vS[sb], 16), vr(a, 4), vr(vQ + 4 * C, 4), c))
        out.append(f)
    return out


def pv(k):
    out = []
    for jj in range(2):
        for R in range(4):
            def f(R=R, jj=jj):
                a = vVf + 4 * (jj * 4 + R)
                k.lds_need(rng(a, 4))
                o = vO + 16 * R
                k.e("v_mfma_f32_32x32x16_bf16 %s, %s, %s, %s" % (vr(o, 16), vr(a, 4), vr(vP + 4 * jj, 4), vr(o, 16)))
            out.append(f)
    return out


def exp_half(k, sb, h):
    S = vS[sb] + 8 * h
    L = vLa if h == 0 else vLb
    out = []
    E = lambda s: (lambda: k.e(s))
    for i in range(4):
        e0, e1 = vE + 2 * (i % 3), vE + 2 * (i % 3) + 1
        out.append(E("v_exp_f32 v%d, v%d" % (e0, S + 2 * i)))
        out.append(E("v_exp_f32 v%d, v%d" % (e1, S + 2 * i + 1)))
        if i > 0:
            p0, p1 = vE + 2 * ((i - 1) % 3), vE + 2 * ((i - 1) % 3) + 1
            out.append(E("v_cvt_pk_bf16_f32 v%d, v%d, v%d" % (vP + 4 * h + i - 1, p0, p1)))
            if i == 1:
                out.append(E("v_add_f32 v%d, v%d, v%d" % (L, p0, p1)))
            else:
                out.append(E("v_add_f32 v%d, v%d, v%d" % (L, L, p0)))
                out.append(E("v_add_f32 v%d, v%d, v%d" % (L, L, p1)))
    p0, p1 = vE + 0, vE + 1
    out.append(E("s_nop 0"))
    out.append(E("v_cvt_pk_bf16_f32 v%d, v%d, v%d" % (vP + 4 * h + 3, p0, p1)))
    out.append(E("v_add_f32 v%d, v%d, v%d" % (L, L, p0)))
    out.append(E("v_add_f32 v%d, v%d, v%d" % (L, L, p1)))
    return out


def max_code(k, sb):
    S = vS[sb]
    k.e("v_max3_f32 v%d, v%d, v%d, v%d" % (vMax, S, S + 1, S + 2))
    k.e("v_max3_f32 v%d, v%d, v%d, v%d" % (vT0, S + 3, S + 4, S + 5))
    for i in range(6, 14, 4):
        k.e("v_max3_f32 v%d, v%d, v%d, v%d" % (vMax, vMax, S + i, S + i + 1))
        k.e("v_max3_f32 v%d, v%d, v%d, v%d" % (vT0, vT0, S + i + 2, S + i + 3))
    k.e("v_max3_f32 v%d, v%d, v%d, v%d" % (vMax, vMax, S + 14, S + 15))
    k.e("v_max_f32 v%d, v%d, v%d" % (vMax, vMax, vT0))
    k.e("v_mov_b32 v%d, v%d" % (vT0, vMax))
    k.e("s_nop 1")
    k.e("v_permlane32_swap_b32 v%d, v%d" % (vT0, vMax))
    k.e("v_max_f32 v%d, v%d, v%d" % (vMax, vMax, vT0))


def mask_code(k, sb, n):
    S = vS[sb]
    for r0 in range(0, 16, 4):
        for i in range(4):
            r = r0 + i
            c = 16 * (r >> 3) + (r & 7) + 32 * n
            k.e("v_cmp_le_i32 %s, %d, v%d" % (sr(sMask + 2 * i, 2), c, vThr))
        for i in range(4):
            r = r0 + i
            k.e("v_cndmask_b32 v%d, v%d, v%d, %s" % (S + r, vNeg, S + r, sr(sMask + 2 * i, 2)))


def dma_k(k, slot):
    out = []
    for j in range(4):
        def f(j=j):
            if j == 0:
                k.e("s_mov_b32 m0, s%d" % (sM0K + slot))
                k.e("s_nop 0")
            k.e("buffer_load_dwordx4 v%d, %s, s%d offen offset:%d lds" % (vD, sr(sK, 4), sKoff, 1024 * j))
            if j == 3:
                k.e("s_add_u32 s%d, s%d, 32768" % (sKoff, sKoff))
        out.append(f)
    return out


def dma_v(k, slot):
    out = []
    for j in range(4):
        def f(j=j):
            if j == 0:
                k.e("s_mov_b32 m0, s%d" % (sM0V + slot))
                k.e("s_nop 0")
            k.e("buffer_load_dwordx4 v%d, %s, s%d offen offset:%d lds" % (vD, sr(sV, 4), sVoff, 1024 * j))
            if j == 3:
                k.e("s_add_u32 s%d, s%d, 32768" % (sVoff, sVoff))
        out.append(f)
    return out


def q_loads(k, sqb):
    k.e("s_lshl2_add_u32 s%d, s%d, s%d" % (sA, sqb, sWq))
    k.e("s_lshl_b32 s%d, s%d, 13" % (sA, sA))
    k.e("s_add_u32 s%d, s%d, 4096" % (sB, sA))
    for C in range(8):
        k.e("buffer_load_dwordx4 %s, v%d, %s, s%d offen offset:%d" % (vr(vQ + 4 * C, 4), vL16, sr(sQ, 4), sA if C < 4 else sB, (C & 3) * 1024))


def check(k, sb, h, other_valid, nredo, slow_blocks):
    lab = k.newlabel("slow")
    back = k.newlabel("back")
    L = vLa if h == 0 else vLb
    k.e("v_cmp_nge_f32 vcc, s%d, v%d" % (sT, L))
    k.e("s_cbranch_vccnz %s" % lab)
    k.label(back)
    k.e("v_add_f32 v%d, v%d, v%d" % (vL0, vL0, L))
    slow_blocks.append((lab, back, sb, h, other_valid, nredo))


def emit_slow(k, lab, back, sb, h, other_valid, nredo):
    S = vS[sb]
    So = vS[sb ^ 1]
    k.label(lab)
    k.e("s_nop 15")
    max_code(k, sb)
    k.e("v_max_f32 v%d, 0, v%d" % (vMax, vMax))
    k.e("v_sub_f32 v%d, 0, v%d" % (vT0, vMax))
    k.e("v_exp_f32 v%d, v%d" % (vT0, vT0))
    for r in range(16):
        k.e("v_sub_f32 v%d, v%d, v%d" % (S + r, S + r, vMax))
    if other_valid:
        for r in range(16):
            k.e("v_sub_f32 v%d, v%d, v%d" % (So + r, So + r, vMax))
    for r in range(16):
        k.e("v_sub_f32 v%d, v%d, v%d" % (vNm + r, vNm + r, vMax))
    k.e("v_mul_f32 v%d, v%d, v%d" % (vL0, vL0, vT0))
    for r in range(64):
        k.e("v_mul_f32 v%d, v%d, v%d" % (vO + r, vO + r, vT0))
    for f in exp_half(k, sb, h):
        f()
    if h == 0:
        for f in exp_half(k, sb, 1)[:nredo]:
            f()
    k.e("s_nop 1")
    k.e("s_branch %s" % back)


def spread(n_items, n_gaps, start=0):
    per = [0] * n_gaps
    m = n_gaps - start
    for i in range(n_items):
        per[start + (i * m) // n_items] += 1
    return per


def merge_fillers(lists_and_plans, n_gaps):
    flat, per = [], []
    idx = [0] * len(lists_and_plans)
    for gph in range(n_gaps):
        cnt = 0
        for li, (lst, plan) in enumerate(lists_and_plans):
            for _ in range(plan[gph]):
                if idx[li] < len(lst):
                    flat.append(lst[idx[li]])
                    idx[li] += 1
                    cnt += 1
        per.append(cnt)
    for li, (lst, plan) in enumerate(lists_and_plans):
        assert idx[li] == len(lst), (li, idx[li], len(lst))
    return flat, per


NB1 = int(os.environ.get("AT_NB1", "8"))


def half_step(k, p, n, last, slow_blocks, dma=None, post_qk=None):
    cur = n
    nxt = cur ^ 1
    do_qk = not (last and n == 1)
    e0 = exp_half(k, cur, 0)
    e1 = exp_half(k, cur, 1)
    ea = e0 + e1[:NB1]
    eb = e1[NB1:]
    lists = [(vread(k, p, n), [2, 2, 2, 2, 0, 0, 0, 0]), (ea, spread(len(ea), 8))]
    if dma:
        lists.append((dma, spread(len(dma), 7, 1) + [0]))
    fl, per = merge_fillers(lists, 8)
    if do_qk:
        interleave(k, qk(k, nxt), fl, per)
    else:
        for f in fl:
            f()
    if post_qk:
        post_qk()
    check(k, cur, 0, do_qk, NB1, slow_blocks)
    k.e("s_nop 0")
    pvl = pv(k)
    kr = kread(k, p ^ 1, n) if not last else []
    lists = [(eb, spread(len(eb), 4))]
    if kr:
        lists.append((kr[:4], [1, 1, 1, 1]))
    fl, per = merge_fillers(lists, 4)
    interleave(k, pvl[:4], fl, per)
    check(k, cur, 1, do_qk, 0, slow_blocks)
    k.e("s_nop 0")
    tail = list(kr[4:])
    if do_qk:
        if last:
            tail.append(lambda: mask_code(k, nxt, 1))
        elif n == 1:
            nomask = k.newlabel("nomask")

            def maybe_mask():
                k.e("s_add_u32 s%d, s%d, 1" % (sA, sJ))
                k.e("s_cmp_lg_u32 s%d, s%d" % (sA, sJL))
                k.e("s_cbranch_scc1 %s" % nomask)
                mask_code(k, nxt, 0)
                k.label(nomask)
            tail.append(maybe_mask)
    interleave(k, pvl[4:], tail, [2, 2, 1, 0])


def interval(k, p, last, slow_blocks):
    k.c("==== interval parity %d last=%s" % (p, last))
    if not last:
        skipk = k.newlabel("skipk")
        dk = dma_k(k, p)
        dv = dma_v(k, p ^ 1)

        def dk_all():
            k.e("s_add_u32 s%d, s%d, 2" % (sA, sJ))
            k.e("s_cmp_gt_u32 s%d, s%d" % (sA, sJL))
            k.e("s_cbranch_scc1 %s" % skipk)
            for f in dk:
                f()
            k.label(skipk)
        half_step(k, p, 0, False, slow_blocks, dma=dv + [dk_all])
        half_step(k, p, 1, False, slow_blocks)
        k.lds_drain("vmcnt(0)")
        k.e("s_barrier")
    else:
        nonext = k.newlabel("nonext")
        noq = k.newlabel("noq")

        def next_loads():
            k.e("s_cmp_lg_u32 s%d, 0" % sPhase)
            k.e("s_cbranch_scc1 %s" % nonext)
            k.e("s_mov_b32 s%d, 0" % sKoff)
            k.e("s_mov_b32 s%d, 0" % sVoff)
            for f in dma_k(k, p ^ 1) + dma_v(k, p ^ 1):
                f()
            k.label(nonext)

        def next_q():
            k.e("s_cmp_lg_u32 s%d, 0" % sPhase)
            k.e("s_cbranch_scc1 %s" % noq)
            q_loads(k, sPi)
            k.label(noq)
        half_step(k, p, 0, True, slow_blocks, dma=[next_loads], post_qk=next_q)
        half_step(k, p, 1, True, slow_blocks)
        k.e("s_mov_b32 s%d, %d" % (sPar, p ^ 1))


def first_subtile(k, p):
    for f in kread(k, p, 0):
        f()
    for f in qk(k, 0, zero_c=True):
        f()
    for f in kread(k, p, 1):
        f()
    k.e("s_nop 7")
    lab = k.newlabel("nomask0")
    k.e("s_cmp_lg_u32 s%d, 0" % sJL)
    k.e("s_cbranch_scc1 %s" % lab)
    mask_code(k, 0, 0)
    k.label(lab)
    max_code(k, 0)
    for r in range(16):
        k.e("v_sub_f32 v%d, v%d, v%d" % (vS[0] + r, vS[0] + r, vMax))
    for r in range(16):
        k.e("v_sub_f32 v%d, 0, v%d" % (vNm + r, vMax))
    k.lds_drain("vmcnt(0)")
    k.e("s_barrier")
    l1, l2 = k.newlabel("ph1"), k.newlabel("ph2")
    k.e("s_cmp_lg_u32 s%d, 0" % sPhase)
    k.e("s_cbranch_scc1 %s" % l1)
    flag_store(k, sTask, 0)
    k.e("s_branch %s" % l2)
    k.label(l1)
    k.e("s_sub_u32 s%d, 15, s%d" % (sA, sPi))
    k.e("s_lshl_b32 s%d, s%d, 5" % (sA, sA))
    k.e("s_add_u32 s%d, s%d, s%d" % (sA, sA, sHead))

    def chk_load():
        k.e("v_lshrrev_b32 v%d, 2, v%d" % (vChk + 1, vL16))
        k.e("buffer_load_dword v%d, v%d, %s, 0 offen sc1" % (vChk, vChk + 1, sr(sFl, 4)))
    flag_store(k, sA, 256, also=chk_load)
    k.label(l2)


sTask = 38
sFl = 52
WS_FLAGS = 83 * MB
CHKW = 163840 - 64
vChk = 240


def flag_store(k, soff_reg, imm, also=None):
    lab = k.newlabel("nofl")
    k.e("s_cmp_lg_u32 s%d, 0" % sWave)
    k.e("s_cbranch_scc1 %s" % lab)
    k.e("v_mov_b32 v%d, 0" % vT2)
    k.e("v_mov_b32 v%d, 1" % vT3)
    k.e("s_mov_b64 exec, 1")
    k.e("buffer_store_byte v%d, v%d, %s, s%d offen offset:%d sc1" % (vT3, vT2, sr(sFl, 4), soff_reg, imm))
    k.e("s_mov_b64 exec, -1")
    if also:
        also()
    k.label(lab)


def emit_attn(k, slow_blocks):
    k.label("L_at_task")
    k.e("s_load_dwordx2 s[%d:%d], s[0:1], %d" % (sWS, sWS + 1, ARG_WS))
    k.e("s_and_b32 s%d, s%d, 7" % (sA, sTask))
    k.e("s_bfe_u32 s%d, s%d, 0x20003" % (sB, sTask))
    k.e("s_lshl2_add_u32 s%d, s%d, s%d" % (sHead, sA, sB))
    k.e("s_lshr_b32 s%d, s%d, 5" % (sPi, sTask))
    k.e("v_lshrrev_b32 v%d, 6, v0" % vT0)
    k.e("v_and_b32 v%d, 63, v0" % vT1)
    k.e("v_readfirstlane_b32 s%d, v%d" % (sWave, vT0))
    k.e("v_lshlrev_b32 v%d, 4, v%d" % (vL16, vT1))
    k.e("s_nop 1")
    k.e("s_lshr_b32 s%d, s%d, 2" % (sG, sWave))
    k.e("s_and_b32 s%d, s%d, 3" % (sWq, sWave))
    k.e("s_lshl_b32 s%d, s%d, 12" % (sA, sWave))
    k.e("s_mov_b32 s%d, s%d" % (sM0K, sA))
    k.e("s_add_u32 s%d, s%d, 32768" % (sM0K + 1, sA))
    k.e("s_add_u32 s%d, s%d, 65536" % (sM0V, sA))
    k.e("s_add_u32 s%d, s%d, 98304" % (sM0V + 1, sA))
    k.e("v_add_u32 v%d, s%d, v%d" % (vD, sA, vL16))
    k.e("s_sub_u32 s%d, 15, s%d" % (sJL, sPi))
    k.e("s_mov_b32 s%d, 0" % sKoff)
    k.e("s_mov_b32 s%d, 0" % sVoff)
    k.e("s_waitcnt lgkmcnt(0)")
    k.e("s_lshl_b32 s%d, s%d, 19" % (sA, sHead))
    k.e("s_add_u32 s%d, s%d, %d" % (sB, sA, WS_K))
    srd(k, sK, sWS, "s%d" % sB, 512 * 1024)
    k.e("s_add_u32 s%d, s%d, %d" % (sB, sA, WS_Q))
    srd(k, sQ, sWS, "s%d" % sB, 512 * 1024)
    k.e("s_add_u32 s%d, s%d, %d" % (sB, sA, WS_VT))
    srd(k, sV, sWS, "s%d" % sB, 512 * 1024)
    for f in dma_k(k, 0):
        f()
    q_loads(k, sJL)
    for f in dma_v(k, 0) + dma_k(k, 1):
        f()
    srd(k, sO, sWS, WS_AH, 2048 * 7680 * 2)
    srd(k, sFl, sWS, WS_FLAGS, 1024)
    k.e("s_mov_b32 s%d, 0x%08x" % (sT, f32bits(THRESH)))
    k.e("v_mov_b32 v%d, 0x%08x" % (vNeg, f32bits(-1e30)))
    k.e("v_and_b32 v%d, 0x33, v%d" % (vT0, vT1))
    k.e("v_bfe_u32 v%d, v%d, 2, 1" % (vT2, vT1))
    k.e("v_lshl_or_b32 v%d, v%d, 3, v%d" % (vT0, vT2, vT0))
    k.e("v_bfe_u32 v%d, v%d, 3, 1" % (vT2, vT1))
    k.e("v_lshl_or_b32 v%d, v%d, 2, v%d" % (vT0, vT2, vT0))
    k.e("s_lshl_b32 s%d, s%d, 14" % (sA, sG))
    k.e("v_lshl_add_u32 v%d, v%d, 4, s%d" % (vKA, vT0, sA))
    k.e("s_add_u32 s%d, s%d, 65536" % (sB, sA))
    k.e("v_add_u32 v%d, s%d, v%d" % (vVA, sB, vL16))
    k.e("v_and_b32 v%d, 31, v%d" % (vT0, vT1))
    k.e("v_lshrrev_b32 v%d, 5, v%d" % (vT2, vT1))
    k.e("v_lshlrev_b32 v%d, 3, v%d" % (vT2, vT2))
    k.e("v_sub_u32 v%d, v%d, v%d" % (vT0, vT0, vT2))
    k.e("s_lshl_b32 s%d, s%d, 5" % (sA, sWq))
    k.e("s_lshl_b32 s%d, s%d, 6" % (sB, sG))
    k.e("s_sub_u32 s%d, s%d, s%d" % (sA, sA, sB))
    k.e("v_add_u32 v%d, s%d, v%d" % (vThr, sA, vT0))
    k.e("s_mov_b32 s%d, 0" % sPhase)
    k.e("s_mov_b32 s%d, 0" % sPar)
    k.label("L_at_qblock")
    k.e("s_mov_b32 s%d, 0" % sJ)
    for r in range(64):
        k.e("v_mov_b32 v%d, 0" % (vO + r))
    k.e("v_mov_b32 v%d, 0" % vL0)
    k.e("s_waitcnt vmcnt(8)")
    k.e("s_barrier")
    k.e("s_cmp_lg_u32 s%d, 0" % sPar)
    k.e("s_cbranch_scc1 L_at_first1")
    first_subtile(k, 0)
    if DIAG:
        k.e("s_cmp_lg_u32 s%d, 0" % sPhase)
        k.e("s_cbranch_scc1 L_at_st5")
        stamp(k, 3)
        k.e("s_branch L_at_loop")
        k.label("L_at_st5")
        stamp(k, 5)
    k.label("L_at_loop")
    k.e("s_cmp_eq_u32 s%d, s%d" % (sJ, sJL))
    k.e("s_cbranch_scc1 L_at_last0")
    interval(k, 0, False, slow_blocks)
    k.e("s_add_u32 s%d, s%d, 1" % (sJ, sJ))
    k.label("L_at_loop1")
    k.e("s_cmp_eq_u32 s%d, s%d" % (sJ, sJL))
    k.e("s_cbranch_scc1 L_at_last1")
    interval(k, 1, False, slow_blocks)
    k.e("s_add_u32 s%d, s%d, 1" % (sJ, sJ))
    k.e("s_branch L_at_loop")
    k.label("L_at_first1")
    k.ldsq = []
    first_subtile(k, 1)
    stamp(k, 5)
    k.e("s_branch L_at_loop1")
    k.label("L_at_last0")
    k.ldsq = []
    interval(k, 0, True, slow_blocks)
    k.e("s_branch L_at_fin")
    k.label("L_at_last1")
    k.ldsq = []
    interval(k, 1, True, slow_blocks)
    k.label("L_at_fin")
    k.ldsq = []
    if DIAG:
        k.e("s_cmp_lg_u32 s%d, 0" % sPhase)
        k.e("s_cbranch_scc1 L_at_st2")
        stamp(k, 4)
        k.e("s_branch L_at_st3")
        k.label("L_at_st2")
        stamp(k, 2)
        k.label("L_at_st3")
    k.e("v_mov_b32 v%d, v%d" % (vT0, vL0))
    k.e("s_nop 1")
    k.e("v_permlane32_swap_b32 v%d, v%d" % (vT0, vL0))
    k.e("v_add_f32 v%d, v%d, v%d" % (vL1, vL0, vT0))
    k.e("v_sub_f32 v%d, 0, v%d" % (vL0, vNm))
    k.e("s_xor_b32 s%d, s%d, 1" % (sA, sPar))
    k.e("s_lshl_b32 s%d, s%d, 15" % (sA, sA))
    k.e("s_add_u32 s%d, s%d, 65536" % (sB, sA))
    k.e("s_cmp_eq_u32 s%d, 0" % sG)
    k.e("s_cselect_b32 s%d, s%d, %d" % (sMask, sA, XCH))
    k.e("s_cselect_b32 s%d, %d, s%d" % (sMask + 1, XCH, sA))
    k.e("s_lshl_b32 s%d, s%d, 13" % (sA, sWq))
    k.e("s_add_u32 s%d, s%d, s%d" % (sMask, sMask, sA))
    k.e("s_add_u32 s%d, s%d, s%d" % (sMask + 1, sMask + 1, sA))
    k.e("v_add_u32 v%d, s%d, v%d" % (vT1, sMask, vL16))
    k.e("v_add_u32 v%d, s%d, v%d" % (vT3, sMask + 1, vL16))
    k.e("s_lshl_b32 s%d, s%d, 9" % (sA, sWave))
    k.e("s_add_u32 s%d, s%d, s%d" % (sA, sA, sB))
    k.e("v_lshrrev_b32 v%d, 1, v%d" % (vT2, vL16))
    k.e("v_add_u32 v%d, s%d, v%d" % (vT2, sA, vT2))
    k.e("s_cmp_eq_u32 s%d, 0" % sG)
    k.e("s_cbranch_scc1 L_at_send23")
    for i in range(8):
        k.e("ds_write_b128 v%d, %s offset:%d" % (vT1, vr(vO + 4 * i, 4), i * 1024))
    k.e("s_waitcnt lgkmcnt(0)")
    for i in range(32):
        k.e("v_mov_b32 v%d, v%d" % (vO + i, vO + 32 + i))
    k.e("s_branch L_at_sent")
    k.label("L_at_send23")
    for i in range(8):
        k.e("ds_write_b128 v%d, %s offset:%d" % (vT1, vr(vO + 32 + 4 * i, 4), i * 1024))
    k.label("L_at_sent")
    lab = k.newlabel("nochk")
    k.e("s_cmp_eq_u32 s%d, 0" % sPhase)
    k.e("s_cbranch_scc1 %s" % lab)
    k.e("s_cmp_lg_u32 s%d, 0" % sWave)
    k.e("s_cbranch_scc1 %s" % lab)
    k.e("s_waitcnt vmcnt(0)")
    k.e("v_cmp_ne_u32 vcc, 0x01010101, v%d" % vChk)
    k.e("s_ff1_i32_b64 s%d, vcc" % sMask)
    k.e("s_nop 3")
    k.e("v_readlane_b32 s%d, v%d, s%d" % (sMask + 1, vChk, sMask))
    k.e("s_nop 3")
    k.e("s_xor_b32 s%d, s%d, 0x01010101" % (sMask + 1, sMask + 1))
    k.e("s_ff1_i32_b32 s%d, s%d" % (sMask + 1, sMask + 1))
    k.e("s_lshr_b32 s%d, s%d, 3" % (sMask + 1, sMask + 1))
    k.e("s_lshl2_add_u32 s%d, s%d, s%d" % (sMask + 1, sMask, sMask + 1))
    k.e("s_cmp_lt_i32 s%d, 0" % sMask)
    k.e("s_cselect_b32 s%d, -1, s%d" % (sMask + 1, sMask + 1))
    k.e("v_mov_b32 v%d, s%d" % (vChk, sMask + 1))
    k.e("s_lshl_b32 s%d, s%d, 15" % (sMask, sPar))
    k.e("v_mov_b32 v%d, s%d" % (vChk + 1, sMask))
    k.e("ds_write_b32 v%d, v%d" % (vChk + 1, vChk))
    k.label(lab)
    k.e("s_waitcnt lgkmcnt(0)")
    k.e("s_barrier")
    k.e("s_lshl_b32 s%d, s%d, 15" % (sMask, sPar))
    k.e("v_mov_b32 v%d, s%d" % (vChk + 1, sMask))
    k.e("ds_read_b32 v%d, v%d" % (vChk, vChk + 1))
    k.e("ds_write_b64 v%d, v[%d:%d]" % (vT2, vL0, vL1))
    for i in range(8):
        k.e("ds_read_b128 %s, v%d offset:%d" % (vr(vO + 32 + 4 * i, 4), vT3, i * 1024))
    k.e("v_xor_b32 v%d, 0x800, v%d" % (vT2, vT2))
    k.e("s_waitcnt lgkmcnt(0)")
    k.e("s_barrier")
    k.e("ds_read_b64 v[%d:%d], v%d" % (vE, vE + 1, vT2))
    k.e("s_waitcnt lgkmcnt(0)")
    k.e("v_max_f32 v%d, v%d, v%d" % (vT0, vL0, vE))
    k.e("v_sub_f32 v%d, v%d, v%d" % (vL0, vL0, vT0))
    k.e("v_sub_f32 v%d, v%d, v%d" % (vE, vE, vT0))
    k.e("v_exp_f32 v%d, v%d" % (vL0, vL0))
    k.e("v_exp_f32 v%d, v%d" % (vE, vE))
    k.e("s_nop 0")
    k.e("v_mul_f32 v%d, v%d, v%d" % (vL1, vL1, vL0))
    k.e("v_fmac_f32 v%d, v%d, v%d" % (vL1, vE + 1, vE))
    k.e("v_rcp_f32 v%d, v%d" % (vL1, vL1))
    k.e("s_nop 0")
    k.e("v_mul_f32 v%d, v%d, v%d" % (vL0, vL0, vL1))
    k.e("v_mul_f32 v%d, v%d, v%d" % (vE, vE, vL1))
    for i in range(32):
        k.e("v_mul_f32 v%d, v%d, v%d" % (vO + i, vO + i, vL0))
    for i in range(32):
        k.e("v_fmac_f32 v%d, v%d, v%d" % (vO + i, vO + 32 + i, vE))
    k.e("s_lshl2_add_u32 s%d, s%d, s%d" % (sA, sJL, sWq))
    k.e("s_mul_i32 s%d, s%d, 480" % (sA, sA))
    k.e("s_lshl3_add_u32 s%d, s%d, s%d" % (sA, sHead, sA))
    k.e("s_lshl2_add_u32 s%d, s%d, s%d" % (sA, sG, sA))
    k.e("s_lshl_b32 s%d, s%d, 10" % (sA, sA))
    for i in range(4):
        src = vO + 8 * i
        tq = vKf + 4 * i
        for c in range(4):
            k.e("v_cvt_pk_bf16_f32 v%d, v%d, v%d" % (tq + c, src + 2 * c, src + 2 * c + 1))
        k.e("s_nop 1")
        k.e("v_permlane32_swap_b32 v%d, v%d" % (tq, tq + 2))
        k.e("v_permlane32_swap_b32 v%d, v%d" % (tq + 1, tq + 3))
        k.e("buffer_store_dwordx4 %s, v%d, %s, s%d offen offset:%d %s" % (vr(tq, 4), vL16, sr(sO, 4), sA, i * 1024, STF))
    k.e("s_cmp_lg_u32 s%d, 0" % sPhase)
    k.e("s_cbranch_scc1 L_at_done")
    k.e("s_mov_b32 s%d, 1" % sPhase)
    k.e("s_mov_b32 s%d, s%d" % (sJL, sPi))
    k.e("s_xor_b32 s%d, s%d, 1" % (sA, sPar))
    k.e("s_lshl_b32 s%d, s%d, 15" % (sA, sA))
    k.e("s_add_u32 m0, s%d, s%d" % (sM0K, sA))
    k.e("s_nop 0")
    for j in range(4):
        k.e("buffer_load_dwordx4 v%d, %s, s%d offen offset:%d lds" % (vD, sr(sK, 4), sKoff, 1024 * j))
    k.e("s_add_u32 s%d, s%d, 32768" % (sKoff, sKoff))
    k.e("s_branch L_at_qblock")
    k.label("L_at_done")
```

```python
import math, struct
from asmlib import *
from gemm import *

MB = 1 << 20
WS_XN = 0
WS_Q = 4 * MB
WS_K = 20 * MB
WS_VT = 36 * MB
WS_AH = 52 * MB
ARG_X, ARG_CKV, ARG_WQ, ARG_WUK, ARG_WUV, ARG_WO, ARG_BX, ARG_W1, ARG_B1, ARG_W2, ARG_B2, ARG_OUT, ARG_DBG, ARG_WS = [8 * i for i in range(14)]
QSCALE = math.log2(math.e) / math.sqrt(128.0)
GELU_C1 = -2.0 * math.sqrt(2.0 / math.pi) * math.log2(math.e)
GELU_C2 = GELU_C1 * 0.044715
TRFLAGS = os.environ.get("TRFLAGS", " sc1")
FORCE_HELP = int(os.environ.get("FORCE_HELP", "0"))


def f32bits(x):
    return struct.unpack("<I", struct.pack("<f", x))[0]


def srd(k, d, base, off, nbytes):
    k.e("s_add_u32 s%d, s%d, %s" % (d, base, off))
    k.e("s_addc_u32 s%d, s%d, 0" % (d + 1, base + 1))
    k.e("s_mov_b32 s%d, %s" % (d + 2, nbytes))
    k.e("s_mov_b32 s%d, 0x00020000" % (d + 3))


sX, sCKV = 40, 42
sWUK, sWUV = 44, 46
sWS = 48
sWQ, sW1, sB1 = 50, 52, 54
sWO, sW2 = 56, 58
sDBG = 60
sMtA, sNtA, sIsV = 62, 63, 96
sMtB, sNtB, sIsH = 97, 98, 99
sStA = 100
sLnX, sLnO = 36, 80
sPf = 84
sBs = 56
sDb = 88
sRow = 34
sPfOff, sPfStep = 92, 93
sBias = 94
PFD = 3
sTa, sTb = 35, 101
vBias = 208
vPk = 240
vRaw = 248
vLn = 208


def wave_sum(k, v, t):
    out = []
    for ctl in ["quad_perm:[1,0,3,2]", "quad_perm:[2,3,0,1]", "row_half_mirror", "row_mirror"]:
        out.append(lambda: k.e("s_nop 1"))
        out.append(lambda ctl=ctl: k.e("v_add_f32_dpp v%d, v%d, v%d %s row_mask:0xf bank_mask:0xf" % (v, v, v, ctl)))
    for sw in ["v_permlane16_swap_b32", "v_permlane32_swap_b32"]:
        out.append(lambda: k.e("v_mov_b32 v%d, v%d" % (t, v)))
        out.append(lambda: k.e("s_nop 1"))
        out.append(lambda sw=sw: k.e("%s v%d, v%d" % (sw, t, v)))
        out.append(lambda: k.e("v_add_f32 v%d, v%d, v%d" % (v, v, t)))
    return out


def ln_load(k, g):
    t = g.vTmp
    k.e("s_lshl_b32 s%d, s%d, 11" % (sTa, sRow))
    k.e("v_lshlrev_b32 v%d, 1, v%d" % (t, g.vLane16))
    k.vm_op("buffer_load_dwordx4 %s, v%d, %s, s%d offen" % (vr(vRaw, 4), t, sr(sLnX, 4), sTa), "ln")
    k.vm_op("buffer_load_dwordx4 %s, v%d, %s, s%d offen offset:16" % (vr(vRaw + 4, 4), t, sr(sLnX, 4), sTa), "ln")


def ln_steps(k, g, via_lds=False):
    X = vLn
    S, V, T = vLn + 16, vLn + 17, vLn + 18
    D = vLn + 19
    A = vLn + 20
    o = []
    E = lambda s: (lambda: k.e(s))
    o.append(lambda: k.vm_need(["ln"]))
    for i in range(8):
        o.append(E("v_lshlrev_b32 v%d, 16, v%d" % (X + 2 * i, vRaw + i)))
        o.append(E("v_and_b32 v%d, 0xffff0000, v%d" % (X + 2 * i + 1, vRaw + i)))
    o.append(E("v_add_f32 v%d, v%d, v%d" % (S, X, X + 1)))
    o.append(E("v_add_f32 v%d, v%d, v%d" % (T, X + 2, X + 3)))
    for i in range(4, 16, 2):
        o.append(E("v_add_f32 v%d, v%d, v%d" % (S, S, X + i)))
        o.append(E("v_add_f32 v%d, v%d, v%d" % (T, T, X + i + 1)))
    o.append(E("v_add_f32 v%d, v%d, v%d" % (S, S, T)))
    o += wave_sum(k, S, T)
    o.append(E("v_mul_f32 v%d, 0x%08x, v%d" % (S, f32bits(1.0 / 1024), S)))
    o.append(E("v_sub_f32 v%d, v%d, v%d" % (D, X, S)))
    o.append(E("v_mul_f32 v%d, v%d, v%d" % (V, D, D)))
    for i in range(1, 16):
        o.append(E("v_sub_f32 v%d, v%d, v%d" % (D, X + i, S)))
        o.append(E("v_fmac_f32 v%d, v%d, v%d" % (V, D, D)))
    o += wave_sum(k, V, T)
    o.append(E("v_mul_f32 v%d, 0x%08x, v%d" % (V, f32bits(1.0 / 1024), V)))

    def rbf(r):
        return [E("v_cvt_pk_bf16_f32 v%d, v%d, v%d" % (r, r, r)), E("v_lshlrev_b32 v%d, 16, v%d" % (r, r))]
    o += rbf(S) + rbf(V)
    o.append(E("v_add_f32 v%d, 0x%08x, v%d" % (V, f32bits(1e-5), V)))
    o += rbf(V)
    o.append(E("v_sqrt_f32 v%d, v%d" % (V, V)))
    o.append(E("s_nop 0"))
    o += rbf(V)
    o.append(E("v_rcp_f32 v%d, v%d" % (V, V)))
    for i in range(16):
        o.append(E("v_sub_f32 v%d, v%d, v%d" % (X + i, X + i, S)))
    for i in range(8):
        o.append(E("v_cvt_pk_bf16_f32 v%d, v%d, v%d" % (vRaw + i, X + 2 * i, X + 2 * i + 1)))
    for i in range(8):
        o.append(E("v_lshlrev_b32 v%d, 16, v%d" % (X + 2 * i, vRaw + i)))
        o.append(E("v_and_b32 v%d, 0xffff0000, v%d" % (X + 2 * i + 1, vRaw + i)))
    for i in range(16):
        o.append(E("v_mul_f32 v%d, v%d, v%d" % (X + i, X + i, V)))
    for i in range(8):
        o.append(E("v_cvt_pk_bf16_f32 v%d, v%d, v%d" % (vRaw + i, X + 2 * i, X + 2 * i + 1)))
    if via_lds:
        def wr():
            k.e("s_lshl_b32 s%d, s%d, 4" % (sTa, g.sWave))
            k.e("s_add_u32 s%d, s%d, %d" % (sTa, sTa, g.lds_bytes))
            k.e("v_lshl_add_u32 v%d, v%d, 4, s%d" % (A, g.vLane16, sTa))
            k.lds_op("ds_write_b128 v%d, %s" % (A, vr(vRaw, 4)))
            k.lds_op("ds_write_b128 v%d, %s offset:128" % (A, vr(vRaw + 4, 4)))
        o.append(wr)
        return o
    o.append(E("v_lshlrev_b32 v%d, 6, v%d" % (A, g.vLane16)))

    def st():
        k.e("s_lshr_b32 s%d, s%d, 5" % (sTa, sRow))
        k.e("s_lshl_b32 s%d, s%d, 16" % (sTa, sTa))
        k.e("s_and_b32 s%d, s%d, 31" % (sTb, sRow))
        k.e("s_lshl4_add_u32 s%d, s%d, s%d" % (sTa, sTb, sTa))
        k.vm_op("buffer_store_dwordx4 %s, v%d, %s, s%d offen sc1" % (vr(vRaw, 4), A, sr(sLnO, 4), sTa), "lnst")
        k.vm_op("buffer_store_dwordx4 %s, v%d, %s, s%d offen offset:512 sc1" % (vr(vRaw + 4, 4), A, sr(sLnO, 4), sTa), "lnst")
        k.e("s_nop 1")
    o.append(st)
    return o


def ln_store_steps(k, g):
    A, B = vLn + 20, vLn + 21
    o = []

    def rd():
        k.e("s_lshl_b32 s%d, s%d, 11" % (sTa, g.sWave))
        k.e("s_add_u32 s%d, s%d, %d" % (sTa, sTa, g.lds_bytes))
        k.e("v_add_u32 v%d, s%d, v%d" % (A, sTa, g.vLane16))
        k.lds_op("ds_read_b128 %s, v%d" % (vr(vRaw, 4), A), rng(vRaw, 4))
        k.lds_op("ds_read_b128 %s, v%d offset:1024" % (vr(vRaw + 4, 4), A), rng(vRaw + 4, 4))
    o.append(rd)

    def addr():
        k.e("v_lshrrev_b32 v%d, 8, v%d" % (A, g.vLane16))
        k.e("v_lshlrev_b32 v%d, 10, v%d" % (A, A))
        k.e("v_bfe_u32 v%d, v%d, 7, 1" % (B, g.vLane16))
        k.e("v_lshl_add_u32 v%d, v%d, 9, v%d" % (A, B, A))
        k.e("v_and_b32 v%d, 0x70, v%d" % (B, g.vLane16))
        k.e("v_add_u32 v%d, v%d, v%d" % (A, A, B))
        k.e("s_lshr_b32 s%d, s2, 2" % sTa)
        k.e("s_lshl_b32 s%d, s%d, 16" % (sTa, sTa))
        k.e("s_lshl_b32 s%d, s%d, 13" % (sTb, g.sWave))
        k.e("s_add_u32 s%d, s%d, s%d" % (sTa, sTa, sTb))
        k.e("s_and_b32 s%d, s2, 3" % sTb)
        k.e("s_lshl_b32 s%d, s%d, 7" % (sTb, sTb))
        k.e("s_add_u32 s%d, s%d, s%d" % (sTa, sTa, sTb))
        k.e("s_add_u32 s%d, s%d, 4096" % (sTb, sTa))
    o.append(addr)

    def st():
        k.lds_need(rng(vRaw, 8))
        k.vm_op("buffer_store_dwordx4 %s, v%d, %s, s%d offen sc1" % (vr(vRaw, 4), A, sr(sLnO, 4), sTa), "lnst")
        k.vm_op("buffer_store_dwordx4 %s, v%d, %s, s%d offen sc1" % (vr(vRaw + 4, 4), A, sr(sLnO, 4), sTb), "lnst")
        k.e("s_nop 1")
    o.append(st)
    return o


def split_list(lst, n):
    m = len(lst)
    return [lst[(i * m) // n:((i + 1) * m) // n] for i in range(n)]


def gen_proj_kernel():
    k = KB()
    g = GemmCfg(vRB=14, vTmp=16, vF=24)
    g.sVW = 3
    assert g.vAcc == 80 and g.nvgpr == 208
    jK = Job("row", True, 4, 8, 16, 17, 33, 26, 29, 30, 2, 6, 10, "K")
    jV = Job("row", False, 4, 8, 16, 17, 33, 26, 29, 30, 2, 6, 10, "V")
    jB = Job("frag", True, 64, 68, 72, 73, 74, 75, 76, 77, 72, 73, 77, "B")
    for j in (jK, jV):
        j.sAoff2, j.sBoff2 = 18, 22
    jB.sAoff2, jB.sBoff2 = 25, 94
    vPf, vDummy, vPoll = g.vTmp + 5, g.vTmp + 6, g.vTmp + 7
    PFS = int(os.environ.get("PFS", "6"))
    NCARRY = int(os.environ.get("NCARRY", "8"))
    k.e("s_cmp_ge_u32 s2, 256")
    k.e("s_cbranch_scc1 L_pj_end")
    k.vst = 78
    stamp(k, 0); stamp_rt(k, 1)
    k.e("s_load_dwordx4 s[40:43], s[0:1], 0")
    k.e("s_load_dwordx4 s[44:47], s[0:1], 24")
    k.e("s_load_dwordx2 s[48:49], s[0:1], %d" % ARG_WS)
    k.e("s_load_dwordx2 s[50:51], s[0:1], %d" % ARG_WQ)
    k.e("s_load_dwordx4 s[52:55], s[0:1], %d" % ARG_W1)
    k.e("s_load_dwordx2 s[56:57], s[0:1], %d" % ARG_WO)
    k.e("s_load_dwordx2 s[58:59], s[0:1], %d" % ARG_W2)
    k.e("s_load_dwordx2 s[60:61], s[0:1], %d" % ARG_DBG)
    k.e("s_and_b32 s%d, s2, 7" % sTa)
    k.e("s_bfe_u32 s%d, s2, 0x20003" % sTb)
    k.e("s_lshl2_add_u32 s%d, s%d, s%d" % (sTa, sTa, sTb))
    k.e("s_lshr_b32 s%d, s2, 5" % sMtA)
    k.e("s_and_b32 s%d, s%d, 15" % (sNtA, sTa))
    k.e("s_lshr_b32 s%d, s%d, 4" % (sIsV, sTa))
    k.e("s_movk_i32 s%d, 1024" % jK.sPitchA)
    k.e("s_movk_i32 s%d, 8192" % jK.sPitchB)
    k.e("s_movk_i32 s%d, 128" % jK.sAstep)
    k.e("s_mov_b32 s%d, %d" % (jK.sBstep, 64 * 8192))
    k.e("s_mov_b32 s%d, 0" % jK.sAoff)
    k.e("s_mov_b32 s%d, 0" % jK.sBoff)
    gemm_setup_common(k, g)
    gemm_setup_job(k, g, jK)
    k.e("s_waitcnt lgkmcnt(0)")
    k.e("s_lshl_b32 s%d, s%d, 18" % (sTa, sMtA))
    k.e("s_sub_u32 s%d, %d, s%d" % (sTb, 2048 * 1024, sTa))
    srd(k, jK.sA, sCKV, "s%d" % sTa, "s%d" % sTb)
    k.e("s_cmp_eq_u32 s%d, 0" % sIsV)
    k.e("s_cselect_b32 s78, s%d, s%d" % (sWUK, sWUV))
    k.e("s_cselect_b32 s79, s%d, s%d" % (sWUK + 1, sWUV + 1))
    k.e("s_lshl_b32 s%d, s%d, 9" % (sTa, sNtA))
    k.e("s_sub_u32 s%d, %d, s%d" % (sTb, 512 * 8192, sTa))
    srd(k, jK.sB, 78, "s%d" % sTa, "s%d" % sTb)
    srd(k, sLnX, sX, 0, 4 * MB)
    k.e("s_lshl3_add_u32 s%d, s2, s%d" % (sRow, g.sWave))

    def pf(base, nbytes, off):
        def f():
            srd(k, sPf, base, 0, nbytes)
            k.e("s_mov_b32 s%d, %d" % (sPfOff, off))
            k.e("buffer_load_dword v%d, v%d, %s, s%d offen" % (vDummy, vPf, sr(sPf, 4), sPfOff))
        return f
    PFW = 1024 * 64 << PFS

    def pf_all(base, nbytes):
        return [pf(base, nbytes, o) for o in range(0, nbytes, PFW)]

    k.e("s_and_b32 s%d, s%d, 3" % (sTa, g.sWave))
    k.e("s_lshl2_add_u32 s%d, s2, s%d" % (sTa, sTa))
    k.e("s_lshl_b32 s%d, s%d, %d" % (sTa, sTa, 6 + PFS))
    k.e("v_lshlrev_b32 v%d, %d, v%d" % (vPf, PFS - 4, g.vLane16))
    k.e("v_add_u32 v%d, s%d, v%d" % (vPf, sTa, vPf))
    k.e("s_cmp_ge_u32 s%d, 4" % g.sWave)
    k.e("s_cbranch_scc1 L_pj_startP")
    for s_ in range(2):
        for f in dma_list(k, g, jK, s_, "dma%d" % s_):
            f()
    ln_load(k, g)
    vmqD = list(k.vmq)
    k.e("s_branch L_pj_start2")
    k.label("L_pj_startP")
    k.vmq = []
    ln_load(k, g)
    vmqP = list(k.vmq)
    for f in pf_all(sCKV, 2 * MB) + pf_all(sWUK, 4 * MB) + pf_all(sWUV, 4 * MB):
        f()
        vmqP.append("pf")
    srd(k, sPf, sWS, 83 * MB, 65536)
    k.e("v_mov_b32 v%d, 0" % vPk)
    k.e("v_lshrrev_b32 v%d, 2, v%d" % (vPk + 1, g.vLane16))
    k.e("s_lshl_b32 s%d, s2, 8" % sTa)
    k.e("buffer_store_dword v%d, v%d, %s, s%d offen" % (vPk, vPk + 1, sr(sPf, 4), sTa))
    vmqP.append("z")
    k.label("L_pj_start2")
    srd(k, sLnO, sWS, WS_XN, 4 * MB)
    srd(k, sDb, sDBG, 0, 256)
    k.e("s_sub_u32 s%d, s2, 240" % sTa)
    k.e("s_cmp_lt_u32 s2, 240")
    k.e("s_cselect_b32 s%d, s2, s%d" % (sTa, sTa))
    k.e("s_and_b32 s%d, s%d, 7" % (sTb, sTa))
    k.e("s_lshr_b32 s%d, s%d, 3" % (sTa, sTa))
    k.e("s_mul_i32 s%d, s%d, 30" % (sTb, sTb))
    k.e("s_add_u32 s%d, s%d, s%d" % (sTa, sTa, sTb))
    k.e("s_and_b32 s%d, s%d, 7" % (sMtB, sTa))
    k.e("s_lshr_b32 s%d, s%d, 3" % (sTa, sTa))
    k.e("s_cmp_ge_u32 s%d, 16" % sTa)
    k.e("s_cselect_b32 s%d, 1, 0" % sIsH)
    k.e("s_cselect_b32 s%d, 7, 8" % jB.sPitchB)
    k.e("s_cselect_b32 s%d, 16, 0" % sTb)
    k.e("s_sub_u32 s%d, s%d, s%d" % (sNtB, sTa, sTb))
    k.e("s_lshl_b32 s%d, s%d, 10" % (jB.sPitchB, jB.sPitchB))
    k.e("s_mov_b32 s%d, 65536" % jB.sPitchA)
    k.e("s_movk_i32 s%d, 4096" % jB.sAstep)
    k.e("s_lshl_b32 s%d, s%d, 6" % (jB.sBstep, jB.sPitchB))
    k.e("s_mov_b32 s%d, 0" % jB.sAoff)
    k.e("s_mov_b32 s%d, 0" % jB.sBoff)
    gemm_setup_job(k, g, jB)
    k.e("s_lshl_b32 s%d, s%d, 19" % (sTa, sMtB))
    k.e("s_sub_u32 s%d, %d, s%d" % (sTb, 4 * MB, sTa))
    k.e("s_add_u32 s%d, s%d, %d" % (sTa, sTa, WS_XN))
    srd(k, jB.sA, sWS, "s%d" % sTa, "s%d" % sTb)
    k.e("s_cmp_eq_u32 s%d, 0" % sIsH)
    k.e("s_cselect_b32 s78, s%d, s%d" % (sWQ, sW1))
    k.e("s_cselect_b32 s79, s%d, s%d" % (sWQ + 1, sW1 + 1))
    k.e("s_lshl_b32 s%d, s%d, 9" % (sTa, sNtB))
    k.e("s_lshl_b32 s%d, s%d, 10" % (sTb, jB.sPitchB))
    k.e("s_sub_u32 s%d, s%d, s%d" % (sTb, sTb, sTa))
    srd(k, jB.sB, 78, "s%d" % sTa, "s%d" % sTb)
    k.e("s_lshr_b32 s%d, s%d, 1" % (sTa, g.sWn))
    k.e("s_lshl1_add_u32 s%d, s%d, s%d" % (sTa, sNtA, sTa))
    k.e("s_lshl_b32 s%d, s%d, 19" % (sStA, sTa))
    k.e("s_lshl_b32 s%d, s%d, 3" % (sTa, sMtA))
    k.e("s_lshl2_add_u32 s%d, s%d, s%d" % (sTa, g.sWm, sTa))
    k.e("s_lshl_b32 s%d, s%d, 13" % (sTa, sTa))
    k.e("s_add_u32 s%d, s%d, s%d" % (sStA, sStA, sTa))
    k.e("s_and_b32 s%d, s%d, 1" % (sTa, g.sWn))
    k.e("s_lshl_b32 s%d, s%d, 12" % (sTa, sTa))
    k.e("s_add_u32 s%d, s%d, s%d" % (sStA, sStA, sTa))
    k.e("s_lshl_b32 s%d, s%d, 24" % (sTa, sIsV))
    k.e("s_add_u32 s%d, s%d, %d" % (sTa, sTa, WS_K))
    srd(k, g.sO, sWS, "s%d" % sTa, 16 * MB)

    def signal():
        lab = k.newlabel("nosig")
        k.e("s_cmp_lg_u32 s%d, 4" % g.sWave)
        k.e("s_cbranch_scc1 %s" % lab)
        if FORCE_HELP:
            k.e("s_and_b32 s%d, s2, 15" % sTa)
            k.e("s_cmp_eq_u32 s%d, 3" % sTa)
            k.e("s_cbranch_scc1 %s" % lab)
        k.e("v_mov_b32 v%d, s2" % g.vTmp)
        k.e("v_mov_b32 v%d, 1" % (g.vTmp + 1))
        k.e("s_mov_b64 exec, 1")
        k.e("buffer_store_byte v%d, v%d, %s, 0 offen sc1" % (g.vTmp + 1, g.vTmp, sr(sDb, 4)))
        k.e("s_mov_b64 exec, -1")
        k.label(lab)
        k.vmq.append("sig")

    def bias_loads():
        out = []

        def setup():
            k.e("s_lshl_b32 s%d, s%d, 9" % (sTa, sNtB))
            k.e("s_lshl_b32 s%d, s%d, 7" % (sTb, g.sWn))
            k.e("s_add_u32 s%d, s%d, s%d" % (sTa, sTa, sTb))
            k.e("s_sub_u32 s%d, %d, s%d" % (sTb, 3584 * 2, sTa))
            k.e("s_cmp_eq_u32 s%d, 0" % sIsH)
            k.e("s_cselect_b32 s%d, 0, s%d" % (sTb, sTb))
            k.e("s_cselect_b32 s%d, 0, s%d" % (sTa, sTa))
            srd(k, sLnX, sB1, "s%d" % sTa, "s%d" % sTb)
            k.e("v_bfe_u32 v%d, v0, 5, 1" % vPoll)
            k.e("v_lshlrev_b32 v%d, 3, v%d" % (vPoll, vPoll))
        out.append(setup)
        for tn in range(2):
            for gq in range(4):
                out.append(lambda tn=tn, gq=gq: k.vm_op("buffer_load_dwordx2 %s, v%d, %s, 0 offen offset:%d" % (vr(vPk + (tn * 4 + gq) * 2, 2), vPoll, sr(sLnX, 4), tn * 64 + gq * 16), "bias"))
        return out

    def bias_unpack():
        out = [lambda: k.vm_need(["bias"])]
        for tn in range(2):
            for r in range(16):
                src = vPk + (tn * 4 + (r >> 2)) * 2 + ((r & 3) >> 1)
                d = vBias + 16 * tn + r
                if r & 1:
                    out.append(lambda d=d, src=src: k.e("v_and_b32 v%d, 0xffff0000, v%d" % (d, src)))
                else:
                    out.append(lambda d=d, src=src: k.e("v_lshlrev_b32 v%d, 16, v%d" % (d, src)))
        return out

    def poll_issue():
        k.e("v_lshrrev_b32 v%d, 2, v%d" % (g.vTmp, g.vLane16))
        k.vm_op("buffer_load_dword v%d, v%d, %s, 0 offen sc1" % (vPoll, g.vTmp, sr(sDb, 4)), "poll")

    slow = []

    def poll_check():
        lab, back = k.newlabel("pollslow"), k.newlabel("pollback")
        k.e("v_cmp_ne_u32 vcc, 0x01010101, v%d" % vPoll)
        k.e("s_cbranch_vccnz %s" % lab)
        k.label(back)
        slow.append((lab, back))

    def trk(f):
        def h():
            f()
            k.vmq.append("pf")
        return h

    quads = [208 + 4 * i for i in range(12)] + [2, 6, 10, 16]

    def kvstore(i):
        def f():
            tm, r = i // 4, i % 4
            k.vm_op("buffer_store_dwordx4 %s, v%d, %s, s%d offen offset:%d%s" % (vr(quads[i], 4), g.vLane16, sr(g.sO, 4), sStA, r * 1024, TRFLAGS), "st")
            if r == 3:
                k.e("s_add_u32 s%d, s%d, 8192" % (sStA, sStA))
        return f

    stamp(k, 2)
    k.e("s_cmp_ge_u32 s%d, 4" % g.sWave)
    k.e("s_cbranch_scc1 L_pj_roleP")
    for role in ("D", "P"):
        D = role == "D"
        if not D:
            k.label("L_pj_roleP")
        k.ldsq = []
        k.vmq = list(vmqD if D else vmqP)
        if D:
            k.vm_need(["dma0"])
        k.e("s_barrier")
        stamp(k, 3)
        state0 = (list(k.ldsq), list(k.vmq))
        k.e("s_cmp_eq_u32 s%d, 0" % sIsV)
        k.e("s_cbranch_scc0 L_pj_V%s" % role)
        end_state = None
        pfB = [trk(f) for f in pf_all(sWQ, 8 * MB) + pf_all(sW1, 1024 * 7168)]
        pfB = pfB[0::2] + pfB[1::2] if len(pfB) == 4 else pfB
        pfO = [trk(f) for f in pf_all(sWO, 8 * MB) + pf_all(sW2, 3584 * 2048)]
        for jA in (jK, jV):
            if jA is jV:
                k.label("L_pj_V%s" % role)
                k.ldsq, k.vmq = list(state0[0]), list(state0[1])
            for f in read_list(k, g, jA, 0, 0, 0):
                f()
            lnp = split_list(ln_steps(k, g, via_lds=True), 6)
            lns = ln_store_steps(k, g)
            carry = []
            pfsplit = split_list(pfB, 4)
            for t in range(8):
                extra = {}
                post = None
                need = ["dma%d" % (t + 1)]
                if t == 0:
                    extra = {0: lnp[0], 1: lnp[1], 2: lnp[2]}
                elif t == 1:
                    extra = {0: lnp[3], 1: lnp[4], 2: lnp[5]}
                elif t == 2:
                    extra = {0: lns[0:2], 1: lns[2:3]}
                elif t == 3:
                    need.append("lnst")
                    if not D:
                        post = signal
                elif t == 5 and D:
                    extra = {2: [poll_issue]}
                elif t == 6 and D:
                    need.append("poll")
                    post = poll_check
                if not D and 3 <= t < 7:
                    extra[3] = pfsplit[t - 3]
                jd = (jA if t < 6 else jB) if D else None
                jn = jA if t < 7 else jB
                carry = gemm_body(k, g, t % 2, jA, jn, jd, need, "dma%d" % (t + 2), extra=extra,
                                  cinit=(lambda tm, tn: "0") if t == 0 else None, post_barrier=post,
                                  carry=carry, ncarry=NCARRY if D else 0)
            st = (list(k.ldsq), list(k.vmq))
            if end_state is None:
                end_state = st
                k.e("s_branch L_pj_T%s" % role)
            else:
                assert st == end_state
        k.label("L_pj_T%s" % role)
        if DIAG:
            stamp(k, 5)
        cnt = [0]

        def pre(tm, tn):
            for p in range(2):
                pack_only(k, g.acc(tm, tn) + 8 * p, quads[cnt[0]])
                cnt[0] += 1
        pfsplit = split_list(pfO, 8)
        for t in range(8, 24):
            last = t == 23
            ex = {1: [kvstore(t - 8)]}
            if not D and 9 <= t < 17:
                ex[3] = pfsplit[t - 9]
            if t == 20:
                ex[0] = bias_loads()
            if t == 21:
                bu = split_list(bias_unpack(), 3)
                ex[0] = bu[0]; ex[1] = ex[1] + bu[1]; ex[2] = bu[2]
            carry = gemm_body(k, g, t % 2, jB, None if last else jB, jB if (t < 22 and D) else None, ["dma%d" % (t + 1)], "dma%d" % (t + 2), extra=ex,
                              cinit=(lambda tm, tn: "0") if t == 8 else None, pre=pre if t == 8 else None,
                              carry=carry, ncarry=NCARRY if D else 0)
            if t == 8:
                cont = k.newlabel("cont")
                k.e("s_cmp_lt_u32 s2, 240")
                k.e("s_cbranch_scc1 %s" % cont)
                sv = (list(k.ldsq), list(k.vmq))
                for i in range(1, 16):
                    kvstore(i)()
                k.e("s_branch L_pj_flush")
                k.label(cont)
                k.ldsq, k.vmq = sv
        if D:
            k.e("s_branch L_pj_epi")
    k.label("L_pj_epi")
    k.e("s_nop 15")
    stamp(k, 4)
    k.e("s_cmp_eq_u32 s%d, 0" % sIsH)
    k.e("s_cbranch_scc0 L_pj_H")
    srd(k, g.sO, sWS, WS_Q, 16 * MB)
    k.e("s_lshr_b32 s%d, s%d, 1" % (sTa, g.sWn))
    k.e("s_lshl1_add_u32 s%d, s%d, s%d" % (sTa, sNtB, sTa))
    k.e("s_lshl_b32 s%d, s%d, 19" % (sStA, sTa))
    k.e("s_lshl_b32 s%d, s%d, 3" % (sTa, sMtB))
    k.e("s_lshl2_add_u32 s%d, s%d, s%d" % (sTa, g.sWm, sTa))
    k.e("s_lshl_b32 s%d, s%d, 13" % (sTa, sTa))
    k.e("s_add_u32 s%d, s%d, s%d" % (sStA, sStA, sTa))
    k.e("s_and_b32 s%d, s%d, 1" % (sTa, g.sWn))
    k.e("s_lshl_b32 s%d, s%d, 12" % (sTa, sTa))
    k.e("s_add_u32 s%d, s%d, s%d" % (sStA, sStA, sTa))
    k.e("s_mov_b32 s78, 0x%08x" % f32bits(QSCALE))
    k.e("s_mov_b32 s79, 0x%08x" % f32bits(QSCALE))
    tq = 0
    for tm in range(4):
        for tn in range(2):
            for p in range(2):
                src = g.acc(tm, tn) + 8 * p
                for i in range(4):
                    k.e("v_pk_mul_f32 %s, %s, s[78:79]" % (vr(src + 2 * i, 2), vr(src + 2 * i, 2)))
                pack_store(k, g, src, vPk + 4 * (tq % 4), sStA, (tn * 2 + p) * 1024)
                tq += 1
        if tm < 3:
            k.e("s_add_u32 s%d, s%d, 8192" % (sStA, sStA))
    k.e("s_branch L_pj_flush")
    k.label("L_pj_H")
    srd(k, g.sO, sWS, WS_AH, 2048 * 7680 * 2)
    k.e("s_lshl_b32 s%d, s%d, 3" % (sTa, sMtB))
    k.e("s_lshl2_add_u32 s%d, s%d, s%d" % (sTa, g.sWm, sTa))
    k.e("s_mul_i32 s%d, s%d, 480" % (sTa, sTa))
    k.e("s_lshl_b32 s%d, s%d, 4" % (sStA, sNtB))
    k.e("s_add_u32 s%d, s%d, s%d" % (sStA, sStA, sTa))
    k.e("s_lshl2_add_u32 s%d, s%d, s%d" % (sStA, g.sWn, sStA))
    k.e("s_add_u32 s%d, s%d, 256" % (sStA, sStA))
    k.e("s_lshl_b32 s%d, s%d, 10" % (sStA, sStA))
    k.e("s_mov_b32 s78, 0x%08x" % f32bits(GELU_C2))
    k.e("s_mov_b32 s79, 0x%08x" % f32bits(GELU_C2))
    k.e("v_mov_b32 v%d, 0x%08x" % (g.vTmp, f32bits(GELU_C1)))
    k.e("v_mov_b32 v%d, 0x%08x" % (g.vTmp + 1, f32bits(GELU_C1)))
    k.e("v_mov_b32 v%d, 1.0" % (g.vTmp + 2))
    k.e("v_mov_b32 v%d, 1.0" % (g.vTmp + 3))
    c1 = vr(g.vTmp, 2)
    one2 = vr(g.vTmp + 2, 2)
    tq = 0
    for tm in range(4):
        for tn in range(2):
            for p in range(2):
                src = g.acc(tm, tn) + 8 * p
                tb = g.vF + 8 * (tq % 2)
                for i in range(4):
                    k.e("v_pk_add_f32 %s, %s, %s" % (vr(src + 2 * i, 2), vr(src + 2 * i, 2), vr(vBias + 16 * tn + 8 * p + 2 * i, 2)))
                for i in range(4):
                    k.e("v_pk_mul_f32 %s, %s, %s" % (vr(tb + 2 * i, 2), vr(src + 2 * i, 2), vr(src + 2 * i, 2)))
                for i in range(4):
                    k.e("v_pk_fma_f32 %s, %s, s[78:79], %s" % (vr(tb + 2 * i, 2), vr(tb + 2 * i, 2), c1))
                for i in range(4):
                    k.e("v_pk_mul_f32 %s, %s, %s" % (vr(tb + 2 * i, 2), vr(tb + 2 * i, 2), vr(src + 2 * i, 2)))
                for i in range(8):
                    k.e("v_exp_f32 v%d, v%d" % (tb + i, tb + i))
                for i in range(4):
                    k.e("v_pk_add_f32 %s, %s, %s" % (vr(tb + 2 * i, 2), vr(tb + 2 * i, 2), one2))
                for i in range(8):
                    k.e("v_rcp_f32 v%d, v%d" % (tb + i, tb + i))
                for i in range(4):
                    k.e("v_pk_mul_f32 %s, %s, %s" % (vr(src + 2 * i, 2), vr(src + 2 * i, 2), vr(tb + 2 * i, 2)))
                pack_store(k, g, src, vPk + 4 * (tq % 4), sStA, (tn * 2 + p) * 1024)
                tq += 1
        if tm < 3:
            k.e("s_add_u32 s%d, s%d, %d" % (sStA, sStA, 480 * 1024))
    k.label("L_pj_flush")
    stamp_flush(k, 0, sWS)
    k.label("L_pj_end")
    k.e("s_endpgm")
    for lab, back in slow:
        spin, helpl, rowl = k.newlabel("spin"), k.newlabel("help"), k.newlabel("rowl")
        k.label(lab)
        k.e("s_mov_b32 s78, 0")
        k.label(spin)
        k.e("v_lshrrev_b32 v%d, 2, v%d" % (g.vTmp, g.vLane16))
        k.e("buffer_load_dword v%d, v%d, %s, 0 offen sc1" % (vPoll, g.vTmp, sr(sDb, 4)))
        k.e("s_waitcnt vmcnt(0)")
        k.e("v_cmp_ne_u32 vcc, 0x01010101, v%d" % vPoll)
        k.e("s_cbranch_vccz %s" % back)
        k.e("s_add_u32 s78, s78, 1")
        k.e("s_cmp_ge_u32 s78, 32")
        k.e("s_cbranch_scc1 %s" % helpl)
        k.e("s_sleep 8")
        k.e("s_branch %s" % spin)
        k.label(helpl)
        k.e("s_ff1_i32_b64 s79, vcc")
        k.e("s_nop 3")
        k.e("v_readlane_b32 s%d, v%d, s79" % (sTa, vPoll))
        k.e("s_nop 3")
        k.e("s_xor_b32 s%d, s%d, 0x01010101" % (sTa, sTa))
        k.e("s_ff1_i32_b32 s%d, s%d" % (sTa, sTa))
        k.e("s_lshr_b32 s%d, s%d, 3" % (sTa, sTa))
        k.e("s_lshl2_add_u32 s79, s79, s%d" % sTa)
        k.e("s_lshl_b32 s%d, s79, 3" % sRow)
        k.e("s_mov_b32 s78, 8")
        k.label(rowl)
        sv = (list(k.ldsq), list(k.vmq))
        k.vmq = []
        ln_load(k, g)
        for f in ln_steps(k, g):
            f()
        k.e("s_add_u32 s%d, s%d, 1" % (sRow, sRow))
        k.e("s_sub_u32 s78, s78, 1")
        k.e("s_cmp_lg_u32 s78, 0")
        k.e("s_cbranch_scc1 %s" % rowl)
        k.e("s_waitcnt vmcnt(0)")
        k.e("v_mov_b32 v%d, s79" % g.vTmp)
        k.e("v_mov_b32 v%d, 1" % (g.vTmp + 1))
        k.e("s_mov_b64 exec, 1")
        k.e("buffer_store_byte v%d, v%d, %s, 0 offen sc1" % (g.vTmp + 1, g.vTmp, sr(sDb, 4)))
        k.e("s_mov_b64 exec, -1")
        k.ldsq, k.vmq = sv
        k.e("s_mov_b32 s78, 31")
        k.e("s_branch %s" % spin)
    return k.text(), 256, g.lds_bytes + 16384
```

```python
from asmlib import *
from gemm import *
import attn as AT
MB = 1 << 20
WS_AH = 52 * MB
WS_PART = 84 * MB
ARG_X, ARG_WO, ARG_W2, ARG_B2, ARG_OUT, ARG_DBG, ARG_WS = 0, 40, 72, 80, 88, 96, 104
FORCE_HELP = int(os.environ.get("FORCE_HELP", "0"))


def srd(k, d, base, off, nbytes):
    k.e("s_add_u32 s%d, s%d, %s" % (d, base, off))
    k.e("s_addc_u32 s%d, s%d, 0" % (d + 1, base + 1))
    k.e("s_mov_b32 s%d, %s" % (d + 2, nbytes))
    k.e("s_mov_b32 s%d, 0x00020000" % (d + 3))


def gen_mega_kernel():
    import proj as PJ
    k = KB()
    slow_blocks = []
    tail_code = []
    k.e("s_cmp_ge_u32 s2, 256")
    k.e("s_cbranch_scc1 L_ao_end")
    k.vst = 78
    stamp(k, 0); stamp_rt(k, 1)
    k.e("s_mov_b32 s%d, s2" % PJ.sWG)
    if FORCE_HELP & 4:
        k.e("s_and_b32 s3, s2, 63")
        k.e("s_cmp_eq_u32 s3, 9")
        k.e("s_cbranch_scc0 L_pj_task")
        k.e("s_add_u32 s2, s2, 1")
    PJ.emit_proj(k, tail_code)
    if DIAG:
        k.e("v_mov_b32 v14, v78")
        k.e("v_mov_b32 v15, v79")
        k.vst = 14
    k.ldsq, k.vmq = [], []
    k.e("s_mov_b32 s%d, s2" % AT.sTask)
    if FORCE_HELP & 2:
        k.e("s_and_b32 s3, s2, 63")
        k.e("s_cmp_eq_u32 s3, 5")
        k.e("s_cbranch_scc0 L_at_task")
        k.e("s_add_u32 s%d, s2, 1" % AT.sTask)
    AT.emit_attn(k, slow_blocks)
    k.e("v_readfirstlane_b32 s3, v%d" % AT.vChk)
    k.e("s_lshl_b32 s63, s%d, 5" % AT.sPi)
    k.e("s_add_u32 s63, s63, s%d" % AT.sHead)
    k.e("s_cmp_lt_i32 s3, 0")
    k.e("s_cbranch_scc1 L_ao_out")
    k.e("s_waitcnt vmcnt(0)")
    k.e("s_barrier")
    AT.flag_store(k, 63, AT.FL_AD)
    k.e("s_mov_b32 s%d, s3" % AT.sTask)
    k.e("s_branch L_at_task")
    k.label("L_ao_out")
    if os.environ.get("ATONLY"):
        stamp_flush(k, 2, AT.sWS)
        k.e("s_endpgm")
    if DIAG:
        k.e("v_mov_b32 v60, v14")
        k.e("v_mov_b32 v61, v15")
        k.vst = 60
    g = GemmCfg(TM=2, TN=2, WM=4, WN=2, NS=3, vRB=14, vTmp=20, vF=28)
    j = Job("frag", True, 4, 8, 16, 17, 33, 26, 29, 30, 2, 6, 10, "O")
    sFl = AT.sFl
    k.ldsq, k.vmq = [], ["st"] * 4
    k.e("s_load_dwordx2 s[40:41], s[0:1], %d" % ARG_WO)
    k.e("s_load_dwordx2 s[42:43], s[0:1], %d" % ARG_W2)
    k.e("s_load_dwordx2 s[44:45], s[0:1], %d" % ARG_DBG)
    k.e("s_bfe_u32 s64, s2, 0x20001")
    k.e("s_and_b32 s65, s2, 1")
    k.e("s_lshr_b32 s66, s2, 6")
    k.e("s_lshl2_add_u32 s65, s65, s66")
    k.e("s_bfe_u32 s66, s2, 0x30003")
    k.e("s_mov_b32 s%d, %d" % (j.sPitchA, 480 * 1024))
    k.e("s_movk_i32 s%d, 2048" % j.sPitchB)
    k.e("s_movk_i32 s%d, 4096" % j.sAstep)
    k.e("s_mov_b32 s%d, %d" % (j.sBstep, 64 * 2048))
    k.e("s_mul_i32 s%d, s64, %d" % (j.sAoff, 14 * 4096))
    k.e("s_add_u32 s%d, s%d, %d" % (j.sAoff, j.sAoff, 64 * 4096))
    k.e("s_mul_i32 s%d, s64, %d" % (j.sBoff, 14 * 64 * 2048))
    gemm_setup_common(k, g)
    gemm_setup_job(k, g, j)
    k.e("s_mul_i32 s67, s65, %d" % (8 * 480 * 1024))
    k.e("s_sub_u32 s68, %d, s67" % (2048 * 7680 * 2))
    k.e("s_add_u32 s67, s67, %d" % WS_AH)
    srd(k, j.sA, AT.sWS, "s67", "s68")
    k.e("s_waitcnt lgkmcnt(0)")
    k.e("s_lshl_b32 s67, s66, 8")
    k.e("s_sub_u32 s68, %d, s67" % (3584 * 2048))
    srd(k, j.sB, 42, "s67", "s68")
    k.e("v_and_b32 v%d, 15, v0" % g.vTmp)
    k.e("v_min_u32 v%d, 13, v%d" % (g.vTmp, g.vTmp))
    k.e("v_lshlrev_b32 v%d, 5, v%d" % (g.vTmp, g.vTmp))
    k.e("s_lshl_b32 s67, s65, 2")
    k.e("s_add_u32 s67, s67, %d" % (AT.FL_QH + 16 * 32))
    k.label("L_ao_hdep")
    k.e("buffer_load_dword v%d, v%d, %s, s67 offen sc1" % (g.vTmp + 1, g.vTmp, sr(sFl, 4)))
    k.e("s_waitcnt vmcnt(0)")
    k.e("v_cmp_ne_u32 vcc, s%d, v%d" % (AT.sNonce, g.vTmp + 1))
    k.e("s_cbranch_vccz L_ao_hok")
    k.e("s_sleep 2")
    k.e("s_branch L_ao_hdep")
    k.label("L_ao_hok")
    k.e("s_barrier")
    for s in range(g.NS):
        for f in dma_list(k, g, j, s, "dma%d" % s):
            f()
    srd(k, 56, AT.sWS, AT.WS_FLAGS + AT.FL_ST, 32768)
    k.vm_need(["dma0"])
    k.e("s_barrier")
    lab = k.newlabel("nofl")
    k.e("s_cmp_lg_u32 s%d, 0" % g.sWave)
    k.e("s_cbranch_scc1 %s" % lab)
    k.e("s_lshl_b32 s63, s63, 2")
    k.e("v_mov_b32 v%d, %d" % (g.vTmp, AT.FL_AD))
    k.e("v_mov_b32 v%d, s%d" % (g.vTmp + 1, AT.sNonce))
    k.e("s_mov_b64 exec, 1")
    k.e("buffer_store_dword v%d, v%d, %s, s63 offen sc1" % (g.vTmp + 1, g.vTmp, sr(sFl, 4)))
    k.e("s_mov_b64 exec, -1")
    k.label(lab)
    stamp(k, 3)
    for f in read_list(k, g, j, 0, 0, 0):
        f()
    vPoll, vPA = g.vTmp + 6, g.vTmp + 7
    slow = []

    def poll_issue():
        k.e("v_bfe_u32 v%d, v0, 3, 1" % vPoll)
        k.e("v_and_b32 v%d, 7, v0" % vPA)
        k.e("v_lshlrev_b32 v%d, 2, v%d" % (vPA, vPA))
        k.e("v_lshl_add_u32 v%d, v%d, 7, v%d" % (vPA, vPoll, vPA))
        k.e("s_lshl_b32 s67, s65, 8")
        k.e("s_lshl_b32 s68, s64, 5")
        k.e("s_add_u32 s67, s67, s68")
        k.e("s_add_u32 s67, s67, %d" % AT.FL_AD)
        k.e("v_add_u32 v%d, s67, v%d" % (vPA, vPA))
        k.vm_op("buffer_load_dword v%d, v%d, %s, 0 offen sc1" % (vPoll, vPA, sr(sFl, 4)), "poll")

    def poll_check_and_switch():
        lab, back = k.newlabel("pslow"), k.newlabel("pback")
        k.e("v_cmp_ne_u32 vcc, s%d, v%d" % (AT.sNonce, vPoll))
        k.e("s_cbranch_vccnz %s" % lab)
        k.label(back)
        slow.append((lab, back))
        k.e("s_mul_i32 s%d, s64, %d" % (j.sAoff, 16 * 4096))
        k.e("s_mul_i32 s%d, s64, %d" % (j.sBoff, 16 * 64 * 2048))
        k.e("s_lshl_b32 s67, s66, 8")
        k.e("s_sub_u32 s68, %d, s67" % (4096 * 2048))
        srd(k, j.sB, 40, "s67", "s68")

    for t in range(3):
        gemm_body(k, g, t, j, j, j, None, "dma", vmwait=g.ND, cinit=(lambda tm, tn: "0") if t == 0 else None)
    gemm_loop(k, g, j, 0, 6, "oa")
    gemm_body(k, g, 0, j, j, j, None, "dma", vmwait=g.ND)
    gemm_body(k, g, 1, j, j, j, None, "dma", vmwait=g.ND, extra={0: [poll_issue]})
    gemm_body(k, g, 2, j, j, j, None, "dma", vmwait=g.ND, post_barrier=poll_check_and_switch)
    gemm_loop(k, g, j, 0, 15, "ob")
    gemm_tail(k, g, j, 0)
    stamp(k, 4)
    vTk = g.vTmp + 5
    OWN = 128
    k.e("s_load_dwordx2 s[40:41], s[0:1], %d" % ARG_X)
    k.e("s_load_dwordx4 s[44:47], s[0:1], %d" % ARG_B2)
    k.e("s_lshl3_add_u32 s67, s65, s66")
    k.e("s_lshl_b32 s70, s67, 19")
    k.e("s_lshl_b32 s71, s%d, 14" % g.sWave)
    k.e("s_add_u32 s70, s70, s71")
    srd(k, g.sO, AT.sWS, WS_PART, 32 * MB)
    k.e("s_lshl3_add_u32 s67, s67, s%d" % g.sWave)
    k.e("s_lshl_b32 s67, s67, 6")
    k.e("s_lshl_b32 s71, s64, 17")
    k.e("s_add_u32 s71, s71, s70")
    for sp in range(4):
        if sp < 3:
            k.e("s_cmp_lg_u32 s64, %d" % sp)
            k.e("s_cbranch_scc1 L_ao_v%d" % (sp + 1))
        for t4 in range(4):
            if t4 == sp:
                continue
            k.e("s_add_u32 s72, s71, %d" % (t4 * 4096))
            for i in range(4):
                k.e("buffer_store_dwordx4 %s, v%d, %s, s72 offen offset:%d sc1" % (vr(g.vAcc + 16 * t4 + 4 * i, 4), g.vLane16, sr(g.sO, 4), i * 1024))
        for i in range(16):
            k.e("v_mov_b32 v%d, v%d" % (OWN + i, g.vAcc + 16 * sp + i))
        if sp < 3:
            k.e("s_branch L_ao_v4")
            k.label("L_ao_v%d" % (sp + 1))
    k.label("L_ao_v4")
    vX = g.vTmp
    k.e("v_and_b32 v%d, 31, v0" % vX)
    k.e("v_lshlrev_b32 v%d, 11, v%d" % (vX, vX))
    k.e("v_bfe_u32 v%d, v0, 5, 1" % (vX + 1))
    k.e("v_lshl_add_u32 v%d, v%d, 4, v%d" % (vX, vX + 1, vX))
    k.e("v_lshlrev_b32 v%d, 4, v%d" % (vX + 1, vX + 1))
    k.e("s_lshl_b32 s72, s65, 2")
    k.e("s_add_u32 s72, s72, s%d" % g.sWm)
    k.e("s_lshl_b32 s72, s72, 17")
    k.e("s_lshl1_add_u32 s73, s66, s%d" % g.sWn)
    k.e("s_lshl_b32 s73, s73, 7")
    k.e("v_mov_b32 v%d, s67" % vPA)
    k.e("s_waitcnt lgkmcnt(0)")
    srd(k, 4, 40, 0, 4 * MB)
    srd(k, 8, 44, 0, 2048)
    srd(k, 80, 46, 0, 4 * MB)

    def xb_loads(sq):
        k.e("s_and_b32 s76, s%d, 1" % sq)
        k.e("s_lshl_b32 s76, s76, 6")
        k.e("s_add_u32 s76, s76, s73")
        k.e("s_lshr_b32 s77, s%d, 1" % sq)
        k.e("s_lshl_b32 s77, s77, 16")
        k.e("s_add_u32 s77, s77, s72")
        k.e("s_add_u32 s77, s77, s76")
        for p in range(2):
            k.e("buffer_load_dwordx4 %s, v%d, s[4:7], s77 offen offset:%d" % (vr(28 + 4 * p, 4), vX, p * 32))
            k.e("buffer_load_dwordx4 %s, v%d, s[8:11], s76 offen offset:%d" % (vr(36 + 4 * p, 4), vX + 1, p * 32))

    def finish(b0):
        k.e("s_nop 1")
        for p in range(2):
            for i in range(4):
                k.e("v_permlane32_swap_b32 v%d, v%d" % (b0 + 8 * p + i, b0 + 8 * p + 4 + i))
        T = 44
        for p in range(2):
            b = b0 + 8 * p
            x4, b4 = 28 + 4 * p, 36 + 4 * p
            for i in range(4):
                k.e("v_lshlrev_b32 v%d, 16, v%d" % (T, x4 + i))
                k.e("v_and_b32 v%d, 0xffff0000, v%d" % (T + 1, x4 + i))
                k.e("v_lshlrev_b32 v%d, 16, v%d" % (T + 2, b4 + i))
                k.e("v_and_b32 v%d, 0xffff0000, v%d" % (T + 3, b4 + i))
                k.e("v_pk_add_f32 %s, %s, %s" % (vr(T, 2), vr(T, 2), vr(T + 2, 2)))
                k.e("v_pk_add_f32 %s, %s, %s" % (vr(b + 2 * i, 2), vr(b + 2 * i, 2), vr(T, 2)))
            for i in range(4):
                k.e("v_cvt_pk_bf16_f32 v%d, v%d, v%d" % (48 + 4 * p + i, b + 2 * i, b + 2 * i + 1))
            k.e("buffer_store_dwordx4 %s, v%d, s[80:83], s77 offen offset:%d" % (vr(48 + 4 * p, 4), vX, p * 32))
    k.e("s_waitcnt vmcnt(0)")
    stamp(k, 5)
    k.e("v_and_b32 v%d, 7, v0" % vPoll)
    k.e("v_lshl_add_u32 v%d, v%d, 2, v%d" % (vPoll, vPoll, vPA))
    k.e("v_mov_b32 v%d, s%d" % (vTk, AT.sNonce))
    k.e("s_lshl_b32 s69, s64, 2")
    k.e("s_mov_b64 exec, 1")
    k.e("buffer_store_dword v%d, v%d, s[56:59], s69 offen sc1" % (vTk, vPA))
    k.e("s_mov_b64 exec, -1")
    xb_loads(64)
    k.e("s_mov_b32 s75, %d" % (3 if FORCE_HELP else 4000))
    k.e("s_waitcnt vmcnt(4)")
    k.label("L_ao_spin")
    k.e("buffer_load_dword v%d, v%d, s[56:59], 0 offen sc1" % (vTk, vPoll))
    k.e("s_waitcnt vmcnt(0)")
    k.e("v_cmp_eq_u32 vcc, s%d, v%d" % (AT.sNonce, vTk))
    k.e("s_and_b32 s69, vcc_lo, 15")
    k.e("s_bfe_u32 s74, vcc_lo, 0x40004")
    k.e("s_cmp_eq_u32 s69, 15")
    k.e("s_cbranch_scc1 L_ao_own")
    k.e("s_cmp_eq_u32 s75, 0")
    k.e("s_cbranch_scc1 L_ao_flush")
    k.e("s_sleep 2")
    k.e("s_sub_u32 s75, s75, 1")
    k.e("s_cmp_lg_u32 s75, 0")
    k.e("s_cbranch_scc1 L_ao_spin")
    k.e("s_lshl_b32 s69, s64, 12")
    k.e("s_add_u32 s69, s69, s71")
    for i in range(4):
        k.e("buffer_store_dwordx4 %s, v%d, %s, s69 offen offset:%d sc1" % (vr(OWN + 4 * i, 4), g.vLane16, sr(g.sO, 4), i * 1024))
    k.e("s_waitcnt vmcnt(0)")
    k.e("v_mov_b32 v%d, s%d" % (vTk, AT.sNonce))
    k.e("s_lshl_b32 s69, s64, 2")
    k.e("s_mov_b64 exec, 1")
    k.e("buffer_store_dword v%d, v%d, s[56:59], s69 offen offset:16 sc1" % (vTk, vPA))
    k.e("s_mov_b64 exec, -1")
    k.e("s_waitcnt vmcnt(0)")
    k.e("s_branch L_ao_spin")
    k.label("L_ao_own")
    k.e("s_bitset0_b32 s74, s64")
    stamp(k, 2)
    for i3 in range(1, 4):
        k.e("s_add_u32 s75, s64, %d" % i3)
        k.e("s_and_b32 s75, s75, 3")
        k.e("s_lshl_b32 s75, s75, 17")
        k.e("s_add_u32 s75, s75, s70")
        k.e("s_lshl_b32 s69, s64, 12")
        k.e("s_add_u32 s75, s75, s69")
        for i in range(4):
            k.e("buffer_load_dwordx4 %s, v%d, %s, s75 offen offset:%d sc1" % (vr(64 + 16 * i3 + 4 * i, 4), g.vLane16, sr(g.sO, 4), i * 1024))
    k.e("s_waitcnt vmcnt(8)")
    for i in range(8):
        k.e("v_pk_add_f32 %s, %s, %s" % (vr(OWN + 2 * i, 2), vr(OWN + 2 * i, 2), vr(80 + 2 * i, 2)))
    k.e("s_waitcnt vmcnt(0)")
    for i in range(8):
        k.e("v_pk_add_f32 %s, %s, %s" % (vr(96 + 2 * i, 2), vr(96 + 2 * i, 2), vr(112 + 2 * i, 2)))
    for i in range(8):
        k.e("v_pk_add_f32 %s, %s, %s" % (vr(OWN + 2 * i, 2), vr(OWN + 2 * i, 2), vr(96 + 2 * i, 2)))
    finish(OWN)
    k.label("L_ao_q")
    k.e("s_cmp_eq_u32 s74, 0")
    k.e("s_cbranch_scc1 L_ao_flush")
    k.e("s_ff1_i32_b32 s75, s74")
    k.e("s_bitset0_b32 s74, s75")
    k.e("s_lshl_b32 s71, s75, 12")
    k.e("s_add_u32 s71, s71, s70")
    for sp in range(4):
        for i in range(4):
            k.e("buffer_load_dwordx4 %s, v%d, %s, s71 offen offset:%d sc1" % (vr(64 + 16 * sp + 4 * i, 4), g.vLane16, sr(g.sO, 4), i * 1024))
        if sp < 3:
            k.e("s_add_u32 s71, s71, 131072")
    xb_loads(75)
    k.e("s_waitcnt vmcnt(0)")
    for i in range(8):
        k.e("v_pk_add_f32 %s, %s, %s" % (vr(64 + 2 * i, 2), vr(64 + 2 * i, 2), vr(80 + 2 * i, 2)))
    for i in range(8):
        k.e("v_pk_add_f32 %s, %s, %s" % (vr(96 + 2 * i, 2), vr(96 + 2 * i, 2), vr(112 + 2 * i, 2)))
    for i in range(8):
        k.e("v_pk_add_f32 %s, %s, %s" % (vr(64 + 2 * i, 2), vr(64 + 2 * i, 2), vr(96 + 2 * i, 2)))
    finish(64)
    k.e("s_branch L_ao_q")
    k.label("L_ao_flush")
    stamp_flush(k, 2, AT.sWS)
    k.label("L_ao_end")
    k.e("s_endpgm")
    for args in slow_blocks:
        AT.emit_slow(k, *args)
    for f in tail_code:
        f()
    for lab, back in slow:
        k.label(lab)
        k.e("s_sleep 2")
        k.e("buffer_load_dword v%d, v%d, %s, 0 offen sc1" % (vPoll, vPA, sr(sFl, 4)))
        k.e("s_waitcnt vmcnt(0)")
        k.e("v_cmp_ne_u32 vcc, s%d, v%d" % (AT.sNonce, vPoll))
        k.e("s_cbranch_vccnz %s" % lab)
        k.e("s_branch %s" % back)
    return k.text(), 256, 163840
```

```python
import struct
from asmlib import *

MB = 1 << 20
WS_Q = 4 * MB
WS_K = 20 * MB
WS_VT = 36 * MB
WS_AH = 52 * MB
ARG_WS = 104
STF = os.environ.get("STFLAGS", "sc1")


def f32bits(x):
    return struct.unpack("<I", struct.pack("<f", x))[0]


vL16 = 1
vKA = 2
vVA = 3
vL0, vL1 = 4, 5
vMax = 6
vT0 = 7
vThr = 8
vNeg = 9
vD = 10
vT1 = 11
vT2 = 12
vT3 = 13
vQ = 16
vKf = 48
vVf = 80
vS = [112, 128]
vNm = 144
vP = 160
vE = 168
vLa, vLb = 174, 175
vO = 176
NV = 248
sK, sV, sO, sQ = 4, 8, 12, 16
sJ, sJL, sKoff, sVoff, sWave, sG, sWq = 20, 21, 22, 23, 24, 25, 26
sM0K, sM0V = 27, 29
sT, sPhase, sHead, sPi = 31, 32, 33, 34
sA, sB = 35, 36
sPar = 37
sMask = 40
sWS = 48
THRESH = 2.0 ** 24
XCH = 131072


def srd(k, d, base, off, nbytes):
    k.e("s_add_u32 s%d, s%d, %s" % (d, base, off))
    k.e("s_addc_u32 s%d, s%d, 0" % (d + 1, base + 1))
    k.e("s_mov_b32 s%d, %s" % (d + 2, nbytes))
    k.e("s_mov_b32 s%d, 0x00020000" % (d + 3))


def kread(k, slot, n):
    out = []
    if "nolds" in os.environ.get("XP", ""):
        return [lambda: None] * 8
    for C in range(8):
        def f(C=C):
            d = vKf + 4 * C
            k.lds_op("ds_read_b128 %s, v%d offset:%d" % (vr(d, 4), vKA, slot * 32768 + n * 8192 + C * 1024), rng(d, 4))
        out.append(f)
    return out


def vread(k, slot, n):
    out = []
    if "nolds" in os.environ.get("XP", ""):
        return [lambda: None] * 8
    for jj in range(2):
        for R in range(4):
            def f(R=R, jj=jj):
                d = vVf + 4 * (jj * 4 + R)
                k.lds_op("ds_read_b128 %s, v%d offset:%d" % (vr(d, 4), vVA, slot * 32768 + n * 8192 + R * 2048 + jj * 1024), rng(d, 4))
            out.append(f)
    return out


def qk(k, sb, zero_c=False):
    out = []
    for C in range(8):
        def f(C=C):
            a = vKf + 4 * C
            k.lds_need(rng(a, 4))
            if C == 0:
                c = "0" if zero_c else vr(vNm, 16)
            else:
                c = vr(vS[sb], 16)
            k.e("v_mfma_f32_32x32x16_bf16 %s, %s, %s, %s" % (vr(vS[sb], 16), vr(a, 4), vr(vQ + 4 * C, 4), c))
        out.append(f)
    return out


def pv(k):
    out = []
    for jj in range(2):
        for R in range(4):
            def f(R=R, jj=jj):
                a = vVf + 4 * (jj * 4 + R)
                k.lds_need(rng(a, 4))
                o = vO + 16 * R
                k.e("v_mfma_f32_32x32x16_bf16 %s, %s, %s, %s" % (vr(o, 16), vr(a, 4), vr(vP + 4 * jj, 4), vr(o, 16)))
            out.append(f)
    return out


XP = os.environ.get("XP", "")


def exp_half(k, sb, h):
    if "noexp" in XP:
        return [lambda: k.e("v_mov_b32 v%d, 0" % (vLa if h == 0 else vLb))] * 9
    S = vS[sb] + 8 * h
    L = vLa if h == 0 else vLb
    out = []
    E = lambda s: (lambda: k.e(s))
    for i in range(4):
        e0, e1 = vE + 2 * (i % 3), vE + 2 * (i % 3) + 1
        out.append(E("v_exp_f32 v%d, v%d" % (e0, S + 2 * i)))
        out.append(E("v_exp_f32 v%d, v%d" % (e1, S + 2 * i + 1)))
        if i > 0:
            p0, p1 = vE + 2 * ((i - 1) % 3), vE + 2 * ((i - 1) % 3) + 1
            out.append(E("v_cvt_pk_bf16_f32 v%d, v%d, v%d" % (vP + 4 * h + i - 1, p0, p1)))
            if i == 1:
                out.append(E("v_add_f32 v%d, v%d, v%d" % (L, p0, p1)))
            else:
                out.append(E("v_add_f32 v%d, v%d, v%d" % (L, L, p0)))
                out.append(E("v_add_f32 v%d, v%d, v%d" % (L, L, p1)))
    p0, p1 = vE + 0, vE + 1
    out.append(E("s_nop 0"))
    out.append(E("v_cvt_pk_bf16_f32 v%d, v%d, v%d" % (vP + 4 * h + 3, p0, p1)))
    out.append(E("v_add_f32 v%d, v%d, v%d" % (L, L, p0)))
    out.append(E("v_add_f32 v%d, v%d, v%d" % (L, L, p1)))
    return out


def max_code(k, sb):
    S = vS[sb]
    k.e("v_max3_f32 v%d, v%d, v%d, v%d" % (vMax, S, S + 1, S + 2))
    k.e("v_max3_f32 v%d, v%d, v%d, v%d" % (vT0, S + 3, S + 4, S + 5))
    for i in range(6, 14, 4):
        k.e("v_max3_f32 v%d, v%d, v%d, v%d" % (vMax, vMax, S + i, S + i + 1))
        k.e("v_max3_f32 v%d, v%d, v%d, v%d" % (vT0, vT0, S + i + 2, S + i + 3))
    k.e("v_max3_f32 v%d, v%d, v%d, v%d" % (vMax, vMax, S + 14, S + 15))
    k.e("v_max_f32 v%d, v%d, v%d" % (vMax, vMax, vT0))
    k.e("v_mov_b32 v%d, v%d" % (vT0, vMax))
    k.e("s_nop 1")
    k.e("v_permlane32_swap_b32 v%d, v%d" % (vT0, vMax))
    k.e("v_max_f32 v%d, v%d, v%d" % (vMax, vMax, vT0))


def mask_code(k, sb, n):
    S = vS[sb]
    for r0 in range(0, 16, 4):
        for i in range(4):
            r = r0 + i
            c = 16 * (r >> 3) + (r & 7) + 32 * n
            k.e("v_cmp_le_i32 %s, %d, v%d" % (sr(sMask + 2 * i, 2), c, vThr))
        for i in range(4):
            r = r0 + i
            k.e("v_cndmask_b32 v%d, v%d, v%d, %s" % (S + r, vNeg, S + r, sr(sMask + 2 * i, 2)))


def dma_k(k, slot):
    out = []
    for j in range(4):
        def f(j=j):
            if j == 0:
                k.e("s_mov_b32 m0, s%d" % (sM0K + slot))
                k.e("s_nop 0")
            k.e("buffer_load_dwordx4 v%d, %s, s%d offen offset:%d lds" % (vD, sr(sK, 4), sKoff, 1024 * j))
            if j == 3:
                k.e("s_add_u32 s%d, s%d, 32768" % (sKoff, sKoff))
        out.append(f)
    return out


def dma_v(k, slot):
    out = []
    for j in range(4):
        def f(j=j):
            if j == 0:
                k.e("s_mov_b32 m0, s%d" % (sM0V + slot))
                k.e("s_nop 0")
            k.e("buffer_load_dwordx4 v%d, %s, s%d offen offset:%d lds" % (vD, sr(sV, 4), sVoff, 1024 * j))
            if j == 3:
                k.e("s_add_u32 s%d, s%d, 32768" % (sVoff, sVoff))
        out.append(f)
    return out


def q_loads(k, sqb):
    k.e("s_lshl2_add_u32 s%d, s%d, s%d" % (sA, sqb, sWq))
    k.e("s_lshl_b32 s%d, s%d, 13" % (sA, sA))
    k.e("s_add_u32 s%d, s%d, 4096" % (sB, sA))
    for C in range(8):
        k.e("buffer_load_dwordx4 %s, v%d, %s, s%d offen offset:%d" % (vr(vQ + 4 * C, 4), vL16, sr(sQ, 4), sA if C < 4 else sB, (C & 3) * 1024))


def check(k, sb, h, other_valid, nredo, slow_blocks):
    lab = k.newlabel("slow")
    back = k.newlabel("back")
    L = vLa if h == 0 else vLb
    if "nochk" not in XP:
        k.e("s_cbranch_vccnz %s" % lab)
    k.label(back)
    k.e("v_add_f32 v%d, v%d, v%d" % (vL0, vL0, L))
    slow_blocks.append((lab, back, sb, h, other_valid, nredo))


def emit_slow(k, lab, back, sb, h, other_valid, nredo):
    S = vS[sb]
    So = vS[sb ^ 1]
    k.label(lab)
    k.e("s_nop 15")
    max_code(k, sb)
    k.e("v_max_f32 v%d, 0, v%d" % (vMax, vMax))
    k.e("v_sub_f32 v%d, 0, v%d" % (vT0, vMax))
    k.e("v_exp_f32 v%d, v%d" % (vT0, vT0))
    for r in range(16):
        k.e("v_sub_f32 v%d, v%d, v%d" % (S + r, S + r, vMax))
    if other_valid:
        for r in range(16):
            k.e("v_sub_f32 v%d, v%d, v%d" % (So + r, So + r, vMax))
    for r in range(16):
        k.e("v_sub_f32 v%d, v%d, v%d" % (vNm + r, vNm + r, vMax))
    k.e("v_mul_f32 v%d, v%d, v%d" % (vL0, vL0, vT0))
    for r in range(64):
        k.e("v_mul_f32 v%d, v%d, v%d" % (vO + r, vO + r, vT0))
    for f in exp_half(k, sb, h):
        f()
    if h == 0:
        for f in exp_half(k, sb, 1)[:nredo]:
            f()
    k.e("s_nop 1")
    k.e("s_branch %s" % back)


def spread(n_items, n_gaps, start=0):
    per = [0] * n_gaps
    m = n_gaps - start
    for i in range(n_items):
        per[start + (i * m) // n_items] += 1
    return per


def merge_fillers(lists_and_plans, n_gaps):
    flat, per = [], []
    idx = [0] * len(lists_and_plans)
    for gph in range(n_gaps):
        cnt = 0
        for li, (lst, plan) in enumerate(lists_and_plans):
            for _ in range(plan[gph]):
                if idx[li] < len(lst):
                    flat.append(lst[idx[li]])
                    idx[li] += 1
                    cnt += 1
        per.append(cnt)
    for li, (lst, plan) in enumerate(lists_and_plans):
        assert idx[li] == len(lst), (li, idx[li], len(lst))
    return flat, per


NB1 = int(os.environ.get("AT_NB1", "8"))


def half_step(k, p, n, last, slow_blocks, dma=None, post_qk=None):
    cur = n
    nxt = cur ^ 1
    do_qk = not (last and n == 1)
    e0 = exp_half(k, cur, 0)
    e1 = exp_half(k, cur, 1)
    cmp0 = lambda: k.e("v_cmp_nge_f32 vcc, s%d, v%d" % (sT, vLa))
    cmp1 = lambda: k.e("v_cmp_nge_f32 vcc, s%d, v%d" % (sT, vLb))
    ea = e0 + [cmp0] + e1[:NB1]
    eb = e1[NB1:] + [cmp1]
    lists = [(vread(k, p, n), [2, 2, 2, 2, 0, 0, 0, 0]), (ea, spread(len(ea), 8))]
    if dma:
        lists.append((dma, spread(len(dma), 7, 1) + [0]))
    fl, per = merge_fillers(lists, 8)
    if do_qk:
        interleave(k, qk(k, nxt), fl, per)
    else:
        for f in fl:
            f()
    if post_qk:
        post_qk()
    check(k, cur, 0, do_qk, NB1, slow_blocks)
    k.e("s_nop 0")
    pvl = pv(k)
    kr = kread(k, p ^ 1, n) if not last else []
    lists = [(eb, spread(len(eb), 3) + [0])]
    if kr:
        lists.append((kr[:4], [0, 1, 1, 2]))
    fl, per = merge_fillers(lists, 4)
    interleave(k, pvl[:4], fl, per)
    check(k, cur, 1, do_qk, 0, slow_blocks)
    k.e("s_nop 0")
    tail = list(kr[4:])
    if do_qk:
        if last:
            tail.append(lambda: mask_code(k, nxt, 1))
        elif n == 1:
            nomask = k.newlabel("nomask")

            def maybe_mask():
                k.e("s_add_u32 s%d, s%d, 1" % (sA, sJ))
                k.e("s_cmp_lg_u32 s%d, s%d" % (sA, sJL))
                k.e("s_cbranch_scc1 %s" % nomask)
                mask_code(k, nxt, 0)
                k.label(nomask)
            tail.append(maybe_mask)
    interleave(k, pvl[4:], tail, [2, 2, 1, 0])


def interval(k, p, last, slow_blocks):
    k.c("==== interval parity %d last=%s" % (p, last))
    if not last:
        skipk = k.newlabel("skipk")
        dk = dma_k(k, p)
        dv = dma_v(k, p ^ 1)

        def dk_all():
            k.e("s_add_u32 s%d, s%d, 2" % (sA, sJ))
            k.e("s_cmp_gt_u32 s%d, s%d" % (sA, sJL))
            k.e("s_cbranch_scc1 %s" % skipk)
            for f in dk:
                f()
            k.label(skipk)
        half_step(k, p, 0, False, slow_blocks, dma=None if "nodma" in XP else dv + [dk_all])
        half_step(k, p, 1, False, slow_blocks)
        k.lds_drain("vmcnt(0)")
        if "nobar" not in XP:
            k.e("s_barrier")
    else:
        nonext = k.newlabel("nonext")
        noq = k.newlabel("noq")

        def next_loads():
            k.e("s_cmp_lg_u32 s%d, 0" % sPhase)
            k.e("s_cbranch_scc1 %s" % nonext)
            k.e("s_mov_b32 s%d, 0" % sKoff)
            k.e("s_mov_b32 s%d, 0" % sVoff)
            for f in dma_k(k, p ^ 1) + dma_v(k, p ^ 1):
                f()
            k.label(nonext)

        def next_q():
            k.e("s_cmp_lg_u32 s%d, 0" % sPhase)
            k.e("s_cbranch_scc1 %s" % noq)
            q_loads(k, sPi)
            k.label(noq)
        half_step(k, p, 0, True, slow_blocks, dma=[next_loads], post_qk=next_q)
        half_step(k, p, 1, True, slow_blocks)
        k.e("s_mov_b32 s%d, %d" % (sPar, p ^ 1))


def first_subtile(k, p):
    for f in kread(k, p, 0):
        f()
    for f in qk(k, 0, zero_c=True):
        f()
    for f in kread(k, p, 1):
        f()
    k.e("s_nop 7")
    lab = k.newlabel("nomask0")
    k.e("s_cmp_lg_u32 s%d, 0" % sJL)
    k.e("s_cbranch_scc1 %s" % lab)
    mask_code(k, 0, 0)
    k.label(lab)
    max_code(k, 0)
    for r in range(16):
        k.e("v_sub_f32 v%d, v%d, v%d" % (vS[0] + r, vS[0] + r, vMax))
    for r in range(16):
        k.e("v_sub_f32 v%d, 0, v%d" % (vNm + r, vMax))
    k.lds_drain("vmcnt(0)")
    k.e("s_barrier")
    l1, l2 = k.newlabel("ph1"), k.newlabel("ph2")
    k.e("s_cmp_lg_u32 s%d, 0" % sPhase)
    k.e("s_cbranch_scc1 %s" % l1)
    flag_store(k, sTask, FL_AS)
    k.e("s_branch %s" % l2)
    k.label(l1)
    k.e("s_sub_u32 s%d, 15, s%d" % (sA, sPi))
    k.e("s_lshl_b32 s%d, s%d, 5" % (sA, sA))
    k.e("s_add_u32 s%d, s%d, s%d" % (sA, sA, sHead))

    def chk_load():
        k.e("s_movk_i32 s%d, %d" % (sB, FL_AS))
        k.e("buffer_load_dwordx4 %s, v%d, %s, s%d offen sc1" % (vr(vChk, 4), vL16, sr(sFl, 4), sB))
    flag_store(k, sA, FL_AD, also=chk_load)
    k.label(l2)


sTask = 38
sFl = 52
WS_FLAGS = 83 * MB
FL_LN, FL_PS, FL_KV, FL_QH, FL_AS, FL_AD, FL_ST = 1024, 2048, 3072, 4096, 5120, 6144, 8192
sNonce = 95
CHKW = 163840 - 64
vChk = 240
vPf, vDum = 246, 247
sKV = 56
sPfOff = 60


PFA = int(os.environ.get("PFA", "1"))


def pf_kv(k):
    lab = k.newlabel("nopf")
    k.e("s_cmp_ge_u32 s%d, %d" % (sPfOff, 16 * 32768))
    k.e("s_cselect_b32 s%d, %d, s%d" % (sA, 15 * 32768, sPfOff))
    k.e("buffer_load_dword v%d, v%d, %s, s%d offen" % (vDum, vPf, sr(sKV, 4), sA))
    k.e("s_add_u32 s%d, s%d, 32768" % (sPfOff, sPfOff))


def flag_store(k, soff_reg, imm, also=None):
    lab = k.newlabel("nofl")
    k.e("s_cmp_lg_u32 s%d, 0" % sWave)
    k.e("s_cbranch_scc1 %s" % lab)
    k.e("s_lshl_b32 s%d, s%d, 2" % (sB, soff_reg))
    k.e("v_mov_b32 v%d, %d" % (vT2, imm))
    k.e("v_mov_b32 v%d, s%d" % (vT3, sNonce))
    k.e("s_mov_b64 exec, 1")
    k.e("buffer_store_dword v%d, v%d, %s, s%d offen sc1" % (vT3, vT2, sr(sFl, 4), sB))
    k.e("s_mov_b64 exec, -1")
    if also:
        also()
    k.label(lab)


def emit_attn(k, slow_blocks):
    k.label("L_at_task")
    k.e("s_load_dwordx2 s[%d:%d], s[0:1], %d" % (sWS, sWS + 1, ARG_WS))
    k.e("s_and_b32 s%d, s%d, 7" % (sA, sTask))
    k.e("s_bfe_u32 s%d, s%d, 0x20003" % (sB, sTask))
    k.e("s_lshl2_add_u32 s%d, s%d, s%d" % (sHead, sA, sB))
    k.e("s_lshr_b32 s%d, s%d, 5" % (sPi, sTask))
    k.e("v_lshrrev_b32 v%d, 6, v0" % vT0)
    k.e("v_and_b32 v%d, 63, v0" % vT1)
    k.e("v_readfirstlane_b32 s%d, v%d" % (sWave, vT0))
    k.e("v_lshlrev_b32 v%d, 4, v%d" % (vL16, vT1))
    k.e("s_nop 1")
    k.e("s_lshr_b32 s%d, s%d, 2" % (sG, sWave))
    k.e("s_and_b32 s%d, s%d, 3" % (sWq, sWave))
    k.e("s_lshl_b32 s%d, s%d, 12" % (sA, sWave))
    k.e("s_mov_b32 s%d, s%d" % (sM0K, sA))
    k.e("s_add_u32 s%d, s%d, 32768" % (sM0K + 1, sA))
    k.e("s_add_u32 s%d, s%d, 65536" % (sM0V, sA))
    k.e("s_add_u32 s%d, s%d, 98304" % (sM0V + 1, sA))
    k.e("v_add_u32 v%d, s%d, v%d" % (vD, sA, vL16))
    k.e("s_sub_u32 s%d, 15, s%d" % (sJL, sPi))
    k.e("s_mov_b32 s%d, 0" % sKoff)
    k.e("s_mov_b32 s%d, 0" % sVoff)
    k.e("s_waitcnt lgkmcnt(0)")
    k.e("s_lshl_b32 s%d, s%d, 19" % (sA, sHead))
    k.e("s_add_u32 s%d, s%d, %d" % (sB, sA, WS_K))
    srd(k, sK, sWS, "s%d" % sB, 512 * 1024)
    k.e("s_add_u32 s%d, s%d, %d" % (sB, sA, WS_Q))
    srd(k, sQ, sWS, "s%d" % sB, 512 * 1024)
    k.e("s_add_u32 s%d, s%d, %d" % (sB, sA, WS_VT))
    srd(k, sV, sWS, "s%d" % sB, 512 * 1024)
    srd(k, sFl, sWS, WS_FLAGS, 65536)
    k.e("s_lshr_b32 s%d, s%d, 1" % (sA, sHead))
    k.e("s_lshl_b32 s%d, s%d, 5" % (sA, sA))
    k.e("v_and_b32 v%d, 7, v%d" % (vT0, vT1))
    k.e("v_lshlrev_b32 v%d, 2, v%d" % (vT0, vT0))
    k.e("v_bfe_u32 v%d, v%d, 3, 1" % (vT2, vT1))
    k.e("v_lshl_add_u32 v%d, v%d, 9, v%d" % (vT0, vT2, vT0))
    k.e("v_add_u32 v%d, %d, v%d" % (vT0, FL_KV, vT0))
    k.e("s_lshr_b32 s%d, s%d, 1" % (sB, sJL))
    k.e("s_lshl_b32 s%d, s%d, 2" % (sB, sB))
    k.e("s_add_u32 s%d, s%d, %d" % (sB, sB, FL_QH))
    k.e("v_mov_b32 v%d, s%d" % (vT2, sB))
    k.e("v_cmp_eq_u32 vcc, 16, v%d" % vT1)
    k.e("s_nop 1")
    k.e("v_cndmask_b32 v%d, v%d, v%d, vcc" % (vT0, vT0, vT2))
    k.e("s_lshr_b32 s%d, s%d, 1" % (sB, sPi))
    k.e("s_lshl_b32 s%d, s%d, 2" % (sB, sB))
    k.e("s_add_u32 s%d, s%d, %d" % (sB, sB, FL_QH))
    k.e("v_mov_b32 v%d, s%d" % (vT2, sB))
    k.e("v_cmp_lt_u32 vcc, 16, v%d" % vT1)
    k.e("s_nop 1")
    k.e("v_cndmask_b32 v%d, v%d, v%d, vcc" % (vT0, vT0, vT2))
    k.label("L_at_dep")
    k.e("buffer_load_dword v%d, v%d, %s, s%d offen sc1" % (vT2, vT0, sr(sFl, 4), sA))
    k.e("s_waitcnt vmcnt(0)")
    k.e("v_cmp_ne_u32 vcc, s%d, v%d" % (sNonce, vT2))
    k.e("s_cbranch_vccz L_at_depok")
    k.e("s_sleep 2")
    k.e("s_branch L_at_dep")
    k.label("L_at_depok")
    for f in dma_k(k, 0):
        f()
    q_loads(k, sJL)
    for f in dma_v(k, 0) + dma_k(k, 1):
        f()
    srd(k, sO, sWS, WS_AH, 2048 * 7680 * 2)
    k.e("s_mov_b32 s%d, 0x%08x" % (sT, f32bits(THRESH)))
    k.e("v_mov_b32 v%d, 0x%08x" % (vNeg, f32bits(-1e30)))
    k.e("v_and_b32 v%d, 0x33, v%d" % (vT0, vT1))
    k.e("v_bfe_u32 v%d, v%d, 2, 1" % (vT2, vT1))
    k.e("v_lshl_or_b32 v%d, v%d, 3, v%d" % (vT0, vT2, vT0))
    k.e("v_bfe_u32 v%d, v%d, 3, 1" % (vT2, vT1))
    k.e("v_lshl_or_b32 v%d, v%d, 2, v%d" % (vT0, vT2, vT0))
    k.e("s_lshl_b32 s%d, s%d, 14" % (sA, sG))
    k.e("v_lshl_add_u32 v%d, v%d, 4, s%d" % (vKA, vT0, sA))
    k.e("s_add_u32 s%d, s%d, 65536" % (sB, sA))
    k.e("v_add_u32 v%d, s%d, v%d" % (vVA, sB, vL16))
    k.e("v_and_b32 v%d, 31, v%d" % (vT0, vT1))
    k.e("v_lshrrev_b32 v%d, 5, v%d" % (vT2, vT1))
    k.e("v_lshlrev_b32 v%d, 3, v%d" % (vT2, vT2))
    k.e("v_sub_u32 v%d, v%d, v%d" % (vT0, vT0, vT2))
    k.e("s_lshl_b32 s%d, s%d, 5" % (sA, sWq))
    k.e("s_lshl_b32 s%d, s%d, 6" % (sB, sG))
    k.e("s_sub_u32 s%d, s%d, s%d" % (sA, sA, sB))
    k.e("v_add_u32 v%d, s%d, v%d" % (vThr, sA, vT0))
    k.e("s_mov_b32 s%d, 0" % sPhase)
    k.e("s_mov_b32 s%d, 0" % sPar)
    k.label("L_at_qblock")
    k.e("s_mov_b32 s%d, 0" % sJ)
    for r in range(64):
        k.e("v_mov_b32 v%d, 0" % (vO + r))
    k.e("v_mov_b32 v%d, 0" % vL0)
    k.e("s_waitcnt vmcnt(8)")
    k.e("s_barrier")
    k.e("s_cmp_lg_u32 s%d, 0" % sPar)
    k.e("s_cbranch_scc1 L_at_first1")
    first_subtile(k, 0)
    if DIAG:
        k.e("s_cmp_lg_u32 s%d, 0" % sPhase)
        k.e("s_cbranch_scc1 L_at_st5")
        stamp(k, 3)
        k.e("s_branch L_at_loop")
        k.label("L_at_st5")
        stamp(k, 5)
    AL = os.environ.get("AT_AL")
    if AL is not None:
        k.lines.append(".p2align 6")
        for _ in range(int(AL)):
            k.e("s_nop 0")
    k.label("L_at_loop")
    k.e("s_cmp_eq_u32 s%d, s%d" % (sJ, sJL))
    k.e("s_cbranch_scc1 L_at_last0")
    interval(k, 0, False, slow_blocks)
    k.e("s_add_u32 s%d, s%d, 1" % (sJ, sJ))
    k.label("L_at_loop1")
    k.e("s_cmp_eq_u32 s%d, s%d" % (sJ, sJL))
    k.e("s_cbranch_scc1 L_at_last1")
    interval(k, 1, False, slow_blocks)
    k.e("s_add_u32 s%d, s%d, 1" % (sJ, sJ))
    k.e("s_branch L_at_loop")
    k.label("L_at_first1")
    k.ldsq = []
    first_subtile(k, 1)
    stamp(k, 5)
    k.e("s_branch L_at_loop1")
    k.label("L_at_last0")
    k.ldsq = []
    interval(k, 0, True, slow_blocks)
    k.e("s_branch L_at_fin")
    k.label("L_at_last1")
    k.ldsq = []
    interval(k, 1, True, slow_blocks)
    k.label("L_at_fin")
    k.ldsq = []
    if DIAG:
        k.e("s_cmp_lg_u32 s%d, 0" % sPhase)
        k.e("s_cbranch_scc1 L_at_st2")
        stamp(k, 4)
        k.e("s_branch L_at_st3")
        k.label("L_at_st2")
        stamp(k, 2)
        k.label("L_at_st3")
    k.e("v_mov_b32 v%d, v%d" % (vT0, vL0))
    k.e("s_nop 1")
    k.e("v_permlane32_swap_b32 v%d, v%d" % (vT0, vL0))
    k.e("v_add_f32 v%d, v%d, v%d" % (vL1, vL0, vT0))
    k.e("v_sub_f32 v%d, 0, v%d" % (vL0, vNm))
    k.e("s_xor_b32 s%d, s%d, 1" % (sA, sPar))
    k.e("s_lshl_b32 s%d, s%d, 15" % (sA, sA))
    k.e("s_add_u32 s%d, s%d, 65536" % (sB, sA))
    k.e("s_cmp_eq_u32 s%d, 0" % sG)
    k.e("s_cselect_b32 s%d, s%d, %d" % (sMask, sA, XCH))
    k.e("s_cselect_b32 s%d, %d, s%d" % (sMask + 1, XCH, sA))
    k.e("s_lshl_b32 s%d, s%d, 13" % (sA, sWq))
    k.e("s_add_u32 s%d, s%d, s%d" % (sMask, sMask, sA))
    k.e("s_add_u32 s%d, s%d, s%d" % (sMask + 1, sMask + 1, sA))
    k.e("v_add_u32 v%d, s%d, v%d" % (vT1, sMask, vL16))
    k.e("v_add_u32 v%d, s%d, v%d" % (vT3, sMask + 1, vL16))
    k.e("s_lshl_b32 s%d, s%d, 9" % (sA, sWave))
    k.e("s_add_u32 s%d, s%d, s%d" % (sA, sA, sB))
    k.e("v_lshrrev_b32 v%d, 1, v%d" % (vT2, vL16))
    k.e("v_add_u32 v%d, s%d, v%d" % (vT2, sA, vT2))
    k.e("s_cmp_eq_u32 s%d, 0" % sG)
    k.e("s_cbranch_scc1 L_at_send23")
    for i in range(8):
        k.e("ds_write_b128 v%d, %s offset:%d" % (vT1, vr(vO + 4 * i, 4), i * 1024))
    k.e("s_waitcnt lgkmcnt(0)")
    for i in range(32):
        k.e("v_mov_b32 v%d, v%d" % (vO + i, vO + 32 + i))
    k.e("s_branch L_at_sent")
    k.label("L_at_send23")
    for i in range(8):
        k.e("ds_write_b128 v%d, %s offset:%d" % (vT1, vr(vO + 32 + 4 * i, 4), i * 1024))
    k.label("L_at_sent")
    lab = k.newlabel("nochk")
    k.e("s_cmp_eq_u32 s%d, 0" % sPhase)
    k.e("s_cbranch_scc1 %s" % lab)
    k.e("s_cmp_lg_u32 s%d, 0" % sWave)
    k.e("s_cbranch_scc1 %s" % lab)
    k.e("s_waitcnt vmcnt(0)")
    for i in range(4):
        k.e("v_xor_b32 v%d, s%d, v%d" % (vChk + i, sNonce, vChk + i))
    k.e("v_or3_b32 v%d, v%d, v%d, v%d" % (vChk + 4, vChk, vChk + 1, vChk + 2))
    k.e("v_or_b32 v%d, v%d, v%d" % (vChk + 4, vChk + 4, vChk + 3))
    k.e("v_cmp_ne_u32 vcc, 0, v%d" % (vChk + 4))
    k.e("s_ff1_i32_b64 s%d, vcc" % sMask)
    k.e("v_cmp_ne_u32 vcc, 0, v%d" % (vChk + 2))
    k.e("s_nop 1")
    k.e("v_cndmask_b32 v%d, 3, 2, vcc" % (vChk + 4))
    k.e("v_cmp_ne_u32 vcc, 0, v%d" % (vChk + 1))
    k.e("s_nop 1")
    k.e("v_cndmask_b32 v%d, v%d, 1, vcc" % (vChk + 4, vChk + 4))
    k.e("v_cmp_ne_u32 vcc, 0, v%d" % vChk)
    k.e("s_nop 1")
    k.e("v_cndmask_b32 v%d, v%d, 0, vcc" % (vChk + 4, vChk + 4))
    k.e("s_nop 1")
    k.e("v_readlane_b32 s%d, v%d, s%d" % (sMask + 1, vChk + 4, sMask))
    k.e("s_nop 3")
    k.e("s_lshl2_add_u32 s%d, s%d, s%d" % (sMask + 1, sMask, sMask + 1))
    k.e("s_cmp_lt_i32 s%d, 0" % sMask)
    k.e("s_cselect_b32 s%d, -1, s%d" % (sMask + 1, sMask + 1))
    k.e("v_mov_b32 v%d, s%d" % (vChk, sMask + 1))
    k.e("s_lshl_b32 s%d, s%d, 15" % (sMask, sPar))
    k.e("v_mov_b32 v%d, s%d" % (vChk + 1, sMask))
    k.e("ds_write_b32 v%d, v%d" % (vChk + 1, vChk))
    k.label(lab)
    k.e("s_waitcnt lgkmcnt(0)")
    k.e("s_barrier")
    k.e("s_lshl_b32 s%d, s%d, 15" % (sMask, sPar))
    k.e("v_mov_b32 v%d, s%d" % (vChk + 1, sMask))
    k.e("ds_read_b32 v%d, v%d" % (vChk, vChk + 1))
    k.e("ds_write_b64 v%d, v[%d:%d]" % (vT2, vL0, vL1))
    for i in range(8):
        k.e("ds_read_b128 %s, v%d offset:%d" % (vr(vO + 32 + 4 * i, 4), vT3, i * 1024))
    k.e("v_xor_b32 v%d, 0x800, v%d" % (vT2, vT2))
    k.e("s_waitcnt lgkmcnt(0)")
    k.e("s_barrier")
    k.e("ds_read_b64 v[%d:%d], v%d" % (vE, vE + 1, vT2))
    k.e("s_waitcnt lgkmcnt(0)")
    k.e("v_max_f32 v%d, v%d, v%d" % (vT0, vL0, vE))
    k.e("v_sub_f32 v%d, v%d, v%d" % (vL0, vL0, vT0))
    k.e("v_sub_f32 v%d, v%d, v%d" % (vE, vE, vT0))
    k.e("v_exp_f32 v%d, v%d" % (vL0, vL0))
    k.e("v_exp_f32 v%d, v%d" % (vE, vE))
    k.e("s_nop 0")
    k.e("v_mul_f32 v%d, v%d, v%d" % (vL1, vL1, vL0))
    k.e("v_fmac_f32 v%d, v%d, v%d" % (vL1, vE + 1, vE))
    k.e("v_rcp_f32 v%d, v%d" % (vL1, vL1))
    k.e("s_nop 0")
    k.e("v_mul_f32 v%d, v%d, v%d" % (vL0, vL0, vL1))
    k.e("v_mul_f32 v%d, v%d, v%d" % (vE, vE, vL1))
    for i in range(32):
        k.e("v_mul_f32 v%d, v%d, v%d" % (vO + i, vO + i, vL0))
    for i in range(32):
        k.e("v_fmac_f32 v%d, v%d, v%d" % (vO + i, vO + 32 + i, vE))
    k.e("s_lshl2_add_u32 s%d, s%d, s%d" % (sA, sJL, sWq))
    k.e("s_mul_i32 s%d, s%d, 480" % (sA, sA))
    k.e("s_lshl3_add_u32 s%d, s%d, s%d" % (sA, sHead, sA))
    k.e("s_lshl2_add_u32 s%d, s%d, s%d" % (sA, sG, sA))
    k.e("s_lshl_b32 s%d, s%d, 10" % (sA, sA))
    for i in range(4):
        src = vO + 8 * i
        tq = vKf + 4 * i
        for c in range(4):
            k.e("v_cvt_pk_bf16_f32 v%d, v%d, v%d" % (tq + c, src + 2 * c, src + 2 * c + 1))
        k.e("s_nop 1")
        k.e("v_permlane32_swap_b32 v%d, v%d" % (tq, tq + 2))
        k.e("v_permlane32_swap_b32 v%d, v%d" % (tq + 1, tq + 3))
        k.e("buffer_store_dwordx4 %s, v%d, %s, s%d offen offset:%d %s" % (vr(tq, 4), vL16, sr(sO, 4), sA, i * 1024, STF))
    k.e("s_cmp_lg_u32 s%d, 0" % sPhase)
    k.e("s_cbranch_scc1 L_at_done")
    k.e("s_mov_b32 s%d, 1" % sPhase)
    k.e("s_mov_b32 s%d, s%d" % (sJL, sPi))
    k.e("s_xor_b32 s%d, s%d, 1" % (sA, sPar))
    k.e("s_lshl_b32 s%d, s%d, 15" % (sA, sA))
    k.e("s_add_u32 m0, s%d, s%d" % (sM0K, sA))
    k.e("s_nop 0")
    for j in range(4):
        k.e("buffer_load_dwordx4 v%d, %s, s%d offen offset:%d lds" % (vD, sr(sK, 4), sKoff, 1024 * j))
    k.e("s_add_u32 s%d, s%d, 32768" % (sKoff, sKoff))
    k.e("s_branch L_at_qblock")
    k.label("L_at_done")
```

```python
import math, struct
from asmlib import *
from gemm import *

MB = 1 << 20
WS_XN = 0
WS_Q = 4 * MB
WS_K = 20 * MB
WS_VT = 36 * MB
WS_AH = 52 * MB
ARG_X, ARG_CKV, ARG_WQ, ARG_WUK, ARG_WUV, ARG_WO, ARG_BX, ARG_W1, ARG_B1, ARG_W2, ARG_B2, ARG_OUT, ARG_DBG, ARG_WS = [8 * i for i in range(14)]
QSCALE = math.log2(math.e) / math.sqrt(128.0)
GELU_C1 = -2.0 * math.sqrt(2.0 / math.pi) * math.log2(math.e)
GELU_C2 = GELU_C1 * 0.044715
TRFLAGS = os.environ.get("TRFLAGS", " sc1")
FORCE_HELP = int(os.environ.get("FORCE_HELP", "0"))


def f32bits(x):
    return struct.unpack("<I", struct.pack("<f", x))[0]


def srd(k, d, base, off, nbytes):
    k.e("s_add_u32 s%d, s%d, %s" % (d, base, off))
    k.e("s_addc_u32 s%d, s%d, 0" % (d + 1, base + 1))
    k.e("s_mov_b32 s%d, %s" % (d + 2, nbytes))
    k.e("s_mov_b32 s%d, 0x00020000" % (d + 3))


sX, sCKV = 40, 42
sWUK, sWUV = 44, 46
sWS = 48
sWQ, sW1, sB1 = 50, 52, 54
sWO, sW2 = 56, 58
sDBG = 60
sMtA, sNtA, sIsV = 62, 63, 96
sMtB, sNtB, sIsH = 97, 98, 99
sStA = 100
sLnX, sLnO = 36, 80
sPf = 84
sBs = 56
sDb = 88
sRow = 34
sPfOff = 92
sWG = 93
sNonce = 95
WS_FLAGS = 83 * MB
FL_LN, FL_PS, FL_KV, FL_QH, FL_AS, FL_AD, FL_ST = 1024, 2048, 3072, 4096, 5120, 6144, 8192
NONCEW = 147456
PFD = 3
sTa, sTb = 35, 101
vBias = 208
vPk = 240
vRaw = 248
vLn = 208


def wave_sum(k, v, t):
    out = []
    for ctl in ["quad_perm:[1,0,3,2]", "quad_perm:[2,3,0,1]", "row_half_mirror", "row_mirror"]:
        out.append(lambda: k.e("s_nop 1"))
        out.append(lambda ctl=ctl: k.e("v_add_f32_dpp v%d, v%d, v%d %s row_mask:0xf bank_mask:0xf" % (v, v, v, ctl)))
    for sw in ["v_permlane16_swap_b32", "v_permlane32_swap_b32"]:
        out.append(lambda: k.e("v_mov_b32 v%d, v%d" % (t, v)))
        out.append(lambda: k.e("s_nop 1"))
        out.append(lambda sw=sw: k.e("%s v%d, v%d" % (sw, t, v)))
        out.append(lambda: k.e("v_add_f32 v%d, v%d, v%d" % (v, v, t)))
    return out


def ln_load(k, g):
    t = g.vTmp
    k.e("s_lshl_b32 s%d, s%d, 11" % (sTa, sRow))
    k.e("v_lshlrev_b32 v%d, 1, v%d" % (t, g.vLane16))
    k.vm_op("buffer_load_dwordx4 %s, v%d, %s, s%d offen" % (vr(vRaw, 4), t, sr(sLnX, 4), sTa), "ln")
    k.vm_op("buffer_load_dwordx4 %s, v%d, %s, s%d offen offset:16" % (vr(vRaw + 4, 4), t, sr(sLnX, 4), sTa), "ln")


def ln_steps(k, g, via_lds=False):
    X = vLn
    S, V, T = vLn + 16, vLn + 17, vLn + 18
    D = vLn + 19
    A = vLn + 20
    o = []
    E = lambda s: (lambda: k.e(s))
    o.append(lambda: k.vm_need(["ln"]))
    for i in range(8):
        o.append(E("v_lshlrev_b32 v%d, 16, v%d" % (X + 2 * i, vRaw + i)))
        o.append(E("v_and_b32 v%d, 0xffff0000, v%d" % (X + 2 * i + 1, vRaw + i)))
    o.append(E("v_add_f32 v%d, v%d, v%d" % (S, X, X + 1)))
    o.append(E("v_add_f32 v%d, v%d, v%d" % (T, X + 2, X + 3)))
    for i in range(4, 16, 2):
        o.append(E("v_add_f32 v%d, v%d, v%d" % (S, S, X + i)))
        o.append(E("v_add_f32 v%d, v%d, v%d" % (T, T, X + i + 1)))
    o.append(E("v_add_f32 v%d, v%d, v%d" % (S, S, T)))
    o += wave_sum(k, S, T)
    o.append(E("v_mul_f32 v%d, 0x%08x, v%d" % (S, f32bits(1.0 / 1024), S)))
    o.append(E("v_sub_f32 v%d, v%d, v%d" % (D, X, S)))
    o.append(E("v_mul_f32 v%d, v%d, v%d" % (V, D, D)))
    for i in range(1, 16):
        o.append(E("v_sub_f32 v%d, v%d, v%d" % (D, X + i, S)))
        o.append(E("v_fmac_f32 v%d, v%d, v%d" % (V, D, D)))
    o += wave_sum(k, V, T)
    o.append(E("v_mul_f32 v%d, 0x%08x, v%d" % (V, f32bits(1.0 / 1024), V)))

    def rbf(r):
        return [E("v_cvt_pk_bf16_f32 v%d, v%d, v%d" % (r, r, r)), E("v_lshlrev_b32 v%d, 16, v%d" % (r, r))]
    o += rbf(S) + rbf(V)
    o.append(E("v_add_f32 v%d, 0x%08x, v%d" % (V, f32bits(1e-5), V)))
    o += rbf(V)
    o.append(E("v_sqrt_f32 v%d, v%d" % (V, V)))
    o.append(E("s_nop 0"))
    o += rbf(V)
    o.append(E("v_rcp_f32 v%d, v%d" % (V, V)))
    for i in range(16):
        o.append(E("v_sub_f32 v%d, v%d, v%d" % (X + i, X + i, S)))
    for i in range(8):
        o.append(E("v_cvt_pk_bf16_f32 v%d, v%d, v%d" % (vRaw + i, X + 2 * i, X + 2 * i + 1)))
    for i in range(8):
        o.append(E("v_lshlrev_b32 v%d, 16, v%d" % (X + 2 * i, vRaw + i)))
        o.append(E("v_and_b32 v%d, 0xffff0000, v%d" % (X + 2 * i + 1, vRaw + i)))
    for i in range(16):
        o.append(E("v_mul_f32 v%d, v%d, v%d" % (X + i, X + i, V)))
    for i in range(8):
        o.append(E("v_cvt_pk_bf16_f32 v%d, v%d, v%d" % (vRaw + i, X + 2 * i, X + 2 * i + 1)))
    if via_lds:
        def wr():
            k.e("s_lshl_b32 s%d, s%d, 4" % (sTa, g.sWave))
            k.e("s_add_u32 s%d, s%d, %d" % (sTa, sTa, g.lds_bytes))
            k.e("v_lshl_add_u32 v%d, v%d, 4, s%d" % (A, g.vLane16, sTa))
            k.lds_op("ds_write_b128 v%d, %s" % (A, vr(vRaw, 4)))
            k.lds_op("ds_write_b128 v%d, %s offset:128" % (A, vr(vRaw + 4, 4)))
        o.append(wr)
        return o
    o.append(E("v_lshlrev_b32 v%d, 6, v%d" % (A, g.vLane16)))

    def st():
        k.e("s_lshr_b32 s%d, s%d, 5" % (sTa, sRow))
        k.e("s_lshl_b32 s%d, s%d, 16" % (sTa, sTa))
        k.e("s_and_b32 s%d, s%d, 31" % (sTb, sRow))
        k.e("s_lshl4_add_u32 s%d, s%d, s%d" % (sTa, sTb, sTa))
        k.vm_op("buffer_store_dwordx4 %s, v%d, %s, s%d offen sc1" % (vr(vRaw, 4), A, sr(sLnO, 4), sTa), "lnst")
        k.vm_op("buffer_store_dwordx4 %s, v%d, %s, s%d offen offset:512 sc1" % (vr(vRaw + 4, 4), A, sr(sLnO, 4), sTa), "lnst")
        k.e("s_nop 1")
    o.append(st)
    return o


def ln_store_steps(k, g):
    A, B = vLn + 20, vLn + 21
    o = []

    def rd():
        k.e("s_lshl_b32 s%d, s%d, 11" % (sTa, g.sWave))
        k.e("s_add_u32 s%d, s%d, %d" % (sTa, sTa, g.lds_bytes))
        k.e("v_add_u32 v%d, s%d, v%d" % (A, sTa, g.vLane16))
        k.lds_op("ds_read_b128 %s, v%d" % (vr(vRaw, 4), A), rng(vRaw, 4))
        k.lds_op("ds_read_b128 %s, v%d offset:1024" % (vr(vRaw + 4, 4), A), rng(vRaw + 4, 4))
    o.append(rd)

    def addr():
        k.e("v_lshrrev_b32 v%d, 8, v%d" % (A, g.vLane16))
        k.e("v_lshlrev_b32 v%d, 10, v%d" % (A, A))
        k.e("v_bfe_u32 v%d, v%d, 7, 1" % (B, g.vLane16))
        k.e("v_lshl_add_u32 v%d, v%d, 9, v%d" % (A, B, A))
        k.e("v_and_b32 v%d, 0x70, v%d" % (B, g.vLane16))
        k.e("v_add_u32 v%d, v%d, v%d" % (A, A, B))
        k.e("s_lshr_b32 s%d, s2, 2" % sTa)
        k.e("s_lshl_b32 s%d, s%d, 16" % (sTa, sTa))
        k.e("s_lshl_b32 s%d, s%d, 13" % (sTb, g.sWave))
        k.e("s_add_u32 s%d, s%d, s%d" % (sTa, sTa, sTb))
        k.e("s_and_b32 s%d, s2, 3" % sTb)
        k.e("s_lshl_b32 s%d, s%d, 7" % (sTb, sTb))
        k.e("s_add_u32 s%d, s%d, s%d" % (sTa, sTa, sTb))
        k.e("s_add_u32 s%d, s%d, 4096" % (sTb, sTa))
    o.append(addr)

    def st():
        k.lds_need(rng(vRaw, 8))
        k.vm_op("buffer_store_dwordx4 %s, v%d, %s, s%d offen sc1" % (vr(vRaw, 4), A, sr(sLnO, 4), sTa), "lnst")
        k.vm_op("buffer_store_dwordx4 %s, v%d, %s, s%d offen sc1" % (vr(vRaw + 4, 4), A, sr(sLnO, 4), sTb), "lnst")
        k.e("s_nop 1")
    o.append(st)
    return o


def split_list(lst, n):
    m = len(lst)
    return [lst[(i * m) // n:((i + 1) * m) // n] for i in range(n)]


def emit_proj(k, tail_code):
    g = GemmCfg(vRB=14, vTmp=16, vF=24)
    g.sVW = 3
    assert g.vAcc == 80 and g.nvgpr == 208
    jK = Job("row", True, 4, 8, 16, 17, 33, 26, 29, 30, 2, 6, 10, "K")
    jV = Job("row", False, 4, 8, 16, 17, 33, 26, 29, 30, 2, 6, 10, "V")
    jB = Job("frag", True, 64, 68, 72, 73, 74, 75, 76, 77, 72, 73, 77, "B")
    for j in (jK, jV):
        j.sAoff2, j.sBoff2 = 18, 22
    jB.sAoff2, jB.sBoff2 = 25, 94
    vPf, vDummy, vPoll = g.vTmp + 5, g.vTmp + 6, g.vTmp + 7
    PFS = int(os.environ.get("PFS", "6"))
    NCARRY = int(os.environ.get("NCARRY", "8"))
    k.label("L_pj_task")
    k.e("s_load_dwordx4 s[40:43], s[0:1], 0")
    k.e("s_load_dwordx4 s[44:47], s[0:1], 24")
    k.e("s_load_dwordx2 s[48:49], s[0:1], %d" % ARG_WS)
    k.e("s_load_dwordx2 s[50:51], s[0:1], %d" % ARG_WQ)
    k.e("s_load_dwordx4 s[52:55], s[0:1], %d" % ARG_W1)
    k.e("s_load_dwordx2 s[56:57], s[0:1], %d" % ARG_WO)
    k.e("s_load_dwordx2 s[58:59], s[0:1], %d" % ARG_W2)
    k.e("s_load_dwordx2 s[60:61], s[0:1], %d" % ARG_DBG)
    k.e("s_and_b32 s%d, s2, 7" % sTa)
    k.e("s_bfe_u32 s%d, s2, 0x20003" % sTb)
    k.e("s_lshl2_add_u32 s%d, s%d, s%d" % (sTa, sTa, sTb))
    k.e("s_lshr_b32 s%d, s2, 5" % sMtA)
    k.e("s_and_b32 s%d, s%d, 15" % (sNtA, sTa))
    k.e("s_lshr_b32 s%d, s%d, 4" % (sIsV, sTa))
    k.e("s_movk_i32 s%d, 1024" % jK.sPitchA)
    k.e("s_movk_i32 s%d, 8192" % jK.sPitchB)
    k.e("s_movk_i32 s%d, 128" % jK.sAstep)
    k.e("s_mov_b32 s%d, %d" % (jK.sBstep, 64 * 8192))
    k.e("s_mov_b32 s%d, 0" % jK.sAoff)
    k.e("s_mov_b32 s%d, 0" % jK.sBoff)
    gemm_setup_common(k, g)
    gemm_setup_job(k, g, jK)
    k.e("s_waitcnt lgkmcnt(0)")
    k.e("s_lshl_b32 s%d, s%d, 18" % (sTa, sMtA))
    k.e("s_sub_u32 s%d, %d, s%d" % (sTb, 2048 * 1024, sTa))
    srd(k, jK.sA, sCKV, "s%d" % sTa, "s%d" % sTb)
    k.e("s_cmp_eq_u32 s%d, 0" % sIsV)
    k.e("s_cselect_b32 s78, s%d, s%d" % (sWUK, sWUV))
    k.e("s_cselect_b32 s79, s%d, s%d" % (sWUK + 1, sWUV + 1))
    k.e("s_lshl_b32 s%d, s%d, 9" % (sTa, sNtA))
    k.e("s_sub_u32 s%d, %d, s%d" % (sTb, 512 * 8192, sTa))
    srd(k, jK.sB, 78, "s%d" % sTa, "s%d" % sTb)
    srd(k, sLnX, sX, 0, 4 * MB)
    k.e("s_lshl3_add_u32 s%d, s2, s%d" % (sRow, g.sWave))

    def pf(base, nbytes, off):
        def f():
            srd(k, sPf, base, 0, nbytes)
            k.e("s_mov_b32 s%d, %d" % (sPfOff, off))
            k.e("buffer_load_dword v%d, v%d, %s, s%d offen" % (vDummy, vPf, sr(sPf, 4), sPfOff))
        return f
    PFW = 1024 * 64 << PFS

    def pf_all(base, nbytes):
        return [pf(base, nbytes, o) for o in range(0, nbytes, PFW)]

    k.e("s_and_b32 s%d, s%d, 3" % (sTa, g.sWave))
    k.e("s_lshl2_add_u32 s%d, s2, s%d" % (sTa, sTa))
    k.e("s_lshl_b32 s%d, s%d, %d" % (sTa, sTa, 6 + PFS))
    k.e("v_lshlrev_b32 v%d, %d, v%d" % (vPf, PFS - 4, g.vLane16))
    k.e("v_add_u32 v%d, s%d, v%d" % (vPf, sTa, vPf))
    k.e("s_cmp_ge_u32 s%d, 4" % g.sWave)
    k.e("s_cbranch_scc1 L_pj_startP")
    for s_ in range(2):
        for f in dma_list(k, g, jK, s_, "dma%d" % s_):
            f()
    ln_load(k, g)
    vmqD = list(k.vmq)
    k.e("s_branch L_pj_start2")
    k.label("L_pj_startP")
    k.vmq = []
    ln_load(k, g)
    srd(k, sDb, sWS, WS_FLAGS, 65536)
    k.e("v_mov_b32 v%d, 0" % vPoll)
    k.vm_op("buffer_load_dword v%d, v%d, %s, 0 offen sc1" % (vPk, vPoll, sr(sDb, 4)), "epoch")
    vmqP = list(k.vmq)
    for f in pf_all(sCKV, 2 * MB) + pf_all(sWUK, 4 * MB) + pf_all(sWUV, 4 * MB):
        f()
        vmqP.append("pf")
    k.label("L_pj_start2")
    srd(k, sLnO, sWS, WS_XN, 4 * MB)
    srd(k, sDb, sWS, WS_FLAGS, 65536)
    k.e("s_sub_u32 s%d, s2, 240" % sTa)
    k.e("s_cmp_lt_u32 s2, 240")
    k.e("s_cselect_b32 s%d, s2, s%d" % (sTa, sTa))
    k.e("s_and_b32 s%d, s%d, 7" % (sTb, sTa))
    k.e("s_lshr_b32 s%d, s%d, 3" % (sTa, sTa))
    k.e("s_mul_i32 s%d, s%d, 30" % (sTb, sTb))
    k.e("s_add_u32 s%d, s%d, s%d" % (sTa, sTa, sTb))
    k.e("s_and_b32 s%d, s%d, 7" % (sMtB, sTa))
    k.e("s_lshr_b32 s%d, s%d, 3" % (sTa, sTa))
    k.e("s_cmp_ge_u32 s%d, 16" % sTa)
    k.e("s_cselect_b32 s%d, 1, 0" % sIsH)
    k.e("s_cselect_b32 s%d, 7, 8" % jB.sPitchB)
    k.e("s_cselect_b32 s%d, 16, 0" % sTb)
    k.e("s_sub_u32 s%d, s%d, s%d" % (sNtB, sTa, sTb))
    k.e("s_lshl_b32 s%d, s%d, 10" % (jB.sPitchB, jB.sPitchB))
    k.e("s_mov_b32 s%d, 65536" % jB.sPitchA)
    k.e("s_movk_i32 s%d, 4096" % jB.sAstep)
    k.e("s_lshl_b32 s%d, s%d, 6" % (jB.sBstep, jB.sPitchB))
    k.e("s_mov_b32 s%d, 0" % jB.sAoff)
    k.e("s_mov_b32 s%d, 0" % jB.sBoff)
    gemm_setup_job(k, g, jB)
    k.e("s_lshl_b32 s%d, s%d, 19" % (sTa, sMtB))
    k.e("s_sub_u32 s%d, %d, s%d" % (sTb, 4 * MB, sTa))
    k.e("s_add_u32 s%d, s%d, %d" % (sTa, sTa, WS_XN))
    srd(k, jB.sA, sWS, "s%d" % sTa, "s%d" % sTb)
    k.e("s_cmp_eq_u32 s%d, 0" % sIsH)
    k.e("s_cselect_b32 s78, s%d, s%d" % (sWQ, sW1))
    k.e("s_cselect_b32 s79, s%d, s%d" % (sWQ + 1, sW1 + 1))
    k.e("s_lshl_b32 s%d, s%d, 9" % (sTa, sNtB))
    k.e("s_lshl_b32 s%d, s%d, 10" % (sTb, jB.sPitchB))
    k.e("s_sub_u32 s%d, s%d, s%d" % (sTb, sTb, sTa))
    srd(k, jB.sB, 78, "s%d" % sTa, "s%d" % sTb)
    k.e("s_lshr_b32 s%d, s%d, 1" % (sTa, g.sWn))
    k.e("s_lshl1_add_u32 s%d, s%d, s%d" % (sTa, sNtA, sTa))
    k.e("s_lshl_b32 s%d, s%d, 19" % (sStA, sTa))
    k.e("s_lshl_b32 s%d, s%d, 3" % (sTa, sMtA))
    k.e("s_lshl2_add_u32 s%d, s%d, s%d" % (sTa, g.sWm, sTa))
    k.e("s_lshl_b32 s%d, s%d, 13" % (sTa, sTa))
    k.e("s_add_u32 s%d, s%d, s%d" % (sStA, sStA, sTa))
    k.e("s_and_b32 s%d, s%d, 1" % (sTa, g.sWn))
    k.e("s_lshl_b32 s%d, s%d, 12" % (sTa, sTa))
    k.e("s_add_u32 s%d, s%d, s%d" % (sStA, sStA, sTa))
    k.e("s_lshl_b32 s%d, s%d, 24" % (sTa, sIsV))
    k.e("s_add_u32 s%d, s%d, %d" % (sTa, sTa, WS_K))
    srd(k, g.sO, sWS, "s%d" % sTa, 16 * MB)

    def flag(off_expr_emit, imms, wave=4):
        lab = k.newlabel("nosig")
        k.e("s_cmp_lg_u32 s%d, %d" % (g.sWave, wave))
        k.e("s_cbranch_scc1 %s" % lab)
        off_expr_emit(lab)
        k.e("v_mov_b32 v%d, 0" % (vPk + 4))
        k.e("v_mov_b32 v%d, s%d" % (vPk + 5, sNonce))
        k.e("s_mov_b64 exec, 1")
        for imm in imms:
            k.e("s_add_u32 s%d, s%d, %d" % (sTa, sTa, imm))
            k.e("buffer_store_dword v%d, v%d, %s, s%d offen sc1" % (vPk + 5, vPk + 4, sr(sDb, 4), sTa))
        k.e("s_mov_b64 exec, -1")
        k.label(lab)

    def signal():
        def off(lab):
            if FORCE_HELP & 1:
                k.e("s_and_b32 s%d, s2, 15" % sTa)
                k.e("s_cmp_eq_u32 s%d, 3" % sTa)
                k.e("s_cbranch_scc1 %s" % lab)
            k.e("s_lshl_b32 s%d, s2, 2" % sTa)
        flag(off, [FL_LN])

        def off2(lab):
            k.e("s_lshl_b32 s%d, s2, 2" % sTa)
        flag(off2, [FL_PS])

    def signal_kv(wave=4):
        def off(lab):
            k.e("s_lshl4_add_u32 s%d, s%d, s%d" % (sTa, sIsV, sNtA))
            k.e("s_lshl3_add_u32 s%d, s%d, s%d" % (sTa, sTa, sMtA))
            k.e("s_lshl_b32 s%d, s%d, 2" % (sTa, sTa))
        flag(off, [FL_KV], wave)

    def nonce1():
        lab = k.newlabel("non1")
        k.vm_need(["epoch"])
        k.e("s_cmp_lg_u32 s%d, 7" % g.sWave)
        k.e("s_cbranch_scc1 %s" % lab)
        srd(k, sPf, sDBG, 0, 256)
        k.e("v_add_u32 v%d, 1, v%d" % (vPk, vPk))
        k.e("v_max_u32 v%d, 1, v%d" % (vPk, vPk))
        k.e("v_mov_b32 v%d, v%d" % (vPk + 2, vPk))
        k.e("v_mov_b32 v%d, 0" % (vPk + 1))
        k.e("v_mov_b32 v%d, 0" % (vPk + 3))
        k.e("s_mov_b64 exec, 1")
        k.e("buffer_atomic_cmpswap %s, v%d, %s, 0 offen sc0 sc1" % (vr(vPk, 2), vPk + 3, sr(sPf, 4)))
        k.e("s_mov_b64 exec, -1")
        k.label(lab)

    def nonce2():
        lab, lab2 = k.newlabel("non2"), k.newlabel("non3")
        k.e("s_cmp_lg_u32 s%d, 7" % g.sWave)
        k.e("s_cbranch_scc1 %s" % lab)
        k.e("s_waitcnt vmcnt(0)")
        k.e("v_mov_b32 v%d, 0" % (vPk + 3))
        k.e("s_mov_b64 exec, 1")
        k.e("v_cmp_eq_u32 vcc, 0, v%d" % vPk)
        k.e("s_cbranch_vccz %s" % lab2)
        k.e("v_mov_b32 v%d, v%d" % (vPk, vPk + 2))
        k.e("buffer_store_dword v%d, v%d, %s, 0 offen sc1" % (vPk, vPk + 3, sr(sDb, 4)))
        k.label(lab2)
        k.e("v_mov_b32 v%d, %d" % (vPk + 1, NONCEW))
        k.e("ds_write_b32 v%d, v%d" % (vPk + 1, vPk))
        k.e("s_mov_b64 exec, -1")
        k.label(lab)

    def nonce3():
        k.e("v_mov_b32 v%d, %d" % (vPk + 1, NONCEW))
        k.lds_op("ds_read_b32 v%d, v%d" % (vPk, vPk + 1), [vPk])

    def nonce4():
        k.lds_need([vPk])
        k.e("v_readfirstlane_b32 s%d, v%d" % (sNonce, vPk))

    def bias_loads():
        out = []

        def setup():
            k.e("s_lshl_b32 s%d, s%d, 9" % (sTa, sNtB))
            k.e("s_lshl_b32 s%d, s%d, 7" % (sTb, g.sWn))
            k.e("s_add_u32 s%d, s%d, s%d" % (sTa, sTa, sTb))
            k.e("s_sub_u32 s%d, %d, s%d" % (sTb, 3584 * 2, sTa))
            k.e("s_cmp_eq_u32 s%d, 0" % sIsH)
            k.e("s_cselect_b32 s%d, 0, s%d" % (sTb, sTb))
            k.e("s_cselect_b32 s%d, 0, s%d" % (sTa, sTa))
            srd(k, sLnX, sB1, "s%d" % sTa, "s%d" % sTb)
            k.e("v_bfe_u32 v%d, v0, 5, 1" % vPoll)
            k.e("v_lshlrev_b32 v%d, 3, v%d" % (vPoll, vPoll))
        out.append(setup)
        for tn in range(2):
            for gq in range(4):
                out.append(lambda tn=tn, gq=gq: k.vm_op("buffer_load_dwordx2 %s, v%d, %s, 0 offen offset:%d" % (vr(vPk + (tn * 4 + gq) * 2, 2), vPoll, sr(sLnX, 4), tn * 64 + gq * 16), "bias"))
        return out

    def bias_unpack():
        out = [lambda: k.vm_need(["bias"])]
        for tn in range(2):
            for r in range(16):
                src = vPk + (tn * 4 + (r >> 2)) * 2 + ((r & 3) >> 1)
                d = vBias + 16 * tn + r
                if r & 1:
                    out.append(lambda d=d, src=src: k.e("v_and_b32 v%d, 0xffff0000, v%d" % (d, src)))
                else:
                    out.append(lambda d=d, src=src: k.e("v_lshlrev_b32 v%d, 16, v%d" % (d, src)))
        return out

    def poll_issue():
        k.vm_op("buffer_load_dwordx4 %s, v%d, %s, 0 offen offset:%d sc1" % (vr(vRaw, 4), g.vLane16, sr(sDb, 4), FL_LN), "poll")

    slow = []

    def poll_eval():
        k.e("v_xor_b32 v%d, s%d, v%d" % (vRaw, sNonce, vRaw))
        k.e("v_xor_b32 v%d, s%d, v%d" % (vRaw + 1, sNonce, vRaw + 1))
        k.e("v_xor_b32 v%d, s%d, v%d" % (vRaw + 2, sNonce, vRaw + 2))
        k.e("v_xor_b32 v%d, s%d, v%d" % (vRaw + 3, sNonce, vRaw + 3))
        k.e("v_or3_b32 v%d, v%d, v%d, v%d" % (vRaw + 4, vRaw, vRaw + 1, vRaw + 2))
        k.e("v_or_b32 v%d, v%d, v%d" % (vRaw + 4, vRaw + 4, vRaw + 3))
        k.e("v_cmp_ne_u32 vcc, 0, v%d" % (vRaw + 4))

    def first_missing(sdst, stmp):
        k.e("s_ff1_i32_b64 s%d, vcc" % stmp)
        k.e("v_cmp_ne_u32 vcc, 0, v%d" % (vRaw + 2))
        k.e("s_nop 1")
        k.e("v_cndmask_b32 v%d, 3, 2, vcc" % (vRaw + 4))
        k.e("v_cmp_ne_u32 vcc, 0, v%d" % (vRaw + 1))
        k.e("s_nop 1")
        k.e("v_cndmask_b32 v%d, v%d, 1, vcc" % (vRaw + 4, vRaw + 4))
        k.e("v_cmp_ne_u32 vcc, 0, v%d" % vRaw)
        k.e("s_nop 1")
        k.e("v_cndmask_b32 v%d, v%d, 0, vcc" % (vRaw + 4, vRaw + 4))
        k.e("s_nop 1")
        k.e("v_readlane_b32 s%d, v%d, s%d" % (sdst, vRaw + 4, stmp))
        k.e("s_nop 3")
        k.e("s_lshl2_add_u32 s%d, s%d, s%d" % (sdst, stmp, sdst))
        k.e("s_cmp_lt_i32 s%d, 0" % stmp)
        k.e("s_cselect_b32 s%d, -1, s%d" % (sdst, sdst))

    def poll_check():
        lab, back = k.newlabel("pollslow"), k.newlabel("pollback")
        poll_eval()
        k.e("s_cbranch_vccnz %s" % lab)
        k.label(back)
        slow.append((lab, back))

    def trk(f):
        def h():
            f()
            k.vmq.append("pf")
        return h

    quads = [208 + 4 * i for i in range(12)] + [2, 6, 10, 16]
    vPS = 72 + 6

    def ps_issue():
        lab = k.newlabel("nops")
        k.e("s_cmp_lg_u32 s%d, 0" % g.sWave)
        k.e("s_cbranch_scc1 %s" % lab)
        k.e("buffer_load_dwordx4 %s, v%d, %s, 0 offen offset:%d sc1" % (vr(2, 4), g.vLane16, sr(sDb, 4), FL_PS))
        k.label(lab)

    def kvstore(i):
        def f():
            tm, r = i // 4, i % 4
            k.vm_op("buffer_store_dwordx4 %s, v%d, %s, s%d offen offset:%d%s" % (vr(quads[i], 4), g.vLane16, sr(g.sO, 4), sStA, r * 1024, TRFLAGS), "st")
            if r == 3:
                k.e("s_add_u32 s%d, s%d, 8192" % (sStA, sStA))
        return f

    stamp(k, 2)
    k.e("s_cmp_ge_u32 s%d, 4" % g.sWave)
    k.e("s_cbranch_scc1 L_pj_roleP")
    for role in ("D", "P"):
        D = role == "D"
        if not D:
            k.label("L_pj_roleP")
        k.ldsq = []
        k.vmq = list(vmqD if D else vmqP)
        if D:
            k.vm_need(["dma0"])
        k.e("s_barrier")
        stamp(k, 3)
        state0 = (list(k.ldsq), list(k.vmq))
        k.e("s_cmp_eq_u32 s%d, 0" % sIsV)
        k.e("s_cbranch_scc0 L_pj_V%s" % role)
        end_state = None
        pfB = [trk(f) for f in pf_all(sWQ, 8 * MB) + pf_all(sW1, 1024 * 7168)]
        pfB = pfB[0::2] + pfB[1::2] if len(pfB) == 4 else pfB
        pfO = [trk(f) for f in pf_all(sWO, 8 * MB) + pf_all(sW2, 3584 * 2048)]
        for jA in (jK, jV):
            if jA is jV:
                k.label("L_pj_V%s" % role)
                k.ldsq, k.vmq = list(state0[0]), list(state0[1])
            for f in read_list(k, g, jA, 0, 0, 0):
                f()
            lnp = split_list(ln_steps(k, g, via_lds=True), 6)
            lns = ln_store_steps(k, g)
            carry = []
            pfsplit = split_list(pfB, 4)
            for t in range(8):
                extra = {}
                post = None
                need = ["dma%d" % (t + 1)]
                if t == 0:
                    extra = {0: ([] if D else [nonce1]) + lnp[0], 1: lnp[1], 2: lnp[2]}
                elif t == 1:
                    extra = {0: lnp[3], 1: lnp[4], 2: lnp[5]}
                elif t == 2:
                    extra = {0: lns[0:2], 1: lns[2:3], 2: [] if D else [nonce2]}
                elif t == 3:
                    extra = {0: [nonce3], 1: [nonce4]}
                    need.append("lnst")
                    if not D:
                        post = signal
                elif t == 5 and D:
                    extra = {2: [poll_issue]}
                elif t == 6 and D:
                    need.append("poll")
                    post = poll_check
                if not D and 3 <= t < 7:
                    extra[3] = pfsplit[t - 3]
                jd = (jA if t < 6 else jB) if D else None
                jn = jA if t < 7 else jB
                carry = gemm_body(k, g, t % 2, jA, jn, jd, need, "dma%d" % (t + 2), extra=extra,
                                  cinit=(lambda tm, tn: "0") if t == 0 else None, post_barrier=post,
                                  carry=carry, ncarry=NCARRY if D else 0)
            st = (list(k.ldsq), list(k.vmq))
            if end_state is None:
                end_state = st
                k.e("s_branch L_pj_T%s" % role)
            else:
                assert st == end_state
        k.label("L_pj_T%s" % role)
        if DIAG:
            stamp(k, 5)
        cnt = [0]

        def pre(tm, tn):
            for p in range(2):
                pack_only(k, g.acc(tm, tn) + 8 * p, quads[cnt[0]])
                cnt[0] += 1
        pfsplit = split_list(pfO, 8)
        for t in range(8, 24):
            last = t == 23
            ex = {1: [kvstore(2 * (t - 8))], 2: [kvstore(2 * (t - 8) + 1)]} if t < 16 else {1: []}
            needB = ["dma%d" % (t + 1)]
            postB = None
            if t == 17:
                needB.append("st")
                if not D:
                    postB = signal_kv
            if t == 19 and D:
                ex[2] = [ps_issue]
            if not D and 9 <= t < 17:
                ex[3] = pfsplit[t - 9]
            if t == 20:
                ex[0] = bias_loads()
            if t == 21:
                bu = split_list(bias_unpack(), 3)
                ex[0] = bu[0]; ex[1] = bu[1]; ex[2] = bu[2]
            carry = gemm_body(k, g, t % 2, jB, None if last else jB, jB if (t < 22 and D) else None, needB, "dma%d" % (t + 2), extra=ex, post_barrier=postB,
                              cinit=(lambda tm, tn: "0") if t == 8 else None, pre=pre if t == 8 else None,
                              carry=carry, ncarry=NCARRY if D else 0)
            if t == 8:
                cont = k.newlabel("cont")
                k.e("s_cmp_lt_u32 s2, 240")
                k.e("s_cbranch_scc1 %s" % cont)
                sv = (list(k.ldsq), list(k.vmq))
                for i in range(2, 16):
                    kvstore(i)()
                ps_issue()
                k.e("s_waitcnt vmcnt(0) lgkmcnt(0)")
                k.e("s_barrier")
                signal_kv()
                k.e("s_branch L_pj_chk")
                k.label(cont)
                k.ldsq, k.vmq = sv
        if D:
            k.e("s_branch L_pj_epi")
    k.label("L_pj_epi")
    k.e("s_nop 15")
    stamp(k, 4)
    k.e("s_cmp_eq_u32 s%d, 0" % sIsH)
    k.e("s_cbranch_scc0 L_pj_H")
    srd(k, g.sO, sWS, WS_Q, 16 * MB)
    k.e("s_lshr_b32 s%d, s%d, 1" % (sTa, g.sWn))
    k.e("s_lshl1_add_u32 s%d, s%d, s%d" % (sTa, sNtB, sTa))
    k.e("s_lshl_b32 s%d, s%d, 19" % (sStA, sTa))
    k.e("s_lshl_b32 s%d, s%d, 3" % (sTa, sMtB))
    k.e("s_lshl2_add_u32 s%d, s%d, s%d" % (sTa, g.sWm, sTa))
    k.e("s_lshl_b32 s%d, s%d, 13" % (sTa, sTa))
    k.e("s_add_u32 s%d, s%d, s%d" % (sStA, sStA, sTa))
    k.e("s_and_b32 s%d, s%d, 1" % (sTa, g.sWn))
    k.e("s_lshl_b32 s%d, s%d, 12" % (sTa, sTa))
    k.e("s_add_u32 s%d, s%d, s%d" % (sStA, sStA, sTa))
    k.e("s_mov_b32 s78, 0x%08x" % f32bits(QSCALE))
    k.e("s_mov_b32 s79, 0x%08x" % f32bits(QSCALE))
    tq = 0
    for tm in range(4):
        for tn in range(2):
            for p in range(2):
                src = g.acc(tm, tn) + 8 * p
                for i in range(4):
                    k.e("v_pk_mul_f32 %s, %s, s[78:79]" % (vr(src + 2 * i, 2), vr(src + 2 * i, 2)))
                pack_store(k, g, src, vPk + 4 * (tq % 4), sStA, (tn * 2 + p) * 1024)
                tq += 1
        if tm < 3:
            k.e("s_add_u32 s%d, s%d, 8192" % (sStA, sStA))
    k.e("s_branch L_pj_fin")
    k.label("L_pj_H")
    srd(k, g.sO, sWS, WS_AH, 2048 * 7680 * 2)
    k.e("s_lshl_b32 s%d, s%d, 3" % (sTa, sMtB))
    k.e("s_lshl2_add_u32 s%d, s%d, s%d" % (sTa, g.sWm, sTa))
    k.e("s_mul_i32 s%d, s%d, 480" % (sTa, sTa))
    k.e("s_lshl_b32 s%d, s%d, 4" % (sStA, sNtB))
    k.e("s_add_u32 s%d, s%d, s%d" % (sStA, sStA, sTa))
    k.e("s_lshl2_add_u32 s%d, s%d, s%d" % (sStA, g.sWn, sStA))
    k.e("s_add_u32 s%d, s%d, 256" % (sStA, sStA))
    k.e("s_lshl_b32 s%d, s%d, 10" % (sStA, sStA))
    k.e("s_mov_b32 s78, 0x%08x" % f32bits(GELU_C2))
    k.e("s_mov_b32 s79, 0x%08x" % f32bits(GELU_C2))
    k.e("v_mov_b32 v%d, 0x%08x" % (g.vTmp, f32bits(GELU_C1)))
    k.e("v_mov_b32 v%d, 0x%08x" % (g.vTmp + 1, f32bits(GELU_C1)))
    k.e("v_mov_b32 v%d, 1.0" % (g.vTmp + 2))
    k.e("v_mov_b32 v%d, 1.0" % (g.vTmp + 3))
    c1 = vr(g.vTmp, 2)
    one2 = vr(g.vTmp + 2, 2)
    tq = 0
    for tm in range(4):
        for tn in range(2):
            for p in range(2):
                src = g.acc(tm, tn) + 8 * p
                tb = g.vF + 8 * (tq % 2)
                for i in range(4):
                    k.e("v_pk_add_f32 %s, %s, %s" % (vr(src + 2 * i, 2), vr(src + 2 * i, 2), vr(vBias + 16 * tn + 8 * p + 2 * i, 2)))
                for i in range(4):
                    k.e("v_pk_mul_f32 %s, %s, %s" % (vr(tb + 2 * i, 2), vr(src + 2 * i, 2), vr(src + 2 * i, 2)))
                for i in range(4):
                    k.e("v_pk_fma_f32 %s, %s, s[78:79], %s" % (vr(tb + 2 * i, 2), vr(tb + 2 * i, 2), c1))
                for i in range(4):
                    k.e("v_pk_mul_f32 %s, %s, %s" % (vr(tb + 2 * i, 2), vr(tb + 2 * i, 2), vr(src + 2 * i, 2)))
                for i in range(8):
                    k.e("v_exp_f32 v%d, v%d" % (tb + i, tb + i))
                for i in range(4):
                    k.e("v_pk_add_f32 %s, %s, %s" % (vr(tb + 2 * i, 2), vr(tb + 2 * i, 2), one2))
                for i in range(8):
                    k.e("v_rcp_f32 v%d, v%d" % (tb + i, tb + i))
                for i in range(4):
                    k.e("v_pk_mul_f32 %s, %s, %s" % (vr(src + 2 * i, 2), vr(src + 2 * i, 2), vr(tb + 2 * i, 2)))
                pack_store(k, g, src, vPk + 4 * (tq % 4), sStA, (tn * 2 + p) * 1024)
                tq += 1
        if tm < 3:
            k.e("s_add_u32 s%d, s%d, %d" % (sStA, sStA, 480 * 1024))
    k.label("L_pj_fin")
    k.e("s_waitcnt vmcnt(0)")
    k.e("s_barrier")

    def offqh(lab):
        k.e("s_lshl4_add_u32 s%d, s%d, s%d" % (sTa, sIsH, sNtB))
        k.e("s_lshl3_add_u32 s%d, s%d, s%d" % (sTa, sTa, sMtB))
        k.e("s_lshl_b32 s%d, s%d, 2" % (sTa, sTa))
    flag(offqh, [FL_QH])
    k.label("L_pj_chk")
    lab = k.newlabel("nochk")
    k.e("s_cmp_lg_u32 s%d, 0" % g.sWave)
    k.e("s_cbranch_scc1 %s" % lab)
    for i in range(4):
        k.e("v_mov_b32 v%d, v%d" % (vRaw + i, 2 + i))
    poll_eval()
    first_missing(78, 79)
    k.e("v_mov_b32 v%d, s78" % vPk)
    k.e("v_mov_b32 v%d, %d" % (vPk + 1, NONCEW + 4))
    k.e("ds_write_b32 v%d, v%d" % (vPk + 1, vPk))
    k.label(lab)
    k.e("s_waitcnt lgkmcnt(0)")
    k.e("s_barrier")
    k.e("v_mov_b32 v%d, %d" % (vPk + 1, NONCEW + 4))
    k.e("ds_read_b32 v%d, v%d" % (vPk, vPk + 1))
    k.e("s_waitcnt lgkmcnt(0)")
    k.e("v_readfirstlane_b32 s78, v%d" % vPk)
    k.e("s_nop 3")
    k.e("s_cmp_lt_i32 s78, 0")
    k.e("s_cbranch_scc1 L_pj_done")
    k.e("s_mov_b32 s2, s78")
    k.e("s_waitcnt vmcnt(0)")
    k.e("s_barrier")
    k.e("s_branch L_pj_task")

    def emit_slow():
        for lab, back in slow:
            spin, helpl, rowl = k.newlabel("spin"), k.newlabel("help"), k.newlabel("rowl")
            k.label(lab)
            k.e("s_mov_b32 s78, 0")
            k.label(spin)
            k.e("buffer_load_dwordx4 %s, v%d, %s, 0 offen offset:%d sc1" % (vr(vRaw, 4), g.vLane16, sr(sDb, 4), FL_LN))
            k.e("s_waitcnt vmcnt(0)")
            poll_eval()
            k.e("s_cbranch_vccz %s" % back)
            k.e("s_add_u32 s78, s78, 1")
            k.e("s_cmp_ge_u32 s78, 32")
            k.e("s_cbranch_scc1 %s" % helpl)
            k.e("s_sleep 8")
            k.e("s_branch %s" % spin)
            k.label(helpl)
            first_missing(79, sTa)
            k.e("s_lshl_b32 s%d, s79, 3" % sRow)
            k.e("s_mov_b32 s78, 8")
            k.label(rowl)
            sv = (list(k.ldsq), list(k.vmq))
            k.vmq = []
            ln_load(k, g)
            for f in ln_steps(k, g):
                f()
            k.e("s_add_u32 s%d, s%d, 1" % (sRow, sRow))
            k.e("s_sub_u32 s78, s78, 1")
            k.e("s_cmp_lg_u32 s78, 0")
            k.e("s_cbranch_scc1 %s" % rowl)
            k.e("s_waitcnt vmcnt(0)")
            k.e("s_lshl_b32 s79, s79, 2")
            k.e("v_mov_b32 v%d, s79" % g.vTmp)
            k.e("v_mov_b32 v%d, s%d" % (g.vTmp + 1, sNonce))
            k.e("s_mov_b64 exec, 1")
            k.e("buffer_store_dword v%d, v%d, %s, 0 offen offset:%d sc1" % (g.vTmp + 1, g.vTmp, sr(sDb, 4), FL_LN))
            k.e("s_mov_b64 exec, -1")
            k.ldsq, k.vmq = sv
            k.e("s_mov_b32 s78, 31")
            k.e("s_branch %s" % spin)
    tail_code.append(emit_slow)
    k.label("L_pj_done")
    k.e("s_mov_b32 s2, s%d" % sWG)
```

```python
from asmlib import *
from gemm import *
import attn as AT
MB = 1 << 20
WS_AH = 52 * MB
WS_PART = 84 * MB
ARG_X, ARG_WO, ARG_W2, ARG_B2, ARG_OUT, ARG_DBG, ARG_WS = 0, 40, 72, 80, 88, 96, 104
FORCE_HELP = int(os.environ.get("FORCE_HELP", "0"))


def srd(k, d, base, off, nbytes):
    k.e("s_add_u32 s%d, s%d, %s" % (d, base, off))
    k.e("s_addc_u32 s%d, s%d, 0" % (d + 1, base + 1))
    k.e("s_mov_b32 s%d, %s" % (d + 2, nbytes))
    k.e("s_mov_b32 s%d, 0x00020000" % (d + 3))


def gen_mega_kernel():
    import proj as PJ
    k = KB()
    slow_blocks = []
    tail_code = []
    k.e("s_cmp_ge_u32 s2, 256")
    k.e("s_cbranch_scc1 L_ao_end")
    k.vst = 78
    stamp(k, 0); stamp_rt(k, 1)
    k.e("s_mov_b32 s%d, s2" % PJ.sWG)
    if FORCE_HELP & 4:
        k.e("s_and_b32 s3, s2, 63")
        k.e("s_cmp_eq_u32 s3, 9")
        k.e("s_cbranch_scc0 L_pj_task")
        k.e("s_add_u32 s2, s2, 1")
    PJ.emit_proj(k, tail_code)
    if DIAG:
        k.e("v_mov_b32 v14, v78")
        k.e("v_mov_b32 v15, v79")
        k.vst = 14
    k.ldsq, k.vmq = [], []
    k.e("s_mov_b32 s%d, s2" % AT.sTask)
    if FORCE_HELP & 2:
        k.e("s_and_b32 s3, s2, 63")
        k.e("s_cmp_eq_u32 s3, 5")
        k.e("s_cbranch_scc0 L_at_task")
        k.e("s_add_u32 s%d, s2, 1" % AT.sTask)
    AT.emit_attn(k, slow_blocks)
    k.e("v_readfirstlane_b32 s3, v%d" % AT.vChk)
    k.e("s_lshl_b32 s63, s%d, 5" % AT.sPi)
    k.e("s_add_u32 s63, s63, s%d" % AT.sHead)
    k.e("s_cmp_lt_i32 s3, 0")
    k.e("s_cbranch_scc1 L_ao_out")
    k.e("s_waitcnt vmcnt(0)")
    k.e("s_barrier")
    AT.flag_store(k, 63, AT.FL_AD)
    k.e("s_mov_b32 s%d, s3" % AT.sTask)
    k.e("s_branch L_at_task")
    k.label("L_ao_out")
    if os.environ.get("ATONLY"):
        stamp_flush(k, 2, AT.sWS)
        k.e("s_endpgm")
    if DIAG:
        k.e("v_mov_b32 v60, v14")
        k.e("v_mov_b32 v61, v15")
        k.vst = 60
    g = GemmCfg(TM=2, TN=2, WM=4, WN=2, NS=3, vRB=14, vTmp=20, vF=28)
    j = Job("frag", True, 4, 8, 16, 17, 33, 26, 29, 30, 2, 6, 10, "O")
    sFl = AT.sFl
    k.ldsq, k.vmq = [], ["st"] * 4
    k.e("s_load_dwordx2 s[40:41], s[0:1], %d" % ARG_WO)
    k.e("s_load_dwordx2 s[42:43], s[0:1], %d" % ARG_W2)
    k.e("s_load_dwordx2 s[44:45], s[0:1], %d" % ARG_DBG)
    k.e("s_bfe_u32 s64, s2, 0x20001")
    k.e("s_and_b32 s65, s2, 1")
    k.e("s_lshr_b32 s66, s2, 6")
    k.e("s_lshl2_add_u32 s65, s65, s66")
    k.e("s_bfe_u32 s66, s2, 0x30003")
    k.e("s_mov_b32 s%d, %d" % (j.sPitchA, 480 * 1024))
    k.e("s_movk_i32 s%d, 2048" % j.sPitchB)
    k.e("s_movk_i32 s%d, 4096" % j.sAstep)
    k.e("s_mov_b32 s%d, %d" % (j.sBstep, 64 * 2048))
    k.e("s_mul_i32 s%d, s64, %d" % (j.sAoff, 14 * 4096))
    k.e("s_add_u32 s%d, s%d, %d" % (j.sAoff, j.sAoff, 64 * 4096))
    k.e("s_mul_i32 s%d, s64, %d" % (j.sBoff, 14 * 64 * 2048))
    gemm_setup_common(k, g)
    gemm_setup_job(k, g, j)
    k.e("s_mul_i32 s67, s65, %d" % (8 * 480 * 1024))
    k.e("s_sub_u32 s68, %d, s67" % (2048 * 7680 * 2))
    k.e("s_add_u32 s67, s67, %d" % WS_AH)
    srd(k, j.sA, AT.sWS, "s67", "s68")
    k.e("s_waitcnt lgkmcnt(0)")
    k.e("s_lshl_b32 s67, s66, 8")
    k.e("s_sub_u32 s68, %d, s67" % (3584 * 2048))
    srd(k, j.sB, 42, "s67", "s68")
    k.e("v_and_b32 v%d, 15, v0" % g.vTmp)
    k.e("v_min_u32 v%d, 13, v%d" % (g.vTmp, g.vTmp))
    k.e("v_lshlrev_b32 v%d, 5, v%d" % (g.vTmp, g.vTmp))
    k.e("s_lshl_b32 s67, s65, 2")
    k.e("s_add_u32 s67, s67, %d" % (AT.FL_QH + 16 * 32))
    k.label("L_ao_hdep")
    k.e("buffer_load_dword v%d, v%d, %s, s67 offen sc1" % (g.vTmp + 1, g.vTmp, sr(sFl, 4)))
    k.e("s_waitcnt vmcnt(0)")
    k.e("v_cmp_ne_u32 vcc, s%d, v%d" % (AT.sNonce, g.vTmp + 1))
    k.e("s_cbranch_vccz L_ao_hok")
    k.e("s_sleep 2")
    k.e("s_branch L_ao_hdep")
    k.label("L_ao_hok")
    k.e("s_barrier")
    for s in range(g.NS):
        for f in dma_list(k, g, j, s, "dma%d" % s):
            f()
    srd(k, 56, AT.sWS, AT.WS_FLAGS + AT.FL_ST, 32768)
    k.vm_need(["dma0"])
    k.e("s_barrier")
    lab = k.newlabel("nofl")
    k.e("s_cmp_lg_u32 s%d, 0" % g.sWave)
    k.e("s_cbranch_scc1 %s" % lab)
    k.e("s_lshl_b32 s63, s63, 2")
    k.e("v_mov_b32 v%d, %d" % (g.vTmp, AT.FL_AD))
    k.e("v_mov_b32 v%d, s%d" % (g.vTmp + 1, AT.sNonce))
    k.e("s_mov_b64 exec, 1")
    k.e("buffer_store_dword v%d, v%d, %s, s63 offen sc1" % (g.vTmp + 1, g.vTmp, sr(sFl, 4)))
    k.e("s_mov_b64 exec, -1")
    k.label(lab)
    stamp(k, 12)
    for f in read_list(k, g, j, 0, 0, 0):
        f()
    vPoll, vPA = g.vTmp + 6, g.vTmp + 7
    slow = []

    def poll_issue():
        k.e("v_bfe_u32 v%d, v0, 3, 1" % vPoll)
        k.e("v_and_b32 v%d, 7, v0" % vPA)
        k.e("v_lshlrev_b32 v%d, 2, v%d" % (vPA, vPA))
        k.e("v_lshl_add_u32 v%d, v%d, 7, v%d" % (vPA, vPoll, vPA))
        k.e("s_lshl_b32 s67, s65, 8")
        k.e("s_lshl_b32 s68, s64, 5")
        k.e("s_add_u32 s67, s67, s68")
        k.e("s_add_u32 s67, s67, %d" % AT.FL_AD)
        k.e("v_add_u32 v%d, s67, v%d" % (vPA, vPA))
        k.vm_op("buffer_load_dword v%d, v%d, %s, 0 offen sc1" % (vPoll, vPA, sr(sFl, 4)), "poll")

    def poll_check_and_switch():
        lab, back = k.newlabel("pslow"), k.newlabel("pback")
        k.e("v_cmp_ne_u32 vcc, s%d, v%d" % (AT.sNonce, vPoll))
        k.e("s_cbranch_vccnz %s" % lab)
        k.label(back)
        slow.append((lab, back))
        k.e("s_mul_i32 s%d, s64, %d" % (j.sAoff, 16 * 4096))
        k.e("s_mul_i32 s%d, s64, %d" % (j.sBoff, 16 * 64 * 2048))
        k.e("s_lshl_b32 s67, s66, 8")
        k.e("s_sub_u32 s68, %d, s67" % (4096 * 2048))
        srd(k, j.sB, 40, "s67", "s68")

    for t in range(3):
        gemm_body(k, g, t, j, j, j, None, "dma", vmwait=g.ND, cinit=(lambda tm, tn: "0") if t == 0 else None)
    gemm_loop(k, g, j, 0, 6, "oa")
    gemm_body(k, g, 0, j, j, j, None, "dma", vmwait=g.ND)
    gemm_body(k, g, 1, j, j, j, None, "dma", vmwait=g.ND, extra={0: [poll_issue]})
    gemm_body(k, g, 2, j, j, j, None, "dma", vmwait=g.ND, post_barrier=poll_check_and_switch)
    gemm_loop(k, g, j, 0, 15, "ob")
    gemm_tail(k, g, j, 0)
    stamp(k, 13)
    vTk = g.vTmp + 5
    OWN = 128
    k.e("s_load_dwordx2 s[40:41], s[0:1], %d" % ARG_X)
    k.e("s_load_dwordx4 s[44:47], s[0:1], %d" % ARG_B2)
    k.e("s_lshl3_add_u32 s67, s65, s66")
    k.e("s_lshl_b32 s70, s67, 19")
    k.e("s_lshl_b32 s71, s%d, 14" % g.sWave)
    k.e("s_add_u32 s70, s70, s71")
    srd(k, g.sO, AT.sWS, WS_PART, 32 * MB)
    k.e("s_lshl3_add_u32 s67, s67, s%d" % g.sWave)
    k.e("s_lshl_b32 s67, s67, 6")
    k.e("s_lshl_b32 s71, s64, 17")
    k.e("s_add_u32 s71, s71, s70")
    for sp in range(4):
        if sp < 3:
            k.e("s_cmp_lg_u32 s64, %d" % sp)
            k.e("s_cbranch_scc1 L_ao_v%d" % (sp + 1))
        for t4 in range(4):
            if t4 == sp:
                continue
            k.e("s_add_u32 s72, s71, %d" % (t4 * 4096))
            for i in range(4):
                k.e("buffer_store_dwordx4 %s, v%d, %s, s72 offen offset:%d sc1" % (vr(g.vAcc + 16 * t4 + 4 * i, 4), g.vLane16, sr(g.sO, 4), i * 1024))
        for i in range(16):
            k.e("v_mov_b32 v%d, v%d" % (OWN + i, g.vAcc + 16 * sp + i))
        if sp < 3:
            k.e("s_branch L_ao_v4")
            k.label("L_ao_v%d" % (sp + 1))
    k.label("L_ao_v4")
    vX = g.vTmp
    k.e("v_and_b32 v%d, 31, v0" % vX)
    k.e("v_lshlrev_b32 v%d, 11, v%d" % (vX, vX))
    k.e("v_bfe_u32 v%d, v0, 5, 1" % (vX + 1))
    k.e("v_lshl_add_u32 v%d, v%d, 4, v%d" % (vX, vX + 1, vX))
    k.e("v_lshlrev_b32 v%d, 4, v%d" % (vX + 1, vX + 1))
    k.e("s_lshl_b32 s72, s65, 2")
    k.e("s_add_u32 s72, s72, s%d" % g.sWm)
    k.e("s_lshl_b32 s72, s72, 17")
    k.e("s_lshl1_add_u32 s73, s66, s%d" % g.sWn)
    k.e("s_lshl_b32 s73, s73, 7")
    k.e("v_mov_b32 v%d, s67" % vPA)
    k.e("s_waitcnt lgkmcnt(0)")
    srd(k, 4, 40, 0, 4 * MB)
    srd(k, 8, 44, 0, 2048)
    srd(k, 80, 46, 0, 4 * MB)

    def xb_loads(sq):
        k.e("s_and_b32 s76, s%d, 1" % sq)
        k.e("s_lshl_b32 s76, s76, 6")
        k.e("s_add_u32 s76, s76, s73")
        k.e("s_lshr_b32 s77, s%d, 1" % sq)
        k.e("s_lshl_b32 s77, s77, 16")
        k.e("s_add_u32 s77, s77, s72")
        k.e("s_add_u32 s77, s77, s76")
        for p in range(2):
            k.e("buffer_load_dwordx4 %s, v%d, s[4:7], s77 offen offset:%d" % (vr(28 + 4 * p, 4), vX, p * 32))
            k.e("buffer_load_dwordx4 %s, v%d, s[8:11], s76 offen offset:%d" % (vr(36 + 4 * p, 4), vX + 1, p * 32))

    def finish(b0):
        k.e("s_nop 1")
        for p in range(2):
            for i in range(4):
                k.e("v_permlane32_swap_b32 v%d, v%d" % (b0 + 8 * p + i, b0 + 8 * p + 4 + i))
        T = 44
        for p in range(2):
            b = b0 + 8 * p
            x4, b4 = 28 + 4 * p, 36 + 4 * p
            for i in range(4):
                k.e("v_lshlrev_b32 v%d, 16, v%d" % (T, x4 + i))
                k.e("v_and_b32 v%d, 0xffff0000, v%d" % (T + 1, x4 + i))
                k.e("v_lshlrev_b32 v%d, 16, v%d" % (T + 2, b4 + i))
                k.e("v_and_b32 v%d, 0xffff0000, v%d" % (T + 3, b4 + i))
                k.e("v_pk_add_f32 %s, %s, %s" % (vr(T, 2), vr(T, 2), vr(T + 2, 2)))
                k.e("v_pk_add_f32 %s, %s, %s" % (vr(b + 2 * i, 2), vr(b + 2 * i, 2), vr(T, 2)))
            for i in range(4):
                k.e("v_cvt_pk_bf16_f32 v%d, v%d, v%d" % (48 + 4 * p + i, b + 2 * i, b + 2 * i + 1))
            k.e("buffer_store_dwordx4 %s, v%d, s[80:83], s77 offen offset:%d" % (vr(48 + 4 * p, 4), vX, p * 32))
    k.e("s_waitcnt vmcnt(0)")
    k.e("v_and_b32 v%d, 7, v0" % vPoll)
    k.e("v_lshl_add_u32 v%d, v%d, 2, v%d" % (vPoll, vPoll, vPA))
    k.e("v_mov_b32 v%d, s%d" % (vTk, AT.sNonce))
    k.e("s_lshl_b32 s69, s64, 2")
    k.e("s_mov_b64 exec, 1")
    k.e("buffer_store_dword v%d, v%d, s[56:59], s69 offen sc1" % (vTk, vPA))
    k.e("s_mov_b64 exec, -1")
    xb_loads(64)
    k.e("s_mov_b32 s75, %d" % (3 if FORCE_HELP else 4000))
    k.e("s_waitcnt vmcnt(4)")
    k.label("L_ao_spin")
    k.e("buffer_load_dword v%d, v%d, s[56:59], 0 offen sc1" % (vTk, vPoll))
    k.e("s_waitcnt vmcnt(0)")
    k.e("v_cmp_eq_u32 vcc, s%d, v%d" % (AT.sNonce, vTk))
    k.e("s_and_b32 s69, vcc_lo, 15")
    k.e("s_bfe_u32 s74, vcc_lo, 0x40004")
    k.e("s_cmp_eq_u32 s69, 15")
    k.e("s_cbranch_scc1 L_ao_own")
    k.e("s_cmp_eq_u32 s75, 0")
    k.e("s_cbranch_scc1 L_ao_flush")
    k.e("s_sleep 2")
    k.e("s_sub_u32 s75, s75, 1")
    k.e("s_cmp_lg_u32 s75, 0")
    k.e("s_cbranch_scc1 L_ao_spin")
    k.e("s_lshl_b32 s69, s64, 12")
    k.e("s_add_u32 s69, s69, s71")
    for i in range(4):
        k.e("buffer_store_dwordx4 %s, v%d, %s, s69 offen offset:%d sc1" % (vr(OWN + 4 * i, 4), g.vLane16, sr(g.sO, 4), i * 1024))
    k.e("s_waitcnt vmcnt(0)")
    k.e("v_mov_b32 v%d, s%d" % (vTk, AT.sNonce))
    k.e("s_lshl_b32 s69, s64, 2")
    k.e("s_mov_b64 exec, 1")
    k.e("buffer_store_dword v%d, v%d, s[56:59], s69 offen offset:16 sc1" % (vTk, vPA))
    k.e("s_mov_b64 exec, -1")
    k.e("s_waitcnt vmcnt(0)")
    k.e("s_branch L_ao_spin")
    k.label("L_ao_own")
    k.e("s_bitset0_b32 s74, s64")
    for i3 in range(1, 4):
        k.e("s_add_u32 s75, s64, %d" % i3)
        k.e("s_and_b32 s75, s75, 3")
        k.e("s_lshl_b32 s75, s75, 17")
        k.e("s_add_u32 s75, s75, s70")
        k.e("s_lshl_b32 s69, s64, 12")
        k.e("s_add_u32 s75, s75, s69")
        for i in range(4):
            k.e("buffer_load_dwordx4 %s, v%d, %s, s75 offen offset:%d sc1" % (vr(64 + 16 * i3 + 4 * i, 4), g.vLane16, sr(g.sO, 4), i * 1024))
    k.e("s_waitcnt vmcnt(8)")
    for i in range(8):
        k.e("v_pk_add_f32 %s, %s, %s" % (vr(OWN + 2 * i, 2), vr(OWN + 2 * i, 2), vr(80 + 2 * i, 2)))
    k.e("s_waitcnt vmcnt(0)")
    for i in range(8):
        k.e("v_pk_add_f32 %s, %s, %s" % (vr(96 + 2 * i, 2), vr(96 + 2 * i, 2), vr(112 + 2 * i, 2)))
    for i in range(8):
        k.e("v_pk_add_f32 %s, %s, %s" % (vr(OWN + 2 * i, 2), vr(OWN + 2 * i, 2), vr(96 + 2 * i, 2)))
    finish(OWN)
    k.label("L_ao_q")
    k.e("s_cmp_eq_u32 s74, 0")
    k.e("s_cbranch_scc1 L_ao_flush")
    k.e("s_ff1_i32_b32 s75, s74")
    k.e("s_bitset0_b32 s74, s75")
    k.e("s_lshl_b32 s71, s75, 12")
    k.e("s_add_u32 s71, s71, s70")
    for sp in range(4):
        for i in range(4):
            k.e("buffer_load_dwordx4 %s, v%d, %s, s71 offen offset:%d sc1" % (vr(64 + 16 * sp + 4 * i, 4), g.vLane16, sr(g.sO, 4), i * 1024))
        if sp < 3:
            k.e("s_add_u32 s71, s71, 131072")
    xb_loads(75)
    k.e("s_waitcnt vmcnt(0)")
    for i in range(8):
        k.e("v_pk_add_f32 %s, %s, %s" % (vr(64 + 2 * i, 2), vr(64 + 2 * i, 2), vr(80 + 2 * i, 2)))
    for i in range(8):
        k.e("v_pk_add_f32 %s, %s, %s" % (vr(96 + 2 * i, 2), vr(96 + 2 * i, 2), vr(112 + 2 * i, 2)))
    for i in range(8):
        k.e("v_pk_add_f32 %s, %s, %s" % (vr(64 + 2 * i, 2), vr(64 + 2 * i, 2), vr(96 + 2 * i, 2)))
    finish(64)
    k.e("s_branch L_ao_q")
    k.label("L_ao_flush")
    stamp_flush(k, 2, AT.sWS)
    k.label("L_ao_end")
    k.e("s_endpgm")
    for args in slow_blocks:
        AT.emit_slow(k, *args)
    for f in tail_code:
        f()
    for lab, back in slow:
        k.label(lab)
        k.e("s_sleep 2")
        k.e("buffer_load_dword v%d, v%d, %s, 0 offen sc1" % (vPoll, vPA, sr(sFl, 4)))
        k.e("s_waitcnt vmcnt(0)")
        k.e("v_cmp_ne_u32 vcc, s%d, v%d" % (AT.sNonce, vPoll))
        k.e("s_cbranch_vccnz %s" % lab)
        k.e("s_branch %s" % back)
    return k.text(), 256, 163840
```

```python
import struct
from asmlib import *

MB = 1 << 20
WS_Q = 4 * MB
WS_K = 20 * MB
WS_VT = 36 * MB
WS_AH = 52 * MB
ARG_WS = 104
STF = os.environ.get("STFLAGS", "sc1")


def f32bits(x):
    return struct.unpack("<I", struct.pack("<f", x))[0]


vL16 = 1
vKA = 2
vVA = 3
vL0, vL1 = 4, 5
vMax = 6
vT0 = 7
vThr = 8
vNeg = 9
vD = 10
vT1 = 11
vT2 = 12
vT3 = 13
vQ = 16
vKf = 48
vVf = 80
vS = [112, 128]
vNm = 144
vP = 160
vE = 168
vLa, vLb = 174, 175
vO = 176
NV = 248
sK, sV, sO, sQ = 4, 8, 12, 16
sJ, sJL, sKoff, sVoff, sWave, sG, sWq = 20, 21, 22, 23, 24, 25, 26
sM0K, sM0V = 27, 29
sT, sPhase, sHead, sPi = 31, 32, 33, 34
sA, sB = 35, 36
sPar = 37
sMask = 40
sWS = 48
THRESH = 2.0 ** 24
XCH = 131072


def srd(k, d, base, off, nbytes):
    k.e("s_add_u32 s%d, s%d, %s" % (d, base, off))
    k.e("s_addc_u32 s%d, s%d, 0" % (d + 1, base + 1))
    k.e("s_mov_b32 s%d, %s" % (d + 2, nbytes))
    k.e("s_mov_b32 s%d, 0x00020000" % (d + 3))


def kread(k, slot, n):
    out = []
    if "nolds" in os.environ.get("XP", ""):
        return [lambda: None] * 8
    for C in range(8):
        def f(C=C):
            d = vKf + 4 * C
            k.lds_op("ds_read_b128 %s, v%d offset:%d" % (vr(d, 4), vKA, slot * 32768 + n * 8192 + C * 1024), rng(d, 4))
        out.append(f)
    return out


def vread(k, slot, n):
    out = []
    if "nolds" in os.environ.get("XP", ""):
        return [lambda: None] * 8
    for jj in range(2):
        for R in range(4):
            def f(R=R, jj=jj):
                d = vVf + 4 * (jj * 4 + R)
                k.lds_op("ds_read_b128 %s, v%d offset:%d" % (vr(d, 4), vVA, slot * 32768 + n * 8192 + R * 2048 + jj * 1024), rng(d, 4))
            out.append(f)
    return out


def qk(k, sb, zero_c=False):
    out = []
    for C in range(8):
        def f(C=C):
            a = vKf + 4 * C
            k.lds_need(rng(a, 4))
            if C == 0:
                c = "0" if zero_c else vr(vNm, 16)
            else:
                c = vr(vS[sb], 16)
            k.e("v_mfma_f32_32x32x16_bf16 %s, %s, %s, %s" % (vr(vS[sb], 16), vr(a, 4), vr(vQ + 4 * C, 4), c))
        out.append(f)
    return out


def pv(k):
    out = []
    for jj in range(2):
        for R in range(4):
            def f(R=R, jj=jj):
                a = vVf + 4 * (jj * 4 + R)
                k.lds_need(rng(a, 4))
                o = vO + 16 * R
                k.e("v_mfma_f32_32x32x16_bf16 %s, %s, %s, %s" % (vr(o, 16), vr(a, 4), vr(vP + 4 * jj, 4), vr(o, 16)))
            out.append(f)
    return out


XP = os.environ.get("XP", "")


def exp_half(k, sb, h):
    if "noexp" in XP:
        return [lambda: k.e("v_mov_b32 v%d, 0" % (vLa if h == 0 else vLb))] * 9
    S = vS[sb] + 8 * h
    L = vLa if h == 0 else vLb
    out = []
    E = lambda s: (lambda: k.e(s))
    for i in range(4):
        e0, e1 = vE + 2 * (i % 3), vE + 2 * (i % 3) + 1
        out.append(E("v_exp_f32 v%d, v%d" % (e0, S + 2 * i)))
        out.append(E("v_exp_f32 v%d, v%d" % (e1, S + 2 * i + 1)))
        if i > 0:
            p0, p1 = vE + 2 * ((i - 1) % 3), vE + 2 * ((i - 1) % 3) + 1
            out.append(E("v_cvt_pk_bf16_f32 v%d, v%d, v%d" % (vP + 4 * h + i - 1, p0, p1)))
            if i == 1:
                out.append(E("v_add_f32 v%d, v%d, v%d" % (L, p0, p1)))
            else:
                out.append(E("v_add_f32 v%d, v%d, v%d" % (L, L, p0)))
                out.append(E("v_add_f32 v%d, v%d, v%d" % (L, L, p1)))
    p0, p1 = vE + 0, vE + 1
    out.append(E("s_nop 0"))
    out.append(E("v_cvt_pk_bf16_f32 v%d, v%d, v%d" % (vP + 4 * h + 3, p0, p1)))
    out.append(E("v_add_f32 v%d, v%d, v%d" % (L, L, p0)))
    out.append(E("v_add_f32 v%d, v%d, v%d" % (L, L, p1)))
    return out


def max_code(k, sb):
    S = vS[sb]
    k.e("v_max3_f32 v%d, v%d, v%d, v%d" % (vMax, S, S + 1, S + 2))
    k.e("v_max3_f32 v%d, v%d, v%d, v%d" % (vT0, S + 3, S + 4, S + 5))
    for i in range(6, 14, 4):
        k.e("v_max3_f32 v%d, v%d, v%d, v%d" % (vMax, vMax, S + i, S + i + 1))
        k.e("v_max3_f32 v%d, v%d, v%d, v%d" % (vT0, vT0, S + i + 2, S + i + 3))
    k.e("v_max3_f32 v%d, v%d, v%d, v%d" % (vMax, vMax, S + 14, S + 15))
    k.e("v_max_f32 v%d, v%d, v%d" % (vMax, vMax, vT0))
    k.e("v_mov_b32 v%d, v%d" % (vT0, vMax))
    k.e("s_nop 1")
    k.e("v_permlane32_swap_b32 v%d, v%d" % (vT0, vMax))
    k.e("v_max_f32 v%d, v%d, v%d" % (vMax, vMax, vT0))


def mask_code(k, sb, n):
    S = vS[sb]
    for r0 in range(0, 16, 4):
        for i in range(4):
            r = r0 + i
            c = 16 * (r >> 3) + (r & 7) + 32 * n
            k.e("v_cmp_le_i32 %s, %d, v%d" % (sr(sMask + 2 * i, 2), c, vThr))
        for i in range(4):
            r = r0 + i
            k.e("v_cndmask_b32 v%d, v%d, v%d, %s" % (S + r, vNeg, S + r, sr(sMask + 2 * i, 2)))


def dma_k(k, slot):
    out = []
    for j in range(4):
        def f(j=j):
            if j == 0:
                k.e("s_mov_b32 m0, s%d" % (sM0K + slot))
                k.e("s_nop 0")
            k.e("buffer_load_dwordx4 v%d, %s, s%d offen offset:%d lds" % (vD, sr(sK, 4), sKoff, 1024 * j))
            if j == 3:
                k.e("s_add_u32 s%d, s%d, 32768" % (sKoff, sKoff))
        out.append(f)
    return out


def dma_v(k, slot):
    out = []
    for j in range(4):
        def f(j=j):
            if j == 0:
                k.e("s_mov_b32 m0, s%d" % (sM0V + slot))
                k.e("s_nop 0")
            k.e("buffer_load_dwordx4 v%d, %s, s%d offen offset:%d lds" % (vD, sr(sV, 4), sVoff, 1024 * j))
            if j == 3:
                k.e("s_add_u32 s%d, s%d, 32768" % (sVoff, sVoff))
        out.append(f)
    return out


def q_loads(k, sqb):
    k.e("s_lshl2_add_u32 s%d, s%d, s%d" % (sA, sqb, sWq))
    k.e("s_lshl_b32 s%d, s%d, 13" % (sA, sA))
    k.e("s_add_u32 s%d, s%d, 4096" % (sB, sA))
    for C in range(8):
        k.e("buffer_load_dwordx4 %s, v%d, %s, s%d offen offset:%d" % (vr(vQ + 4 * C, 4), vL16, sr(sQ, 4), sA if C < 4 else sB, (C & 3) * 1024))


def check(k, sb, h, other_valid, nredo, slow_blocks):
    lab = k.newlabel("slow")
    back = k.newlabel("back")
    L = vLa if h == 0 else vLb
    if "nochk" not in XP:
        k.e("s_cbranch_vccnz %s" % lab)
    k.label(back)
    k.e("v_add_f32 v%d, v%d, v%d" % (vL0, vL0, L))
    slow_blocks.append((lab, back, sb, h, other_valid, nredo))


def emit_slow(k, lab, back, sb, h, other_valid, nredo):
    S = vS[sb]
    So = vS[sb ^ 1]
    k.label(lab)
    k.e("s_nop 15")
    max_code(k, sb)
    k.e("v_max_f32 v%d, 0, v%d" % (vMax, vMax))
    k.e("v_sub_f32 v%d, 0, v%d" % (vT0, vMax))
    k.e("v_exp_f32 v%d, v%d" % (vT0, vT0))
    for r in range(16):
        k.e("v_sub_f32 v%d, v%d, v%d" % (S + r, S + r, vMax))
    if other_valid:
        for r in range(16):
            k.e("v_sub_f32 v%d, v%d, v%d" % (So + r, So + r, vMax))
    for r in range(16):
        k.e("v_sub_f32 v%d, v%d, v%d" % (vNm + r, vNm + r, vMax))
    k.e("v_mul_f32 v%d, v%d, v%d" % (vL0, vL0, vT0))
    for r in range(64):
        k.e("v_mul_f32 v%d, v%d, v%d" % (vO + r, vO + r, vT0))
    for f in exp_half(k, sb, h):
        f()
    if h == 0:
        for f in exp_half(k, sb, 1)[:nredo]:
            f()
    k.e("s_nop 1")
    k.e("s_branch %s" % back)


def spread(n_items, n_gaps, start=0):
    per = [0] * n_gaps
    m = n_gaps - start
    for i in range(n_items):
        per[start + (i * m) // n_items] += 1
    return per


def merge_fillers(lists_and_plans, n_gaps):
    flat, per = [], []
    idx = [0] * len(lists_and_plans)
    for gph in range(n_gaps):
        cnt = 0
        for li, (lst, plan) in enumerate(lists_and_plans):
            for _ in range(plan[gph]):
                if idx[li] < len(lst):
                    flat.append(lst[idx[li]])
                    idx[li] += 1
                    cnt += 1
        per.append(cnt)
    for li, (lst, plan) in enumerate(lists_and_plans):
        assert idx[li] == len(lst), (li, idx[li], len(lst))
    return flat, per


NB1 = int(os.environ.get("AT_NB1", "8"))


def half_step(k, p, n, last, slow_blocks, dma=None, post_qk=None):
    cur = n
    nxt = cur ^ 1
    do_qk = not (last and n == 1)
    e0 = exp_half(k, cur, 0)
    e1 = exp_half(k, cur, 1)
    cmp0 = lambda: k.e("v_cmp_nge_f32 vcc, s%d, v%d" % (sT, vLa))
    cmp1 = lambda: k.e("v_cmp_nge_f32 vcc, s%d, v%d" % (sT, vLb))
    ea = e0 + [cmp0] + e1[:NB1]
    eb = e1[NB1:] + [cmp1]
    lists = [(vread(k, p, n), [2, 2, 2, 2, 0, 0, 0, 0]), (ea, spread(len(ea), 8))]
    if dma:
        lists.append((dma, spread(len(dma), 7, 1) + [0]))
    fl, per = merge_fillers(lists, 8)
    if do_qk:
        interleave(k, qk(k, nxt), fl, per)
    else:
        for f in fl:
            f()
    if post_qk:
        post_qk()
    check(k, cur, 0, do_qk, NB1, slow_blocks)
    k.e("s_nop 0")
    pvl = pv(k)
    kr = kread(k, p ^ 1, n) if not last else []
    lists = [(eb, spread(len(eb), 3) + [0])]
    if kr:
        lists.append((kr[:4], [0, 1, 1, 2]))
    fl, per = merge_fillers(lists, 4)
    interleave(k, pvl[:4], fl, per)
    check(k, cur, 1, do_qk, 0, slow_blocks)
    k.e("s_nop 0")
    tail = list(kr[4:])
    if do_qk:
        if last:
            tail.append(lambda: mask_code(k, nxt, 1))
        elif n == 1:
            nomask = k.newlabel("nomask")

            def maybe_mask():
                k.e("s_add_u32 s%d, s%d, 1" % (sA, sJ))
                k.e("s_cmp_lg_u32 s%d, s%d" % (sA, sJL))
                k.e("s_cbranch_scc1 %s" % nomask)
                mask_code(k, nxt, 0)
                k.label(nomask)
            tail.append(maybe_mask)
    interleave(k, pvl[4:], tail, [2, 2, 1, 0])


def interval(k, p, last, slow_blocks):
    k.c("==== interval parity %d last=%s" % (p, last))
    if not last:
        skipk = k.newlabel("skipk")
        dk = dma_k(k, p)
        dv = dma_v(k, p ^ 1)

        def dk_all():
            k.e("s_add_u32 s%d, s%d, 2" % (sA, sJ))
            k.e("s_cmp_gt_u32 s%d, s%d" % (sA, sJL))
            k.e("s_cbranch_scc1 %s" % skipk)
            for f in dk:
                f()
            k.label(skipk)
        half_step(k, p, 0, False, slow_blocks, dma=None if "nodma" in XP else dv + [dk_all])
        half_step(k, p, 1, False, slow_blocks)
        k.lds_drain("vmcnt(0)")
        if "nobar" not in XP:
            k.e("s_barrier")
        if p == 0:
            pend_signal(k)
    else:
        nonext = k.newlabel("nonext")
        noq = k.newlabel("noq")

        def next_loads():
            k.e("s_cmp_lg_u32 s%d, 0" % sPhase)
            k.e("s_cbranch_scc1 %s" % nonext)
            q_flag_addr(k, vChk, sPi)
            k.e("buffer_load_dword v%d, v%d, %s, 0 offen sc1" % (vChk + 1, vChk, sr(sFl, 4)))
            k.e("s_mov_b32 s%d, 0" % sKoff)
            k.e("s_mov_b32 s%d, 0" % sVoff)
            for f in dma_k(k, p ^ 1) + dma_v(k, p ^ 1):
                f()
            k.label(nonext)

        def next_q():
            k.e("s_cmp_lg_u32 s%d, 0" % sPhase)
            k.e("s_cbranch_scc1 %s" % noq)
            k.e("s_mov_b64 %s, vcc" % sr(sMask, 2))
            k.e("s_waitcnt vmcnt(8)")
            spin_flags(k, vChk, vChk + 1, first_loaded=True)
            k.e("s_mov_b64 vcc, %s" % sr(sMask, 2))
            q_loads(k, sPi)
            k.label(noq)
        half_step(k, p, 0, True, slow_blocks, dma=[next_loads], post_qk=next_q)
        half_step(k, p, 1, True, slow_blocks)
        k.e("s_mov_b32 s%d, %d" % (sPar, p ^ 1))


sPend = 39


def pend_signal(k):
    lab = k.newlabel("nopend")
    k.e("s_cmp_eq_u32 s%d, 0" % sPend)
    k.e("s_cbranch_scc1 %s" % lab)
    k.e("s_lshr_b32 s%d, s%d, 2" % (sA, sPend))
    flag_store(k, sA, 0)
    k.e("s_mov_b32 s%d, 0" % sPend)
    k.label(lab)


def first_subtile(k, p, vmn=0):
    for f in kread(k, p, 0):
        f()
    for f in qk(k, 0, zero_c=True):
        f()
    for f in kread(k, p, 1):
        f()
    k.e("s_nop 7")
    lab = k.newlabel("nomask0")
    k.e("s_cmp_lg_u32 s%d, 0" % sJL)
    k.e("s_cbranch_scc1 %s" % lab)
    mask_code(k, 0, 0)
    k.label(lab)
    max_code(k, 0)
    for r in range(16):
        k.e("v_sub_f32 v%d, v%d, v%d" % (vS[0] + r, vS[0] + r, vMax))
    for r in range(16):
        k.e("v_sub_f32 v%d, 0, v%d" % (vNm + r, vMax))
    k.lds_drain("vmcnt(%d)" % vmn)
    k.e("s_barrier")
    l1, l2 = k.newlabel("ph1"), k.newlabel("ph2")
    k.e("s_cmp_lg_u32 s%d, 0" % sPhase)
    k.e("s_cbranch_scc1 %s" % l1)
    flag_store(k, sTask, FL_AS)
    k.e("s_branch %s" % l2)
    k.label(l1)
    k.e("s_sub_u32 s%d, 15, s%d" % (sA, sPi))
    k.e("s_lshl_b32 s%d, s%d, 5" % (sA, sA))
    k.e("s_add_u32 s%d, s%d, s%d" % (sA, sA, sHead))

    def chk_load():
        k.e("s_movk_i32 s%d, %d" % (sB, FL_AS))
        k.e("buffer_load_dwordx4 %s, v%d, %s, s%d offen sc1" % (vr(vChk, 4), vL16, sr(sFl, 4), sB))
    flag_store(k, sA, FL_AD, also=chk_load)
    k.label(l2)


sTask = 38
sFl = 52
WS_FLAGS = 83 * MB
FL_LN, FL_PS, FL_KV, FL_QH, FL_AS, FL_AD, FL_ST = 1024, 2048, 3072, 4096, 5120, 6144, 8192
sNonce = 95
CHKW = 163840 - 64
vChk = 240
vPf, vDum = 246, 247
sKV = 56
sPfOff = 60


PFA = int(os.environ.get("PFA", "1"))


def pf_kv(k):
    lab = k.newlabel("nopf")
    k.e("s_cmp_ge_u32 s%d, %d" % (sPfOff, 16 * 32768))
    k.e("s_cselect_b32 s%d, %d, s%d" % (sA, 15 * 32768, sPfOff))
    k.e("buffer_load_dword v%d, v%d, %s, s%d offen" % (vDum, vPf, sr(sKV, 4), sA))
    k.e("s_add_u32 s%d, s%d, 32768" % (sPfOff, sPfOff))


def flag_store(k, soff_reg, imm, also=None):
    lab = k.newlabel("nofl")
    k.e("s_cmp_lg_u32 s%d, 0" % sWave)
    k.e("s_cbranch_scc1 %s" % lab)
    k.e("s_lshl_b32 s%d, s%d, 2" % (sB, soff_reg))
    k.e("v_mov_b32 v%d, %d" % (vT2, imm))
    k.e("v_mov_b32 v%d, s%d" % (vT3, sNonce))
    k.e("s_mov_b64 exec, 1")
    k.e("buffer_store_dword v%d, v%d, %s, s%d offen sc1" % (vT3, vT2, sr(sFl, 4), sB))
    k.e("s_mov_b64 exec, -1")
    if also:
        also()
    k.label(lab)


def attn_setup(k):
    k.e("s_and_b32 s%d, s%d, 7" % (sA, sTask))
    k.e("s_bfe_u32 s%d, s%d, 0x20003" % (sB, sTask))
    k.e("s_lshl2_add_u32 s%d, s%d, s%d" % (sHead, sA, sB))
    k.e("s_lshr_b32 s%d, s%d, 5" % (sPi, sTask))
    k.e("v_lshrrev_b32 v%d, 6, v0" % vT0)
    k.e("v_and_b32 v%d, 63, v0" % vT1)
    k.e("v_readfirstlane_b32 s%d, v%d" % (sWave, vT0))
    k.e("v_lshlrev_b32 v%d, 4, v%d" % (vL16, vT1))
    k.e("s_nop 1")
    k.e("s_lshr_b32 s%d, s%d, 2" % (sG, sWave))
    k.e("s_and_b32 s%d, s%d, 3" % (sWq, sWave))
    k.e("s_lshl_b32 s%d, s%d, 12" % (sA, sWave))
    k.e("s_mov_b32 s%d, s%d" % (sM0K, sA))
    k.e("s_add_u32 s%d, s%d, 32768" % (sM0K + 1, sA))
    k.e("s_add_u32 s%d, s%d, 65536" % (sM0V, sA))
    k.e("s_add_u32 s%d, s%d, 98304" % (sM0V + 1, sA))
    k.e("v_add_u32 v%d, s%d, v%d" % (vD, sA, vL16))
    k.e("s_sub_u32 s%d, 15, s%d" % (sJL, sPi))
    k.e("s_mov_b32 s%d, 0" % sKoff)
    k.e("s_mov_b32 s%d, 0" % sVoff)
    k.e("s_lshl_b32 s%d, s%d, 19" % (sA, sHead))
    k.e("s_add_u32 s%d, s%d, %d" % (sB, sA, WS_K))
    srd(k, sK, sWS, "s%d" % sB, 512 * 1024)
    k.e("s_add_u32 s%d, s%d, %d" % (sB, sA, WS_Q))
    srd(k, sQ, sWS, "s%d" % sB, 512 * 1024)
    k.e("s_add_u32 s%d, s%d, %d" % (sB, sA, WS_VT))
    srd(k, sV, sWS, "s%d" % sB, 512 * 1024)
    srd(k, sFl, sWS, WS_FLAGS, 65536)


def attn_setup2(k):
    srd(k, sO, sWS, WS_AH, 2048 * 7680 * 2)
    k.e("s_mov_b32 s%d, 0x%08x" % (sT, f32bits(THRESH)))
    k.e("v_mov_b32 v%d, 0x%08x" % (vNeg, f32bits(-1e30)))
    k.e("v_and_b32 v%d, 63, v0" % vT1)
    k.e("v_and_b32 v%d, 0x33, v%d" % (vT0, vT1))
    k.e("v_bfe_u32 v%d, v%d, 2, 1" % (vT2, vT1))
    k.e("v_lshl_or_b32 v%d, v%d, 3, v%d" % (vT0, vT2, vT0))
    k.e("v_bfe_u32 v%d, v%d, 3, 1" % (vT2, vT1))
    k.e("v_lshl_or_b32 v%d, v%d, 2, v%d" % (vT0, vT2, vT0))
    k.e("s_lshl_b32 s%d, s%d, 14" % (sA, sG))
    k.e("v_lshl_add_u32 v%d, v%d, 4, s%d" % (vKA, vT0, sA))
    k.e("s_add_u32 s%d, s%d, 65536" % (sB, sA))
    k.e("v_add_u32 v%d, s%d, v%d" % (vVA, sB, vL16))
    k.e("v_and_b32 v%d, 31, v%d" % (vT0, vT1))
    k.e("v_lshrrev_b32 v%d, 5, v%d" % (vT2, vT1))
    k.e("v_lshlrev_b32 v%d, 3, v%d" % (vT2, vT2))
    k.e("v_sub_u32 v%d, v%d, v%d" % (vT0, vT0, vT2))
    k.e("s_lshl_b32 s%d, s%d, 5" % (sA, sWq))
    k.e("s_lshl_b32 s%d, s%d, 6" % (sB, sG))
    k.e("s_sub_u32 s%d, s%d, s%d" % (sA, sA, sB))
    k.e("v_add_u32 v%d, s%d, v%d" % (vThr, sA, vT0))
    k.e("s_mov_b32 s%d, 0" % sPhase)
    k.e("s_mov_b32 s%d, 0" % sPar)


def kv_flag_addr(k, vd, vt, stask, s1, s2_):
    k.e("s_and_b32 s%d, s%d, 7" % (s1, stask))
    k.e("s_bfe_u32 s%d, s%d, 0x20003" % (s2_, stask))
    k.e("s_lshl2_add_u32 s%d, s%d, s%d" % (s1, s1, s2_))
    k.e("s_lshr_b32 s%d, s%d, 1" % (s1, s1))
    k.e("s_lshl_b32 s%d, s%d, 5" % (s1, s1))
    k.e("s_add_u32 s%d, s%d, %d" % (s1, s1, FL_KV))
    k.e("v_and_b32 v%d, 7, v0" % vd)
    k.e("v_lshlrev_b32 v%d, 2, v%d" % (vd, vd))
    k.e("v_bfe_u32 v%d, v0, 3, 1" % vt)
    k.e("v_lshl_add_u32 v%d, v%d, 9, v%d" % (vd, vt, vd))
    k.e("v_add_u32 v%d, s%d, v%d" % (vd, s1, vd))


def q_flag_addr(k, vd, sqb):
    k.e("s_lshr_b32 s%d, s%d, 1" % (sA, sHead))
    k.e("s_lshl_b32 s%d, s%d, 5" % (sA, sA))
    k.e("s_add_u32 s%d, s%d, %d" % (sA, sA, FL_QH))
    k.e("s_lshr_b32 s%d, s%d, 1" % (sB, sqb))
    k.e("s_lshl2_add_u32 s%d, s%d, s%d" % (sB, sB, sA))
    k.e("v_mov_b32 v%d, s%d" % (vd, sB))


def spin_flags(k, vaddr, vres, first_loaded=False):
    l0, l1, l2 = k.newlabel("spn"), k.newlabel("spnok"), k.newlabel("spnc")
    if first_loaded:
        k.e("s_branch %s" % l2)
    k.label(l0)
    k.e("buffer_load_dword v%d, v%d, %s, 0 offen sc1" % (vres, vaddr, sr(sFl, 4)))
    k.e("s_waitcnt vmcnt(0)")
    k.label(l2)
    k.e("v_cmp_ne_u32 vcc, s%d, v%d" % (sNonce, vres))
    k.e("s_cbranch_vccz %s" % l1)
    k.e("s_sleep 2")
    k.e("s_branch %s" % l0)
    k.label(l1)


def emit_attn(k, slow_blocks):
    k.label("L_at_task")
    attn_setup(k)
    kv_flag_addr(k, vT0, vT2, sTask, sA, sB)
    spin_flags(k, vT0, vT2)
    q_flag_addr(k, vT0, sJL)
    spin_flags(k, vT0, vT2)
    k.e("s_mov_b32 s%d, 0" % sPend)
    stamp(k, 7)
    for f in dma_k(k, 0):
        f()
    q_loads(k, sJL)
    for f in dma_v(k, 0) + dma_k(k, 1):
        f()
    attn_setup2(k)
    k.label("L_at_qblock")
    k.e("s_mov_b32 s%d, 0" % sJ)
    for r in range(64):
        k.e("v_mov_b32 v%d, 0" % (vO + r))
    k.e("v_mov_b32 v%d, 0" % vL0)
    k.e("s_waitcnt vmcnt(8)")
    k.e("s_barrier")
    k.e("s_cmp_lg_u32 s%d, 0" % sPar)
    k.e("s_cbranch_scc1 L_at_first1")
    first_subtile(k, 0)
    if DIAG:
        k.e("s_cmp_lg_u32 s%d, 0" % sPhase)
        k.e("s_cbranch_scc1 L_at_st5")
        stamp(k, 8)
        k.e("s_branch L_at_loop")
        k.label("L_at_st5")
        stamp(k, 10)
    AL = os.environ.get("AT_AL")
    if AL is not None:
        k.lines.append(".p2align 6")
        for _ in range(int(AL)):
            k.e("s_nop 0")
    k.label("L_at_loop")
    k.e("s_cmp_eq_u32 s%d, s%d" % (sJ, sJL))
    k.e("s_cbranch_scc1 L_at_last0")
    interval(k, 0, False, slow_blocks)
    k.e("s_add_u32 s%d, s%d, 1" % (sJ, sJ))
    k.label("L_at_loop1")
    k.e("s_cmp_eq_u32 s%d, s%d" % (sJ, sJL))
    k.e("s_cbranch_scc1 L_at_last1")
    interval(k, 1, False, slow_blocks)
    k.e("s_add_u32 s%d, s%d, 1" % (sJ, sJ))
    k.e("s_branch L_at_loop")
    k.label("L_at_fast")
    k.ldsq = []
    k.e("s_mov_b32 s%d, 0" % sJ)
    for r in range(64):
        k.e("v_mov_b32 v%d, 0" % (vO + r))
    k.e("v_mov_b32 v%d, 0" % vL0)
    k.e("s_waitcnt vmcnt(16)")
    k.e("s_barrier")
    first_subtile(k, 0, 16)
    stamp(k, 8)
    k.e("s_branch L_at_loop")
    k.label("L_at_first1")
    k.ldsq = []
    first_subtile(k, 1)
    stamp(k, 10)
    k.e("s_branch L_at_loop1")
    k.label("L_at_last0")
    k.ldsq = []
    interval(k, 0, True, slow_blocks)
    k.e("s_branch L_at_fin")
    k.label("L_at_last1")
    k.ldsq = []
    interval(k, 1, True, slow_blocks)
    k.label("L_at_fin")
    k.ldsq = []
    if DIAG:
        k.e("s_cmp_lg_u32 s%d, 0" % sPhase)
        k.e("s_cbranch_scc1 L_at_st2")
        stamp(k, 9)
        k.e("s_branch L_at_st3")
        k.label("L_at_st2")
        stamp(k, 11)
        k.label("L_at_st3")
    k.e("v_mov_b32 v%d, v%d" % (vT0, vL0))
    k.e("s_nop 1")
    k.e("v_permlane32_swap_b32 v%d, v%d" % (vT0, vL0))
    k.e("v_add_f32 v%d, v%d, v%d" % (vL1, vL0, vT0))
    k.e("v_sub_f32 v%d, 0, v%d" % (vL0, vNm))
    k.e("s_xor_b32 s%d, s%d, 1" % (sA, sPar))
    k.e("s_lshl_b32 s%d, s%d, 15" % (sA, sA))
    k.e("s_add_u32 s%d, s%d, 65536" % (sB, sA))
    k.e("s_cmp_eq_u32 s%d, 0" % sG)
    k.e("s_cselect_b32 s%d, s%d, %d" % (sMask, sA, XCH))
    k.e("s_cselect_b32 s%d, %d, s%d" % (sMask + 1, XCH, sA))
    k.e("s_lshl_b32 s%d, s%d, 13" % (sA, sWq))
    k.e("s_add_u32 s%d, s%d, s%d" % (sMask, sMask, sA))
    k.e("s_add_u32 s%d, s%d, s%d" % (sMask + 1, sMask + 1, sA))
    k.e("v_add_u32 v%d, s%d, v%d" % (vT1, sMask, vL16))
    k.e("v_add_u32 v%d, s%d, v%d" % (vT3, sMask + 1, vL16))
    k.e("s_lshl_b32 s%d, s%d, 9" % (sA, sWave))
    k.e("s_add_u32 s%d, s%d, s%d" % (sA, sA, sB))
    k.e("v_lshrrev_b32 v%d, 1, v%d" % (vT2, vL16))
    k.e("v_add_u32 v%d, s%d, v%d" % (vT2, sA, vT2))
    k.e("s_cmp_eq_u32 s%d, 0" % sG)
    k.e("s_cbranch_scc1 L_at_send23")
    for i in range(8):
        k.e("ds_write_b128 v%d, %s offset:%d" % (vT1, vr(vO + 4 * i, 4), i * 1024))
    k.e("s_waitcnt lgkmcnt(0)")
    for i in range(32):
        k.e("v_mov_b32 v%d, v%d" % (vO + i, vO + 32 + i))
    k.e("s_branch L_at_sent")
    k.label("L_at_send23")
    for i in range(8):
        k.e("ds_write_b128 v%d, %s offset:%d" % (vT1, vr(vO + 32 + 4 * i, 4), i * 1024))
    k.label("L_at_sent")
    lab = k.newlabel("nochk")
    k.e("s_cmp_eq_u32 s%d, 0" % sPhase)
    k.e("s_cbranch_scc1 %s" % lab)
    k.e("s_cmp_lg_u32 s%d, 0" % sWave)
    k.e("s_cbranch_scc1 %s" % lab)
    k.e("s_waitcnt vmcnt(0)")
    for i in range(4):
        k.e("v_xor_b32 v%d, s%d, v%d" % (vChk + i, sNonce, vChk + i))
    k.e("v_or3_b32 v%d, v%d, v%d, v%d" % (vChk + 4, vChk, vChk + 1, vChk + 2))
    k.e("v_or_b32 v%d, v%d, v%d" % (vChk + 4, vChk + 4, vChk + 3))
    k.e("v_cmp_ne_u32 vcc, 0, v%d" % (vChk + 4))
    k.e("s_ff1_i32_b64 s%d, vcc" % sMask)
    k.e("v_cmp_ne_u32 vcc, 0, v%d" % (vChk + 2))
    k.e("s_nop 1")
    k.e("v_cndmask_b32 v%d, 3, 2, vcc" % (vChk + 4))
    k.e("v_cmp_ne_u32 vcc, 0, v%d" % (vChk + 1))
    k.e("s_nop 1")
    k.e("v_cndmask_b32 v%d, v%d, 1, vcc" % (vChk + 4, vChk + 4))
    k.e("v_cmp_ne_u32 vcc, 0, v%d" % vChk)
    k.e("s_nop 1")
    k.e("v_cndmask_b32 v%d, v%d, 0, vcc" % (vChk + 4, vChk + 4))
    k.e("s_nop 1")
    k.e("v_readlane_b32 s%d, v%d, s%d" % (sMask + 1, vChk + 4, sMask))
    k.e("s_nop 3")
    k.e("s_lshl2_add_u32 s%d, s%d, s%d" % (sMask + 1, sMask, sMask + 1))
    k.e("s_cmp_lt_i32 s%d, 0" % sMask)
    k.e("s_cselect_b32 s%d, -1, s%d" % (sMask + 1, sMask + 1))
    k.e("v_mov_b32 v%d, s%d" % (vChk, sMask + 1))
    k.e("s_lshl_b32 s%d, s%d, 15" % (sMask, sPar))
    k.e("v_mov_b32 v%d, s%d" % (vChk + 1, sMask))
    k.e("ds_write_b32 v%d, v%d" % (vChk + 1, vChk))
    k.label(lab)
    k.e("s_waitcnt lgkmcnt(0)")
    k.e("s_barrier")
    k.e("s_lshl_b32 s%d, s%d, 15" % (sMask, sPar))
    k.e("v_mov_b32 v%d, s%d" % (vChk + 1, sMask))
    k.e("ds_read_b32 v%d, v%d" % (vChk, vChk + 1))
    k.e("ds_write_b64 v%d, v[%d:%d]" % (vT2, vL0, vL1))
    for i in range(8):
        k.e("ds_read_b128 %s, v%d offset:%d" % (vr(vO + 32 + 4 * i, 4), vT3, i * 1024))
    k.e("v_xor_b32 v%d, 0x800, v%d" % (vT2, vT2))
    k.e("s_waitcnt lgkmcnt(0)")
    k.e("s_barrier")
    k.e("ds_read_b64 v[%d:%d], v%d" % (vE, vE + 1, vT2))
    k.e("s_waitcnt lgkmcnt(0)")
    k.e("v_max_f32 v%d, v%d, v%d" % (vT0, vL0, vE))
    k.e("v_sub_f32 v%d, v%d, v%d" % (vL0, vL0, vT0))
    k.e("v_sub_f32 v%d, v%d, v%d" % (vE, vE, vT0))
    k.e("v_exp_f32 v%d, v%d" % (vL0, vL0))
    k.e("v_exp_f32 v%d, v%d" % (vE, vE))
    k.e("s_nop 0")
    k.e("v_mul_f32 v%d, v%d, v%d" % (vL1, vL1, vL0))
    k.e("v_fmac_f32 v%d, v%d, v%d" % (vL1, vE + 1, vE))
    k.e("v_rcp_f32 v%d, v%d" % (vL1, vL1))
    k.e("s_nop 0")
    k.e("v_mul_f32 v%d, v%d, v%d" % (vL0, vL0, vL1))
    k.e("v_mul_f32 v%d, v%d, v%d" % (vE, vE, vL1))
    for i in range(32):
        k.e("v_mul_f32 v%d, v%d, v%d" % (vO + i, vO + i, vL0))
    for i in range(32):
        k.e("v_fmac_f32 v%d, v%d, v%d" % (vO + i, vO + 32 + i, vE))
    k.e("s_lshl2_add_u32 s%d, s%d, s%d" % (sA, sJL, sWq))
    k.e("s_mul_i32 s%d, s%d, 480" % (sA, sA))
    k.e("s_lshl3_add_u32 s%d, s%d, s%d" % (sA, sHead, sA))
    k.e("s_lshl2_add_u32 s%d, s%d, s%d" % (sA, sG, sA))
    k.e("s_lshl_b32 s%d, s%d, 10" % (sA, sA))
    for i in range(4):
        src = vO + 8 * i
        tq = vKf + 4 * i
        for c in range(4):
            k.e("v_cvt_pk_bf16_f32 v%d, v%d, v%d" % (tq + c, src + 2 * c, src + 2 * c + 1))
        k.e("s_nop 1")
        k.e("v_permlane32_swap_b32 v%d, v%d" % (tq, tq + 2))
        k.e("v_permlane32_swap_b32 v%d, v%d" % (tq + 1, tq + 3))
        k.e("buffer_store_dwordx4 %s, v%d, %s, s%d offen offset:%d %s" % (vr(tq, 4), vL16, sr(sO, 4), sA, i * 1024, STF))
    k.e("s_cmp_lg_u32 s%d, 0" % sPhase)
    k.e("s_cbranch_scc1 L_at_done")
    k.e("s_mov_b32 s%d, 1" % sPhase)
    k.e("s_mov_b32 s%d, s%d" % (sJL, sPi))
    k.e("s_xor_b32 s%d, s%d, 1" % (sA, sPar))
    k.e("s_lshl_b32 s%d, s%d, 15" % (sA, sA))
    k.e("s_add_u32 m0, s%d, s%d" % (sM0K, sA))
    k.e("s_nop 0")
    for j in range(4):
        k.e("buffer_load_dwordx4 v%d, %s, s%d offen offset:%d lds" % (vD, sr(sK, 4), sKoff, 1024 * j))
    k.e("s_add_u32 s%d, s%d, 32768" % (sKoff, sKoff))
    k.e("s_branch L_at_qblock")
    k.label("L_at_done")
```

```python
import math, struct
from asmlib import *
from gemm import *
import attn as AT

MB = 1 << 20
WS_XN = 0
WS_Q = 4 * MB
WS_K = 20 * MB
WS_VT = 36 * MB
WS_AH = 52 * MB
ARG_X, ARG_CKV, ARG_WQ, ARG_WUK, ARG_WUV, ARG_WO, ARG_BX, ARG_W1, ARG_B1, ARG_W2, ARG_B2, ARG_OUT, ARG_DBG, ARG_WS = [8 * i for i in range(14)]
QSCALE = math.log2(math.e) / math.sqrt(128.0)
GELU_C1 = -2.0 * math.sqrt(2.0 / math.pi) * math.log2(math.e)
GELU_C2 = GELU_C1 * 0.044715
TRFLAGS = os.environ.get("TRFLAGS", " sc1")
FORCE_HELP = int(os.environ.get("FORCE_HELP", "0"))


def f32bits(x):
    return struct.unpack("<I", struct.pack("<f", x))[0]


def srd(k, d, base, off, nbytes):
    k.e("s_add_u32 s%d, s%d, %s" % (d, base, off))
    k.e("s_addc_u32 s%d, s%d, 0" % (d + 1, base + 1))
    k.e("s_mov_b32 s%d, %s" % (d + 2, nbytes))
    k.e("s_mov_b32 s%d, 0x00020000" % (d + 3))


sX, sCKV = 40, 42
sWUK, sWUV = 44, 46
sWS = 48
sWQ, sW1, sB1 = 50, 52, 54
sWO, sW2 = 56, 58
sDBG = 60
sMtA, sNtA, sIsV = 62, 63, 96
sMtB, sNtB, sIsH = 97, 98, 99
sStA = 100
sLnX, sLnO = 36, 80
sPf = 84
sBs = 56
sDb = 88
sRow = 34
sPfOff = 92
sWG = 93
sNonce = 95
sHelp = 92
WS_FLAGS = 83 * MB
FL_LN, FL_PS, FL_KV, FL_QH, FL_AS, FL_AD, FL_ST = 1024, 2048, 3072, 4096, 5120, 6144, 8192
NONCEW = 147456
PFD = 3
sTa, sTb = 35, 101
vBias = 208
vPk = 240
vRaw = 248
vLn = 208


def wave_sum(k, v, t):
    out = []
    for ctl in ["quad_perm:[1,0,3,2]", "quad_perm:[2,3,0,1]", "row_half_mirror", "row_mirror"]:
        out.append(lambda: k.e("s_nop 1"))
        out.append(lambda ctl=ctl: k.e("v_add_f32_dpp v%d, v%d, v%d %s row_mask:0xf bank_mask:0xf" % (v, v, v, ctl)))
    for sw in ["v_permlane16_swap_b32", "v_permlane32_swap_b32"]:
        out.append(lambda: k.e("v_mov_b32 v%d, v%d" % (t, v)))
        out.append(lambda: k.e("s_nop 1"))
        out.append(lambda sw=sw: k.e("%s v%d, v%d" % (sw, t, v)))
        out.append(lambda: k.e("v_add_f32 v%d, v%d, v%d" % (v, v, t)))
    return out


def ln_load(k, g):
    t = g.vTmp
    k.e("s_lshl_b32 s%d, s%d, 11" % (sTa, sRow))
    k.e("v_lshlrev_b32 v%d, 1, v%d" % (t, g.vLane16))
    k.vm_op("buffer_load_dwordx4 %s, v%d, %s, s%d offen" % (vr(vRaw, 4), t, sr(sLnX, 4), sTa), "ln")
    k.vm_op("buffer_load_dwordx4 %s, v%d, %s, s%d offen offset:16" % (vr(vRaw + 4, 4), t, sr(sLnX, 4), sTa), "ln")


def ln_steps(k, g, via_lds=False):
    X = vLn
    S, V, T = vLn + 16, vLn + 17, vLn + 18
    D = vLn + 19
    A = vLn + 20
    o = []
    E = lambda s: (lambda: k.e(s))
    o.append(lambda: k.vm_need(["ln"]))
    for i in range(8):
        o.append(E("v_lshlrev_b32 v%d, 16, v%d" % (X + 2 * i, vRaw + i)))
        o.append(E("v_and_b32 v%d, 0xffff0000, v%d" % (X + 2 * i + 1, vRaw + i)))
    o.append(E("v_add_f32 v%d, v%d, v%d" % (S, X, X + 1)))
    o.append(E("v_add_f32 v%d, v%d, v%d" % (T, X + 2, X + 3)))
    for i in range(4, 16, 2):
        o.append(E("v_add_f32 v%d, v%d, v%d" % (S, S, X + i)))
        o.append(E("v_add_f32 v%d, v%d, v%d" % (T, T, X + i + 1)))
    o.append(E("v_add_f32 v%d, v%d, v%d" % (S, S, T)))
    o += wave_sum(k, S, T)
    o.append(E("v_mul_f32 v%d, 0x%08x, v%d" % (S, f32bits(1.0 / 1024), S)))
    o.append(E("v_sub_f32 v%d, v%d, v%d" % (D, X, S)))
    o.append(E("v_mul_f32 v%d, v%d, v%d" % (V, D, D)))
    for i in range(1, 16):
        o.append(E("v_sub_f32 v%d, v%d, v%d" % (D, X + i, S)))
        o.append(E("v_fmac_f32 v%d, v%d, v%d" % (V, D, D)))
    o += wave_sum(k, V, T)
    o.append(E("v_mul_f32 v%d, 0x%08x, v%d" % (V, f32bits(1.0 / 1024), V)))

    def rbf(r):
        return [E("v_cvt_pk_bf16_f32 v%d, v%d, v%d" % (r, r, r)), E("v_lshlrev_b32 v%d, 16, v%d" % (r, r))]
    o += rbf(S) + rbf(V)
    o.append(E("v_add_f32 v%d, 0x%08x, v%d" % (V, f32bits(1e-5), V)))
    o += rbf(V)
    o.append(E("v_sqrt_f32 v%d, v%d" % (V, V)))
    o.append(E("s_nop 0"))
    o += rbf(V)
    o.append(E("v_rcp_f32 v%d, v%d" % (V, V)))
    for i in range(16):
        o.append(E("v_sub_f32 v%d, v%d, v%d" % (X + i, X + i, S)))
    for i in range(8):
        o.append(E("v_cvt_pk_bf16_f32 v%d, v%d, v%d" % (vRaw + i, X + 2 * i, X + 2 * i + 1)))
    for i in range(8):
        o.append(E("v_lshlrev_b32 v%d, 16, v%d" % (X + 2 * i, vRaw + i)))
        o.append(E("v_and_b32 v%d, 0xffff0000, v%d" % (X + 2 * i + 1, vRaw + i)))
    for i in range(16):
        o.append(E("v_mul_f32 v%d, v%d, v%d" % (X + i, X + i, V)))
    for i in range(8):
        o.append(E("v_cvt_pk_bf16_f32 v%d, v%d, v%d" % (vRaw + i, X + 2 * i, X + 2 * i + 1)))
    if via_lds:
        def wr():
            k.e("s_lshl_b32 s%d, s%d, 4" % (sTa, g.sWave))
            k.e("s_add_u32 s%d, s%d, %d" % (sTa, sTa, g.lds_bytes))
            k.e("v_lshl_add_u32 v%d, v%d, 4, s%d" % (A, g.vLane16, sTa))
            k.lds_op("ds_write_b128 v%d, %s" % (A, vr(vRaw, 4)))
            k.lds_op("ds_write_b128 v%d, %s offset:128" % (A, vr(vRaw + 4, 4)))
        o.append(wr)
        return o
    o.append(E("v_lshlrev_b32 v%d, 6, v%d" % (A, g.vLane16)))

    def st():
        k.e("s_lshr_b32 s%d, s%d, 5" % (sTa, sRow))
        k.e("s_lshl_b32 s%d, s%d, 16" % (sTa, sTa))
        k.e("s_and_b32 s%d, s%d, 31" % (sTb, sRow))
        k.e("s_lshl4_add_u32 s%d, s%d, s%d" % (sTa, sTb, sTa))
        k.vm_op("buffer_store_dwordx4 %s, v%d, %s, s%d offen sc1" % (vr(vRaw, 4), A, sr(sLnO, 4), sTa), "lnst")
        k.vm_op("buffer_store_dwordx4 %s, v%d, %s, s%d offen offset:512 sc1" % (vr(vRaw + 4, 4), A, sr(sLnO, 4), sTa), "lnst")
        k.e("s_nop 1")
    o.append(st)
    return o


def ln_store_steps(k, g):
    A, B = vLn + 20, vLn + 21
    o = []

    def rd():
        k.e("s_lshl_b32 s%d, s%d, 11" % (sTa, g.sWave))
        k.e("s_add_u32 s%d, s%d, %d" % (sTa, sTa, g.lds_bytes))
        k.e("v_add_u32 v%d, s%d, v%d" % (A, sTa, g.vLane16))
        k.lds_op("ds_read_b128 %s, v%d" % (vr(vRaw, 4), A), rng(vRaw, 4))
        k.lds_op("ds_read_b128 %s, v%d offset:1024" % (vr(vRaw + 4, 4), A), rng(vRaw + 4, 4))
    o.append(rd)

    def addr():
        k.e("v_lshrrev_b32 v%d, 8, v%d" % (A, g.vLane16))
        k.e("v_lshlrev_b32 v%d, 10, v%d" % (A, A))
        k.e("v_bfe_u32 v%d, v%d, 7, 1" % (B, g.vLane16))
        k.e("v_lshl_add_u32 v%d, v%d, 9, v%d" % (A, B, A))
        k.e("v_and_b32 v%d, 0x70, v%d" % (B, g.vLane16))
        k.e("v_add_u32 v%d, v%d, v%d" % (A, A, B))
        k.e("s_lshr_b32 s%d, s2, 2" % sTa)
        k.e("s_lshl_b32 s%d, s%d, 16" % (sTa, sTa))
        k.e("s_lshl_b32 s%d, s%d, 13" % (sTb, g.sWave))
        k.e("s_add_u32 s%d, s%d, s%d" % (sTa, sTa, sTb))
        k.e("s_and_b32 s%d, s2, 3" % sTb)
        k.e("s_lshl_b32 s%d, s%d, 7" % (sTb, sTb))
        k.e("s_add_u32 s%d, s%d, s%d" % (sTa, sTa, sTb))
        k.e("s_add_u32 s%d, s%d, 4096" % (sTb, sTa))
    o.append(addr)

    def st():
        k.lds_need(rng(vRaw, 8))
        k.vm_op("buffer_store_dwordx4 %s, v%d, %s, s%d offen sc1" % (vr(vRaw, 4), A, sr(sLnO, 4), sTa), "lnst")
        k.vm_op("buffer_store_dwordx4 %s, v%d, %s, s%d offen sc1" % (vr(vRaw + 4, 4), A, sr(sLnO, 4), sTb), "lnst")
        k.e("s_nop 1")
    o.append(st)
    return o


def split_list(lst, n):
    m = len(lst)
    return [lst[(i * m) // n:((i + 1) * m) // n] for i in range(n)]


def emit_proj(k, tail_code):
    g = GemmCfg(vRB=14, vTmp=16, vF=24)
    g.sVW = 3
    assert g.vAcc == 80 and g.nvgpr == 208
    jK = Job("row", True, 4, 8, 16, 17, 33, 26, 29, 30, 2, 6, 10, "K")
    jV = Job("row", False, 4, 8, 16, 17, 33, 26, 29, 30, 2, 6, 10, "V")
    jB = Job("frag", True, 64, 68, 72, 73, 74, 75, 76, 77, 72, 73, 77, "B")
    for j in (jK, jV):
        j.sAoff2, j.sBoff2 = 18, 22
    jB.sAoff2, jB.sBoff2 = 25, 94
    vPf, vDummy, vPoll = g.vTmp + 5, g.vTmp + 6, g.vTmp + 7
    PFS = int(os.environ.get("PFS", "6"))
    NCARRY = int(os.environ.get("NCARRY", "8"))
    k.label("L_pj_task")
    k.e("s_load_dwordx4 s[40:43], s[0:1], 0")
    k.e("s_load_dwordx4 s[44:47], s[0:1], 24")
    k.e("s_load_dwordx2 s[48:49], s[0:1], %d" % ARG_WS)
    k.e("s_load_dwordx2 s[50:51], s[0:1], %d" % ARG_WQ)
    k.e("s_load_dwordx4 s[52:55], s[0:1], %d" % ARG_W1)
    k.e("s_load_dwordx2 s[56:57], s[0:1], %d" % ARG_WO)
    k.e("s_load_dwordx2 s[58:59], s[0:1], %d" % ARG_W2)
    k.e("s_load_dwordx2 s[60:61], s[0:1], %d" % ARG_DBG)
    k.e("s_and_b32 s%d, s2, 7" % sTa)
    k.e("s_bfe_u32 s%d, s2, 0x20003" % sTb)
    k.e("s_lshl2_add_u32 s%d, s%d, s%d" % (sTa, sTa, sTb))
    k.e("s_lshr_b32 s%d, s2, 5" % sMtA)
    k.e("s_and_b32 s%d, s%d, 15" % (sNtA, sTa))
    k.e("s_lshr_b32 s%d, s%d, 4" % (sIsV, sTa))
    k.e("s_movk_i32 s%d, 1024" % jK.sPitchA)
    k.e("s_movk_i32 s%d, 8192" % jK.sPitchB)
    k.e("s_movk_i32 s%d, 128" % jK.sAstep)
    k.e("s_mov_b32 s%d, %d" % (jK.sBstep, 64 * 8192))
    k.e("s_mov_b32 s%d, 0" % jK.sAoff)
    k.e("s_mov_b32 s%d, 0" % jK.sBoff)
    gemm_setup_common(k, g)
    gemm_setup_job(k, g, jK)
    k.e("s_waitcnt lgkmcnt(0)")
    k.e("s_lshl_b32 s%d, s%d, 18" % (sTa, sMtA))
    k.e("s_sub_u32 s%d, %d, s%d" % (sTb, 2048 * 1024, sTa))
    srd(k, jK.sA, sCKV, "s%d" % sTa, "s%d" % sTb)
    k.e("s_cmp_eq_u32 s%d, 0" % sIsV)
    k.e("s_cselect_b32 s78, s%d, s%d" % (sWUK, sWUV))
    k.e("s_cselect_b32 s79, s%d, s%d" % (sWUK + 1, sWUV + 1))
    k.e("s_lshl_b32 s%d, s%d, 9" % (sTa, sNtA))
    k.e("s_sub_u32 s%d, %d, s%d" % (sTb, 512 * 8192, sTa))
    srd(k, jK.sB, 78, "s%d" % sTa, "s%d" % sTb)
    srd(k, sLnX, sX, 0, 4 * MB)
    k.e("s_lshl3_add_u32 s%d, s2, s%d" % (sRow, g.sWave))

    def pf(base, nbytes, off):
        def f():
            srd(k, sPf, base, 0, nbytes)
            k.e("s_mov_b32 s%d, %d" % (sPfOff, off))
            k.e("buffer_load_dword v%d, v%d, %s, s%d offen" % (vDummy, vPf, sr(sPf, 4), sPfOff))
        return f
    PFW = 1024 * 64 << PFS

    def pf_all(base, nbytes):
        return [pf(base, nbytes, o) for o in range(0, nbytes, PFW)]

    k.e("s_and_b32 s%d, s%d, 3" % (sTa, g.sWave))
    k.e("s_lshl2_add_u32 s%d, s2, s%d" % (sTa, sTa))
    k.e("s_lshl_b32 s%d, s%d, %d" % (sTa, sTa, 6 + PFS))
    k.e("v_lshlrev_b32 v%d, %d, v%d" % (vPf, PFS - 4, g.vLane16))
    k.e("v_add_u32 v%d, s%d, v%d" % (vPf, sTa, vPf))
    k.e("s_cmp_ge_u32 s%d, 4" % g.sWave)
    k.e("s_cbranch_scc1 L_pj_startP")
    for s_ in range(2):
        for f in dma_list(k, g, jK, s_, "dma%d" % s_):
            f()
    ln_load(k, g)
    vmqD = list(k.vmq)
    k.e("s_branch L_pj_start2")
    k.label("L_pj_startP")
    k.vmq = []
    ln_load(k, g)
    srd(k, sDb, sWS, WS_FLAGS, 65536)
    k.e("v_mov_b32 v%d, 0" % vPoll)
    k.vm_op("buffer_load_dword v%d, v%d, %s, 0 offen sc1" % (vPk, vPoll, sr(sDb, 4)), "epoch")
    vmqP = list(k.vmq)
    for f in pf_all(sCKV, 2 * MB) + pf_all(sWUK, 4 * MB) + pf_all(sWUV, 4 * MB):
        f()
        vmqP.append("pf")
    k.label("L_pj_start2")
    srd(k, sLnO, sWS, WS_XN, 4 * MB)
    srd(k, sDb, sWS, WS_FLAGS, 65536)
    k.e("s_sub_u32 s%d, s2, 240" % sTa)
    k.e("s_cmp_lt_u32 s2, 240")
    k.e("s_cselect_b32 s%d, s2, s%d" % (sTa, sTa))
    k.e("s_and_b32 s%d, s%d, 7" % (sTb, sTa))
    k.e("s_lshr_b32 s%d, s%d, 3" % (sTa, sTa))
    k.e("s_mul_i32 s%d, s%d, 30" % (sTb, sTb))
    k.e("s_add_u32 s%d, s%d, s%d" % (sTa, sTa, sTb))
    k.e("s_and_b32 s%d, s%d, 7" % (sMtB, sTa))
    k.e("s_lshr_b32 s%d, s%d, 3" % (sTa, sTa))
    k.e("s_cmp_ge_u32 s%d, 16" % sTa)
    k.e("s_cselect_b32 s%d, 1, 0" % sIsH)
    k.e("s_cselect_b32 s%d, 7, 8" % jB.sPitchB)
    k.e("s_cselect_b32 s%d, 16, 0" % sTb)
    k.e("s_sub_u32 s%d, s%d, s%d" % (sNtB, sTa, sTb))
    k.e("s_lshl_b32 s%d, s%d, 10" % (jB.sPitchB, jB.sPitchB))
    k.e("s_mov_b32 s%d, 65536" % jB.sPitchA)
    k.e("s_movk_i32 s%d, 4096" % jB.sAstep)
    k.e("s_lshl_b32 s%d, s%d, 6" % (jB.sBstep, jB.sPitchB))
    k.e("s_mov_b32 s%d, 0" % jB.sAoff)
    k.e("s_mov_b32 s%d, 0" % jB.sBoff)
    gemm_setup_job(k, g, jB)
    k.e("s_lshl_b32 s%d, s%d, 19" % (sTa, sMtB))
    k.e("s_sub_u32 s%d, %d, s%d" % (sTb, 4 * MB, sTa))
    k.e("s_add_u32 s%d, s%d, %d" % (sTa, sTa, WS_XN))
    srd(k, jB.sA, sWS, "s%d" % sTa, "s%d" % sTb)
    k.e("s_cmp_eq_u32 s%d, 0" % sIsH)
    k.e("s_cselect_b32 s78, s%d, s%d" % (sWQ, sW1))
    k.e("s_cselect_b32 s79, s%d, s%d" % (sWQ + 1, sW1 + 1))
    k.e("s_lshl_b32 s%d, s%d, 9" % (sTa, sNtB))
    k.e("s_lshl_b32 s%d, s%d, 10" % (sTb, jB.sPitchB))
    k.e("s_sub_u32 s%d, s%d, s%d" % (sTb, sTb, sTa))
    srd(k, jB.sB, 78, "s%d" % sTa, "s%d" % sTb)
    k.e("s_lshr_b32 s%d, s%d, 1" % (sTa, g.sWn))
    k.e("s_lshl1_add_u32 s%d, s%d, s%d" % (sTa, sNtA, sTa))
    k.e("s_lshl_b32 s%d, s%d, 19" % (sStA, sTa))
    k.e("s_lshl_b32 s%d, s%d, 3" % (sTa, sMtA))
    k.e("s_lshl2_add_u32 s%d, s%d, s%d" % (sTa, g.sWm, sTa))
    k.e("s_lshl_b32 s%d, s%d, 13" % (sTa, sTa))
    k.e("s_add_u32 s%d, s%d, s%d" % (sStA, sStA, sTa))
    k.e("s_and_b32 s%d, s%d, 1" % (sTa, g.sWn))
    k.e("s_lshl_b32 s%d, s%d, 12" % (sTa, sTa))
    k.e("s_add_u32 s%d, s%d, s%d" % (sStA, sStA, sTa))
    k.e("s_lshl_b32 s%d, s%d, 24" % (sTa, sIsV))
    k.e("s_add_u32 s%d, s%d, %d" % (sTa, sTa, WS_K))
    srd(k, g.sO, sWS, "s%d" % sTa, 16 * MB)

    def flag(off_expr_emit, imms, wave=4):
        lab = k.newlabel("nosig")
        k.e("s_cmp_lg_u32 s%d, %d" % (g.sWave, wave))
        k.e("s_cbranch_scc1 %s" % lab)
        off_expr_emit(lab)
        k.e("v_mov_b32 v216, 0")
        k.e("v_mov_b32 v217, s%d" % sNonce)
        k.e("s_mov_b64 exec, 1")
        for imm in imms:
            k.e("s_add_u32 s%d, s%d, %d" % (sTa, sTa, imm))
            k.e("buffer_store_dword v217, v216, %s, s%d offen sc1" % (sr(sDb, 4), sTa))
        k.e("s_mov_b64 exec, -1")
        k.label(lab)

    def signal():
        def off(lab):
            if FORCE_HELP & 1:
                k.e("s_and_b32 s%d, s2, 15" % sTa)
                k.e("s_cmp_eq_u32 s%d, 3" % sTa)
                k.e("s_cbranch_scc1 %s" % lab)
            k.e("s_lshl_b32 s%d, s2, 2" % sTa)
        flag(off, [FL_LN])

        def off2(lab):
            k.e("s_lshl_b32 s%d, s2, 2" % sTa)
        flag(off2, [FL_PS])

    def signal_kv(wave=4):
        def off(lab):
            k.e("s_lshl4_add_u32 s%d, s%d, s%d" % (sTa, sIsV, sNtA))
            k.e("s_lshl3_add_u32 s%d, s%d, s%d" % (sTa, sTa, sMtA))
            k.e("s_lshl_b32 s%d, s%d, 2" % (sTa, sTa))
        flag(off, [FL_KV], wave)

    def nonce1():
        lab = k.newlabel("non1")
        k.vm_need(["epoch"])
        k.e("s_cmp_lg_u32 s%d, 7" % g.sWave)
        k.e("s_cbranch_scc1 %s" % lab)
        srd(k, sPf, sDBG, 0, 256)
        k.e("v_add_u32 v%d, 1, v%d" % (vPk, vPk))
        k.e("v_max_u32 v%d, 1, v%d" % (vPk, vPk))
        k.e("v_mov_b32 v%d, v%d" % (vPk + 2, vPk))
        k.e("v_mov_b32 v%d, 0" % (vPk + 1))
        k.e("v_mov_b32 v%d, 0" % (vPk + 3))
        k.e("s_mov_b64 exec, 1")
        k.e("buffer_atomic_cmpswap %s, v%d, %s, 0 offen sc0 sc1" % (vr(vPk, 2), vPk + 3, sr(sPf, 4)))
        k.e("s_mov_b64 exec, -1")
        k.label(lab)

    def nonce2():
        lab, lab2 = k.newlabel("non2"), k.newlabel("non3")
        k.e("s_cmp_lg_u32 s%d, 7" % g.sWave)
        k.e("s_cbranch_scc1 %s" % lab)
        k.e("s_waitcnt vmcnt(0)")
        k.e("v_mov_b32 v%d, 0" % (vPk + 3))
        k.e("s_mov_b64 exec, 1")
        k.e("v_cmp_eq_u32 vcc, 0, v%d" % vPk)
        k.e("s_cbranch_vccz %s" % lab2)
        k.e("v_mov_b32 v%d, v%d" % (vPk, vPk + 2))
        k.e("buffer_store_dword v%d, v%d, %s, 0 offen sc1" % (vPk, vPk + 3, sr(sDb, 4)))
        k.label(lab2)
        k.e("v_mov_b32 v%d, %d" % (vPk + 1, NONCEW))
        k.e("ds_write_b32 v%d, v%d" % (vPk + 1, vPk))
        k.e("s_mov_b64 exec, -1")
        k.label(lab)

    def nonce3():
        k.e("v_mov_b32 v%d, %d" % (vPk + 1, NONCEW))
        k.lds_op("ds_read_b32 v%d, v%d" % (vPk, vPk + 1), [vPk])

    def nonce4():
        k.lds_need([vPk])
        k.e("v_readfirstlane_b32 s%d, v%d" % (sNonce, vPk))

    def bias_loads():
        out = []

        def setup():
            k.e("s_lshl_b32 s%d, s%d, 9" % (sTa, sNtB))
            k.e("s_lshl_b32 s%d, s%d, 7" % (sTb, g.sWn))
            k.e("s_add_u32 s%d, s%d, s%d" % (sTa, sTa, sTb))
            k.e("s_sub_u32 s%d, %d, s%d" % (sTb, 3584 * 2, sTa))
            k.e("s_cmp_eq_u32 s%d, 0" % sIsH)
            k.e("s_cselect_b32 s%d, 0, s%d" % (sTb, sTb))
            k.e("s_cselect_b32 s%d, 0, s%d" % (sTa, sTa))
            srd(k, sLnX, sB1, "s%d" % sTa, "s%d" % sTb)
            k.e("v_bfe_u32 v%d, v0, 5, 1" % vPoll)
            k.e("v_lshlrev_b32 v%d, 3, v%d" % (vPoll, vPoll))
        out.append(setup)
        for tn in range(2):
            for gq in range(4):
                out.append(lambda tn=tn, gq=gq: k.vm_op("buffer_load_dwordx2 %s, v%d, %s, 0 offen offset:%d" % (vr(vPk + (tn * 4 + gq) * 2, 2), vPoll, sr(sLnX, 4), tn * 64 + gq * 16), "bias"))
        return out

    def bias_unpack():
        out = [lambda: k.vm_need(["bias"])]
        for tn in range(2):
            for r in range(16):
                src = vPk + (tn * 4 + (r >> 2)) * 2 + ((r & 3) >> 1)
                d = vBias + 16 * tn + r
                if r & 1:
                    out.append(lambda d=d, src=src: k.e("v_and_b32 v%d, 0xffff0000, v%d" % (d, src)))
                else:
                    out.append(lambda d=d, src=src: k.e("v_lshlrev_b32 v%d, 16, v%d" % (d, src)))
        return out

    def poll_issue():
        k.vm_op("buffer_load_dwordx4 %s, v%d, %s, 0 offen offset:%d sc1" % (vr(vRaw, 4), g.vLane16, sr(sDb, 4), FL_LN), "poll")

    slow = []

    def poll_eval(vRaw=vRaw):
        k.e("v_xor_b32 v%d, s%d, v%d" % (vRaw, sNonce, vRaw))
        k.e("v_xor_b32 v%d, s%d, v%d" % (vRaw + 1, sNonce, vRaw + 1))
        k.e("v_xor_b32 v%d, s%d, v%d" % (vRaw + 2, sNonce, vRaw + 2))
        k.e("v_xor_b32 v%d, s%d, v%d" % (vRaw + 3, sNonce, vRaw + 3))
        k.e("v_or3_b32 v%d, v%d, v%d, v%d" % (vRaw + 4, vRaw, vRaw + 1, vRaw + 2))
        k.e("v_or_b32 v%d, v%d, v%d" % (vRaw + 4, vRaw + 4, vRaw + 3))
        k.e("v_cmp_ne_u32 vcc, 0, v%d" % (vRaw + 4))

    def first_missing(sdst, stmp, vRaw=vRaw):
        k.e("s_ff1_i32_b64 s%d, vcc" % stmp)
        k.e("v_cmp_ne_u32 vcc, 0, v%d" % (vRaw + 2))
        k.e("s_nop 1")
        k.e("v_cndmask_b32 v%d, 3, 2, vcc" % (vRaw + 4))
        k.e("v_cmp_ne_u32 vcc, 0, v%d" % (vRaw + 1))
        k.e("s_nop 1")
        k.e("v_cndmask_b32 v%d, v%d, 1, vcc" % (vRaw + 4, vRaw + 4))
        k.e("v_cmp_ne_u32 vcc, 0, v%d" % vRaw)
        k.e("s_nop 1")
        k.e("v_cndmask_b32 v%d, v%d, 0, vcc" % (vRaw + 4, vRaw + 4))
        k.e("s_nop 1")
        k.e("v_readlane_b32 s%d, v%d, s%d" % (sdst, vRaw + 4, stmp))
        k.e("s_nop 3")
        k.e("s_lshl2_add_u32 s%d, s%d, s%d" % (sdst, stmp, sdst))
        k.e("s_cmp_lt_i32 s%d, 0" % stmp)
        k.e("s_cselect_b32 s%d, -1, s%d" % (sdst, sdst))

    def poll_check():
        lab, back = k.newlabel("pollslow"), k.newlabel("pollback")
        poll_eval()
        k.e("s_cbranch_vccnz %s" % lab)
        k.label(back)
        slow.append((lab, back))

    def trk(f):
        def h():
            f()
            k.vmq.append("pf")
        return h

    quads = [208 + 4 * i for i in range(12)] + [2, 6, 10, 16]
    vPS = 208

    def ps_issue():
        lab = k.newlabel("nops")
        k.e("s_cmp_lg_u32 s%d, 0" % g.sWave)
        k.e("s_cbranch_scc1 %s" % lab)
        k.e("buffer_load_dwordx4 %s, v%d, %s, 0 offen offset:%d sc1" % (vr(vPS, 4), g.vLane16, sr(sDb, 4), FL_PS))
        k.label(lab)

    def ps_eval():
        lab = k.newlabel("nops2")
        k.e("s_cmp_lg_u32 s%d, 0" % g.sWave)
        k.e("s_cbranch_scc1 %s" % lab)
        poll_eval(vPS)
        first_missing(78, 79, vPS)
        k.e("v_mov_b32 v%d, s78" % vPS)
        k.e("v_mov_b32 v%d, %d" % (vPS + 1, NONCEW + 4))
        k.e("ds_write_b32 v%d, v%d" % (vPS + 1, vPS))
        k.label(lab)

    def ps_read():
        k.e("v_mov_b32 v%d, %d" % (vPS + 1, NONCEW + 4))
        k.lds_op("ds_read_b32 v%d, v%d" % (vPS, vPS + 1), [vPS])
        k.lds_need([vPS])
        k.e("v_readfirstlane_b32 s%d, v%d" % (sHelp, vPS))

    def kv_poll():
        AT.kv_flag_addr(k, 21, 20, sWG, sTa, sTb)
        k.vm_op("buffer_load_dword v20, v21, %s, 0 offen sc1" % sr(sDb, 4), "kvp")

    def kvstore(i):
        def f():
            tm, r = i // 4, i % 4
            k.vm_op("buffer_store_dwordx4 %s, v%d, %s, s%d offen offset:%d%s" % (vr(quads[i], 4), g.vLane16, sr(g.sO, 4), sStA, r * 1024, TRFLAGS), "st")
            if r == 3:
                k.e("s_add_u32 s%d, s%d, 8192" % (sStA, sStA))
        return f

    stamp(k, 2)
    k.e("s_cmp_ge_u32 s%d, 4" % g.sWave)
    k.e("s_cbranch_scc1 L_pj_roleP")
    for role in ("D", "P"):
        D = role == "D"
        if not D:
            k.label("L_pj_roleP")
        k.ldsq = []
        k.vmq = list(vmqD if D else vmqP)
        if D:
            k.vm_need(["dma0"])
        k.e("s_barrier")
        stamp(k, 3)
        state0 = (list(k.ldsq), list(k.vmq))
        k.e("s_cmp_eq_u32 s%d, 0" % sIsV)
        k.e("s_cbranch_scc0 L_pj_V%s" % role)
        end_state = None
        pfB = [trk(f) for f in pf_all(sWQ, 8 * MB) + pf_all(sW1, 1024 * 7168)]
        pfB = pfB[0::2] + pfB[1::2] if len(pfB) == 4 else pfB
        pfO = [trk(f) for f in pf_all(sWO, 8 * MB) + pf_all(sW2, 3584 * 2048)]
        for jA in (jK, jV):
            if jA is jV:
                k.label("L_pj_V%s" % role)
                k.ldsq, k.vmq = list(state0[0]), list(state0[1])
            for f in read_list(k, g, jA, 0, 0, 0):
                f()
            lnp = split_list(ln_steps(k, g, via_lds=True), 6)
            lns = ln_store_steps(k, g)
            carry = []
            pfsplit = split_list(pfB, 4)
            for t in range(8):
                extra = {}
                post = None
                need = ["dma%d" % (t + 1)]
                if t == 0:
                    extra = {0: ([] if D else [nonce1]) + lnp[0], 1: lnp[1], 2: lnp[2]}
                elif t == 1:
                    extra = {0: lnp[3], 1: lnp[4], 2: lnp[5]}
                elif t == 2:
                    extra = {0: lns[0:2], 1: lns[2:3], 2: [] if D else [nonce2]}
                elif t == 3:
                    extra = {0: [nonce3], 1: [nonce4]}
                    need.append("lnst")
                    if not D:
                        post = signal
                elif t == 5 and D:
                    extra = {2: [poll_issue]}
                elif t == 6 and D:
                    need.append("poll")
                    post = poll_check
                if not D and 3 <= t < 7:
                    extra[3] = pfsplit[t - 3]
                jd = (jA if t < 6 else jB) if D else None
                jn = jA if t < 7 else jB
                carry = gemm_body(k, g, t % 2, jA, jn, jd, need, "dma%d" % (t + 2), extra=extra,
                                  cinit=(lambda tm, tn: "0") if t == 0 else None, post_barrier=post,
                                  carry=carry, ncarry=NCARRY if D else 0)
            st = (list(k.ldsq), list(k.vmq))
            if end_state is None:
                end_state = st
                k.e("s_branch L_pj_T%s" % role)
            else:
                assert st == end_state
        k.label("L_pj_T%s" % role)
        if DIAG:
            stamp(k, 5)
        cnt = [0]

        def pre(tm, tn):
            for p in range(2):
                pack_only(k, g.acc(tm, tn) + 8 * p, quads[cnt[0]])
                cnt[0] += 1
        pfsplit = split_list(pfO, 8)
        for t in range(8, 24):
            last = t == 23
            NST = int(os.environ.get("NST", "10"))
            st0, st1 = ((t - 8) * 16) // NST, ((t - 7) * 16) // NST
            sts = [kvstore(i) for i in range(st0, min(st1, 16))] if t < 8 + NST else []
            ex = {0: sts[:1], 1: sts[1:]}
            needB = ["dma%d" % (t + 1)]
            postB = None
            if t == 9 + NST:
                needB.append("st")
                if not D:
                    postB = signal_kv
            if t == 15 and D:
                ex[2] = [ps_issue]
            if t == 17 and D:
                ex[2] = [ps_eval]
            if t == 19:
                ex[2] = [ps_read]
            if t == 22:
                ex[2] = [kv_poll]
            if not D and 9 <= t < 17:
                ex[3] = pfsplit[t - 9]
            if t == 20:
                ex[0] = ex[0] + bias_loads()
            if t == 21:
                bu = split_list(bias_unpack(), 3)
                ex[0] = bu[0]; ex[1] = bu[1]; ex[2] = bu[2]
            carry = gemm_body(k, g, t % 2, jB, None if last else jB, jB if (t < 22 and D) else None, needB, "dma%d" % (t + 2), extra=ex, post_barrier=postB,
                              cinit=(lambda tm, tn: "0") if t == 8 else None, pre=pre if t == 8 else None,
                              carry=carry, ncarry=NCARRY if D else 0)
            if t == 8:
                cont = k.newlabel("cont")
                k.e("s_cmp_lt_u32 s2, 240")
                k.e("s_cbranch_scc1 %s" % cont)
                sv = (list(k.ldsq), list(k.vmq))
                for i in range(st1, 16):
                    kvstore(i)()
                k.e("s_waitcnt vmcnt(0) lgkmcnt(0)")
                k.e("s_barrier")
                signal_kv()
                k.e("s_branch L_pj_chk")
                k.label(cont)
                k.ldsq, k.vmq = sv
        if D:
            k.e("s_branch L_pj_epi")
    k.label("L_pj_epi")
    k.e("s_waitcnt lgkmcnt(0)")
    k.e("s_barrier")
    stamp(k, 4)
    eO, sFo, sWv, sStep, sQd = 64, 68, 69, 70, 71
    k.e("s_mov_b32 s%d, s%d" % (sWv, g.sWave))
    k.e("s_lshl4_add_u32 s%d, s%d, s%d" % (sFo, sIsH, sNtB))
    k.e("s_lshl3_add_u32 s%d, s%d, s%d" % (sFo, sFo, sMtB))
    k.e("s_lshl_b32 s%d, s%d, 2" % (sFo, sFo))
    k.e("s_add_u32 s%d, s%d, %d" % (sFo, sFo, FL_QH))
    k.e("s_lshl_b32 s%d, s%d, 3" % (sTa, sMtB))
    k.e("s_lshl2_add_u32 s%d, s%d, s%d" % (sTa, g.sWm, sTa))
    k.e("s_cmp_eq_u32 s%d, 0" % sIsH)
    k.e("s_cbranch_scc0 L_pj_sH")
    srd(k, eO, sWS, WS_Q, 16 * MB)
    k.e("s_lshr_b32 s%d, s%d, 1" % (sTb, g.sWn))
    k.e("s_lshl1_add_u32 s%d, s%d, s%d" % (sTb, sNtB, sTb))
    k.e("s_lshl_b32 s%d, s%d, 19" % (sStA, sTb))
    k.e("s_lshl_b32 s%d, s%d, 13" % (sTa, sTa))
    k.e("s_add_u32 s%d, s%d, s%d" % (sStA, sStA, sTa))
    k.e("s_and_b32 s%d, s%d, 1" % (sTa, g.sWn))
    k.e("s_lshl_b32 s%d, s%d, 12" % (sTa, sTa))
    k.e("s_add_u32 s%d, s%d, s%d" % (sStA, sStA, sTa))
    k.e("s_branch L_pj_s2")
    k.label("L_pj_sH")
    srd(k, eO, sWS, WS_AH, 2048 * 7680 * 2)
    k.e("s_mul_i32 s%d, s%d, 480" % (sTa, sTa))
    k.e("s_lshl_b32 s%d, s%d, 4" % (sStA, sNtB))
    k.e("s_add_u32 s%d, s%d, s%d" % (sStA, sStA, sTa))
    k.e("s_lshl2_add_u32 s%d, s%d, s%d" % (sStA, g.sWn, sStA))
    k.e("s_add_u32 s%d, s%d, 256" % (sStA, sStA))
    k.e("s_lshl_b32 s%d, s%d, 10" % (sStA, sStA))
    k.label("L_pj_s2")
    k.e("s_mov_b32 s%d, 1" % sQd)
    k.e("s_mov_b32 s%d, s%d" % (AT.sTask, sWG))
    AT.attn_setup(k)
    vQA, vQR = 14, 15
    k.e("s_cmp_ge_i32 s%d, 0" % sHelp)
    k.e("s_cbranch_scc1 L_pj_noearly0")
    k.e("s_waitcnt vmcnt(0)")
    AT.spin_flags(k, 21, 20, first_loaded=True)
    for f in AT.dma_k(k, 0) + AT.dma_v(k, 0) + AT.dma_k(k, 1):
        f()
    k.label("L_pj_noearly0")
    stamp(k, 2)
    AT.attn_setup2(k)
    AT.q_flag_addr(k, vQA, AT.sJL)
    k.e("s_cmp_ge_i32 s%d, 0" % sHelp)
    k.e("s_cbranch_scc1 L_pj_noearly")
    k.e("buffer_load_dword v%d, v%d, %s, 0 offen sc1" % (vQR, vQA, sr(AT.sFl, 4)))
    k.e("s_mov_b32 s%d, 0" % sQd)
    k.label("L_pj_noearly")
    g.sO = eO

    def q_try(nyoung):
        l0, l1 = k.newlabel("qskip"), k.newlabel("qre")
        k.e("s_cmp_lg_u32 s%d, 0" % sQd)
        k.e("s_cbranch_scc1 %s" % l0)
        k.e("s_waitcnt vmcnt(%d)" % nyoung)
        k.e("v_cmp_ne_u32 vcc, s%d, v%d" % (sNonce, vQR))
        k.e("s_cbranch_vccnz %s" % l1)
        AT.q_loads(k, AT.sJL)
        k.e("s_mov_b32 s%d, 1" % sQd)
        k.e("s_branch %s" % l0)
        k.label(l1)
        k.e("buffer_load_dword v%d, v%d, %s, 0 offen sc1" % (vQR, vQA, sr(AT.sFl, 4)))
        k.label(l0)
    k.e("s_cmp_eq_u32 s%d, 0" % sIsH)
    k.e("s_cbranch_scc0 L_pj_H")
    k.e("s_mov_b32 s78, 0x%08x" % f32bits(QSCALE))
    k.e("s_mov_b32 s79, 0x%08x" % f32bits(QSCALE))
    tq = 0
    for tm in range(4):
        for tn in range(2):
            for p in range(2):
                src = g.acc(tm, tn) + 8 * p
                for i in range(4):
                    k.e("v_pk_mul_f32 %s, %s, s[78:79]" % (vr(src + 2 * i, 2), vr(src + 2 * i, 2)))
                pack_only(k, src, src)
                tq += 1
    k.e("s_movk_i32 s%d, 8192" % sStep)
    k.e("s_branch L_pj_fin")
    k.label("L_pj_H")
    k.e("s_mov_b32 s78, 0x%08x" % f32bits(GELU_C2))
    k.e("s_mov_b32 s79, 0x%08x" % f32bits(GELU_C2))
    vC = 64
    k.e("v_mov_b32 v%d, 0x%08x" % (vC, f32bits(GELU_C1)))
    k.e("v_mov_b32 v%d, 0x%08x" % (vC + 1, f32bits(GELU_C1)))
    k.e("v_mov_b32 v%d, 1.0" % (vC + 2))
    k.e("v_mov_b32 v%d, 1.0" % (vC + 3))
    c1 = vr(vC, 2)
    one2 = vr(vC + 2, 2)
    tq = 0
    for tm in range(4):
        for tn in range(2):
            for p in range(2):
                src = g.acc(tm, tn) + 8 * p
                tb = 48 + 8 * (tq % 2)
                for i in range(4):
                    k.e("v_pk_add_f32 %s, %s, %s" % (vr(src + 2 * i, 2), vr(src + 2 * i, 2), vr(vBias + 16 * tn + 8 * p + 2 * i, 2)))
                for i in range(4):
                    k.e("v_pk_mul_f32 %s, %s, %s" % (vr(tb + 2 * i, 2), vr(src + 2 * i, 2), vr(src + 2 * i, 2)))
                for i in range(4):
                    k.e("v_pk_fma_f32 %s, %s, s[78:79], %s" % (vr(tb + 2 * i, 2), vr(tb + 2 * i, 2), c1))
                for i in range(4):
                    k.e("v_pk_mul_f32 %s, %s, %s" % (vr(tb + 2 * i, 2), vr(tb + 2 * i, 2), vr(src + 2 * i, 2)))
                for i in range(8):
                    k.e("v_exp_f32 v%d, v%d" % (tb + i, tb + i))
                for i in range(4):
                    k.e("v_pk_add_f32 %s, %s, %s" % (vr(tb + 2 * i, 2), vr(tb + 2 * i, 2), one2))
                for i in range(8):
                    k.e("v_rcp_f32 v%d, v%d" % (tb + i, tb + i))
                for i in range(4):
                    k.e("v_pk_mul_f32 %s, %s, %s" % (vr(src + 2 * i, 2), vr(src + 2 * i, 2), vr(tb + 2 * i, 2)))
                pack_only(k, src, src)
                tq += 1
        if tm >= 1:
            q_try(0)
    k.e("s_mov_b32 s%d, %d" % (sStep, 480 * 1024))
    k.label("L_pj_fin")
    stamp(k, 3)

    def all_stores():
        for tm in range(4):
            for tn in range(2):
                for p in range(2):
                    src = g.acc(tm, tn) + 8 * p
                    k.e("buffer_store_dwordx4 %s, v%d, %s, s%d offen offset:%d sc1" % (vr(src, 4), g.vLane16, sr(eO, 4), sStA, (tn * 2 + p) * 1024))
            if tm < 3:
                k.e("s_add_u32 s%d, s%d, s%d" % (sStA, sStA, sStep))
    k.e("s_cmp_ge_i32 s%d, 0" % sHelp)
    k.e("s_cbranch_scc1 L_pj_urg")
    k.e("s_lshl_b32 s78, s%d, 3" % sIsH)
    k.e("s_lshr_b32 s79, s%d, 2" % sMtB)
    k.e("s_add_u32 s78, s78, s79")
    k.e("s_cmp_eq_u32 s78, 1")
    k.e("s_cbranch_scc0 L_pj_lazy")
    k.label("L_pj_urg")
    all_stores()
    k.e("s_waitcnt vmcnt(0)")
    k.e("s_barrier")
    lab = k.newlabel("noqh")
    k.e("s_cmp_lg_u32 s%d, 4" % sWv)
    k.e("s_cbranch_scc1 %s" % lab)
    k.e("v_mov_b32 v%d, 0" % (vPk + 4))
    k.e("v_mov_b32 v%d, s%d" % (vPk + 5, sNonce))
    k.e("s_mov_b64 exec, 1")
    k.e("buffer_store_dword v%d, v%d, %s, s%d offen sc1" % (vPk + 5, vPk + 4, sr(sDb, 4), sFo))
    k.e("s_mov_b64 exec, -1")
    k.label(lab)
    k.e("s_cmp_ge_i32 s%d, 0" % sHelp)
    k.e("s_cbranch_scc1 L_pj_help")
    stamp(k, 6)
    k.e("s_mov_b32 s%d, 0" % AT.sPend)
    AT.spin_flags(k, vQA, vQR, first_loaded=True)
    AT.q_loads(k, AT.sJL)
    k.e("s_waitcnt vmcnt(0)")
    k.e("s_branch L_pj_go")
    k.label("L_pj_lazy")
    stamp(k, 6)
    k.e("s_cmp_lg_u32 s%d, 0" % sQd)
    k.e("s_cbranch_scc1 L_pj_lz2")
    k.e("s_waitcnt vmcnt(0)")
    AT.spin_flags(k, vQA, vQR, first_loaded=True)
    AT.q_loads(k, AT.sJL)
    k.label("L_pj_lz2")
    all_stores()
    k.e("s_mov_b32 s%d, s%d" % (AT.sPend, sFo))
    k.label("L_pj_go")
    k.e("s_mov_b32 s2, s%d" % sWG)
    stamp(k, 7)
    if DIAG:
        k.e("v_mov_b32 v14, v78")
        k.e("v_mov_b32 v15, v79")
    k.e("s_nop 1")
    k.e("s_branch L_at_fast")
    k.label("L_pj_chk")
    lab = k.newlabel("nochk")
    k.e("s_cmp_lg_u32 s%d, 0" % g.sWave)
    k.e("s_cbranch_scc1 %s" % lab)
    k.e("buffer_load_dwordx4 %s, v%d, %s, 0 offen offset:%d sc1" % (vr(vRaw, 4), g.vLane16, sr(sDb, 4), FL_PS))
    k.e("s_waitcnt vmcnt(0)")
    poll_eval()
    first_missing(78, 79)
    k.e("v_mov_b32 v%d, s78" % vPk)
    k.e("v_mov_b32 v%d, %d" % (vPk + 1, NONCEW + 4))
    k.e("ds_write_b32 v%d, v%d" % (vPk + 1, vPk))
    k.label(lab)
    k.e("s_waitcnt lgkmcnt(0)")
    k.e("s_barrier")
    k.e("v_mov_b32 v%d, %d" % (vPk + 1, NONCEW + 4))
    k.e("ds_read_b32 v%d, v%d" % (vPk, vPk + 1))
    k.e("s_waitcnt lgkmcnt(0)")
    k.e("v_readfirstlane_b32 s%d, v%d" % (sHelp, vPk))
    k.e("s_nop 3")
    k.e("s_cmp_lt_i32 s%d, 0" % sHelp)
    k.e("s_cbranch_scc1 L_pj_done")
    k.label("L_pj_help")
    k.e("s_mov_b32 s2, s%d" % sHelp)
    k.e("s_waitcnt vmcnt(0)")
    k.e("s_barrier")
    k.e("s_branch L_pj_task")

    def emit_slow():
        for lab, back in slow:
            spin, helpl, rowl = k.newlabel("spin"), k.newlabel("help"), k.newlabel("rowl")
            k.label(lab)
            k.e("s_mov_b32 s78, 0")
            k.label(spin)
            k.e("buffer_load_dwordx4 %s, v%d, %s, 0 offen offset:%d sc1" % (vr(vRaw, 4), g.vLane16, sr(sDb, 4), FL_LN))
            k.e("s_waitcnt vmcnt(0)")
            poll_eval()
            k.e("s_cbranch_vccz %s" % back)
            k.e("s_add_u32 s78, s78, 1")
            k.e("s_cmp_ge_u32 s78, 32")
            k.e("s_cbranch_scc1 %s" % helpl)
            k.e("s_sleep 8")
            k.e("s_branch %s" % spin)
            k.label(helpl)
            first_missing(79, sTa)
            k.e("s_lshl_b32 s%d, s79, 3" % sRow)
            k.e("s_mov_b32 s78, 8")
            k.label(rowl)
            sv = (list(k.ldsq), list(k.vmq))
            k.vmq = []
            ln_load(k, g)
            for f in ln_steps(k, g):
                f()
            k.e("s_add_u32 s%d, s%d, 1" % (sRow, sRow))
            k.e("s_sub_u32 s78, s78, 1")
            k.e("s_cmp_lg_u32 s78, 0")
            k.e("s_cbranch_scc1 %s" % rowl)
            k.e("s_waitcnt vmcnt(0)")
            k.e("s_lshl_b32 s79, s79, 2")
            k.e("v_mov_b32 v%d, s79" % g.vTmp)
            k.e("v_mov_b32 v%d, s%d" % (g.vTmp + 1, sNonce))
            k.e("s_mov_b64 exec, 1")
            k.e("buffer_store_dword v%d, v%d, %s, 0 offen offset:%d sc1" % (g.vTmp + 1, g.vTmp, sr(sDb, 4), FL_LN))
            k.e("s_mov_b64 exec, -1")
            k.ldsq, k.vmq = sv
            k.e("s_mov_b32 s78, 31")
            k.e("s_branch %s" % spin)
    tail_code.append(emit_slow)
    k.label("L_pj_done")
    k.e("s_mov_b32 s2, s%d" % sWG)
```

```python
from asmlib import *
from gemm import *
import attn as AT
MB = 1 << 20
WS_AH = 52 * MB
WS_PART = 84 * MB
ARG_X, ARG_WO, ARG_W2, ARG_B2, ARG_OUT, ARG_DBG, ARG_WS = 0, 40, 72, 80, 88, 96, 104
FORCE_HELP = int(os.environ.get("FORCE_HELP", "0"))


def srd(k, d, base, off, nbytes):
    k.e("s_add_u32 s%d, s%d, %s" % (d, base, off))
    k.e("s_addc_u32 s%d, s%d, 0" % (d + 1, base + 1))
    k.e("s_mov_b32 s%d, %s" % (d + 2, nbytes))
    k.e("s_mov_b32 s%d, 0x00020000" % (d + 3))


def gen_mega_kernel():
    import proj as PJ
    k = KB()
    slow_blocks = []
    tail_code = []
    k.e("s_cmp_ge_u32 s2, 256")
    k.e("s_cbranch_scc1 L_ao_end")
    k.vst = 78
    stamp(k, 0); stamp_rt(k, 1)
    k.e("s_mov_b32 s%d, s2" % PJ.sWG)
    if FORCE_HELP & 4:
        k.e("s_and_b32 s3, s2, 63")
        k.e("s_cmp_eq_u32 s3, 9")
        k.e("s_cbranch_scc0 L_pj_task")
        k.e("s_add_u32 s2, s2, 1")
    PJ.emit_proj(k, tail_code)
    k.vst = 14
    k.ldsq, k.vmq = [], []
    g = GemmCfg(TM=2, TN=2, WM=4, WN=2, NS=3, vRB=160, vTmp=20, vF=28)
    g.layA = [0, 32768, 98304]
    g.layB = [65536, 81920, 131072]
    g.sM0A, g.sM0B, g.sT0, g.sT1, g.sCnt, g.sWave, g.sWm, g.sWn = 96, 99, 92, 90, 91, 78, 50, 51
    j = Job("frag", True, 56, 60, 84, 85, 86, 87, 88, 89, 248, 249, 10, "O")
    sFl = AT.sFl
    sXor, sEarly, sPF = 79, 77, 94
    vHr, vHa = 251, 246

    def hpoll():
        k.e("s_load_dwordx2 s[74:75], s[0:1], %d" % ARG_WO)
        k.e("s_load_dwordx2 s[72:73], s[0:1], %d" % ARG_W2)
        k.e("s_bfe_u32 s64, s93, 0x20001")
        k.e("s_and_b32 s65, s93, 1")
        k.e("s_lshr_b32 s66, s93, 6")
        k.e("s_lshl2_add_u32 s65, s65, s66")
        k.e("s_bfe_u32 s66, s93, 0x30003")
        k.e("v_bfe_u32 v%d, v0, 3, 1" % vHr)
        k.e("v_lshl_add_u32 v%d, s65, 1, v%d" % (vHr, vHr))
        k.e("v_sub_u32 v%d, 15, v%d" % (vHa, vHr))
        k.e("v_min_u32 v%d, v%d, v%d" % (vHr, vHr, vHa))
        k.e("v_and_b32 v%d, 7, v0" % vHa)
        k.e("v_min_u32 v%d, 6, v%d" % (vHa, vHa))
        k.e("v_lshl_add_u32 v%d, v%d, 5, v%d" % (vHa, vHr, vHa))
        k.e("s_mul_i32 s67, s64, 7")
        k.e("v_add_u32 v%d, s67, v%d" % (vHa, vHa))
        k.e("v_lshlrev_b32 v%d, 2, v%d" % (vHa, vHa))
        k.e("v_add_u32 v%d, %d, v%d" % (vHa, AT.FL_QH, vHa))
        k.e("buffer_load_dword v%d, v%d, %s, 0 offen sc1" % (vHr, vHa, sr(sFl, 4)))
        k.e("s_waitcnt lgkmcnt(0)")

    def early_dma():
        d0, d1 = dma_list(k, g, j, 0, "dma0"), dma_list(k, g, j, 1, "dma1")
        for f in d0 + d1[:g.NB]:
            f()

    def early(par):
        k.e("s_mov_b32 s%d, %d" % (sXor, par << 15))
        k.e("s_mov_b32 s%d, %d" % (j.sPitchA, 480 * 1024))
        k.e("s_movk_i32 s%d, 2048" % j.sPitchB)
        k.e("s_movk_i32 s%d, 4096" % j.sAstep)
        k.e("s_mov_b32 s%d, %d" % (j.sBstep, 64 * 2048))
        k.e("s_mul_i32 s%d, s64, %d" % (j.sAoff, 14 * 4096))
        k.e("s_add_u32 s%d, s%d, %d" % (j.sAoff, j.sAoff, 64 * 4096))
        k.e("s_mul_i32 s%d, s64, %d" % (j.sBoff, 14 * 64 * 2048))
        gemm_setup_dma(k, g, j, AT.sWave, sXor, 252)
        k.e("s_mul_i32 s67, s65, %d" % (8 * 480 * 1024))
        k.e("s_sub_u32 s68, %d, s67" % (2048 * 7680 * 2))
        k.e("s_add_u32 s67, s67, %d" % WS_AH)
        srd(k, j.sA, AT.sWS, "s67", "s68")
        k.e("s_lshl_b32 s67, s66, 8")
        k.e("s_sub_u32 s68, %d, s67" % (3584 * 2048))
        srd(k, j.sB, 72, "s67", "s68")
        lab = k.newlabel("noearly")
        k.e("s_mov_b32 s%d, 0" % sEarly)
        k.e("s_waitcnt vmcnt(0)")
        k.e("v_cmp_ne_u32 vcc, s%d, v%d" % (AT.sNonce, vHr))
        k.e("s_cbranch_vccnz %s" % lab)
        early_dma()
        k.e("s_mov_b32 s%d, 1" % sEarly)
        k.label(lab)
    AT.HOOK["hpoll"] = hpoll
    AT.HOOK["early"] = early
    AT.emit_attn(k, slow_blocks)
    k.e("v_readfirstlane_b32 s3, v%d" % AT.vChk)
    k.e("s_lshl_b32 s%d, s%d, 5" % (sPF, AT.sPi))
    k.e("s_add_u32 s%d, s%d, s%d" % (sPF, sPF, AT.sHead))
    k.e("s_cmp_lt_i32 s3, 0")
    k.e("s_cbranch_scc1 L_ao_out")
    k.e("s_waitcnt vmcnt(0)")
    k.e("s_barrier")
    AT.flag_store(k, sPF, AT.FL_AD)
    k.e("s_mov_b32 s2, s3")
    if DIAG:
        k.e("v_mov_b32 v78, v14")
        k.e("v_mov_b32 v79, v15")
    k.e("s_branch L_pj_task")
    k.label("L_ao_out")
    k.e("s_mov_b32 s2, s93")
    if os.environ.get("ATONLY"):
        stamp_flush(k, 2, AT.sWS)
        k.e("s_endpgm")
    if DIAG:
        k.e("v_mov_b32 v60, v14")
        k.e("v_mov_b32 v61, v15")
        k.vst = 60
    k.ldsq, k.vmq = [], []
    k.e("s_mov_b32 s%d, s%d" % (g.sWave, AT.sWave))
    k.e("s_load_dwordx2 s[74:75], s[0:1], %d" % ARG_WO)
    k.e("s_load_dwordx2 s[72:73], s[0:1], %d" % ARG_W2)
    k.e("s_bfe_u32 s64, s93, 0x20001")
    k.e("s_and_b32 s65, s93, 1")
    k.e("s_lshr_b32 s66, s93, 6")
    k.e("s_lshl2_add_u32 s65, s65, s66")
    k.e("s_bfe_u32 s66, s93, 0x30003")
    k.e("s_mul_i32 s67, s65, %d" % (8 * 480 * 1024))
    k.e("s_sub_u32 s68, %d, s67" % (2048 * 7680 * 2))
    k.e("s_add_u32 s67, s67, %d" % WS_AH)
    srd(k, j.sA, AT.sWS, "s67", "s68")
    k.e("s_lshl_b32 s67, s66, 8")
    k.e("s_sub_u32 s68, %d, s67" % (3584 * 2048))
    k.e("s_waitcnt lgkmcnt(0)")
    srd(k, j.sB, 72, "s67", "s68")
    k.e("s_cmp_lg_u32 s%d, 0" % sEarly)
    k.e("s_cbranch_scc1 L_ao_e1")
    AT.spin_flags(k, vHa, vHr)
    early_dma()
    k.label("L_ao_e1")
    k.e("s_barrier")
    k.vmq = []
    for f in dma_list(k, g, j, 1, "dma1")[g.NB:] + dma_list(k, g, j, 2, "dma2"):
        f()
    gemm_setup_reads(k, g, j, sXor)
    srd(k, 16, AT.sWS, AT.WS_FLAGS + AT.FL_ST, 32768)
    k.e("s_cmp_lg_u32 s%d, 0" % sEarly)
    k.e("s_cbranch_scc1 L_ao_e2")
    k.e("s_waitcnt vmcnt(%d)" % (g.NA + g.ND))
    k.label("L_ao_e2")
    k.e("s_waitcnt vmcnt(%d)" % (g.NA + g.ND + 4))
    k.e("s_barrier")

    def sig_done():
        lab = k.newlabel("nofl")
        k.e("s_cmp_lg_u32 s%d, 0" % g.sWave)
        k.e("s_cbranch_scc1 %s" % lab)
        k.e("s_lshl_b32 s%d, s%d, 2" % (sPF, sPF))
        k.e("v_mov_b32 v%d, %d" % (g.vTmp, AT.FL_AD))
        k.e("v_mov_b32 v%d, s%d" % (g.vTmp + 1, AT.sNonce))
        k.e("s_mov_b64 exec, 1")
        k.e("buffer_store_dword v%d, v%d, %s, s%d offen sc1" % (g.vTmp + 1, g.vTmp, sr(sFl, 4), sPF))
        k.e("s_mov_b64 exec, -1")
        k.label(lab)
    stamp(k, 12)
    for f in read_list(k, g, j, 0, 0, 0):
        f()
    vPoll, vPA = g.vTmp + 6, g.vTmp + 7
    slow = []

    def poll_issue():
        k.e("v_bfe_u32 v%d, v0, 3, 1" % vPoll)
        k.e("v_and_b32 v%d, 7, v0" % vPA)
        k.e("v_lshlrev_b32 v%d, 2, v%d" % (vPA, vPA))
        k.e("v_lshl_add_u32 v%d, v%d, 7, v%d" % (vPA, vPoll, vPA))
        k.e("s_lshl_b32 s67, s65, 8")
        k.e("s_lshl_b32 s68, s64, 5")
        k.e("s_add_u32 s67, s67, s68")
        k.e("s_add_u32 s67, s67, %d" % AT.FL_AD)
        k.e("v_add_u32 v%d, s67, v%d" % (vPA, vPA))
        k.vm_op("buffer_load_dword v%d, v%d, %s, 0 offen sc1" % (vPoll, vPA, sr(sFl, 4)), "poll")

    def poll_check_and_switch():
        lab, back = k.newlabel("pslow"), k.newlabel("pback")
        k.e("v_cmp_ne_u32 vcc, s%d, v%d" % (AT.sNonce, vPoll))
        k.e("s_cbranch_vccnz %s" % lab)
        k.label(back)
        slow.append((lab, back))
        k.e("s_mul_i32 s%d, s64, %d" % (j.sAoff, 16 * 4096))
        k.e("s_mul_i32 s%d, s64, %d" % (j.sBoff, 16 * 64 * 2048))
        k.e("s_lshl_b32 s67, s66, 8")
        k.e("s_sub_u32 s68, %d, s67" % (4096 * 2048))
        srd(k, j.sB, 74, "s67", "s68")

    for t in range(3):
        gemm_body(k, g, t, j, j, j, None, "dma", vmwait=g.ND, cinit=(lambda tm, tn: "0") if t == 0 else None,
                  post_barrier=sig_done if t == 0 else None)
    gemm_loop(k, g, j, 0, 6, "oa")
    gemm_body(k, g, 0, j, j, j, None, "dma", vmwait=g.ND)
    gemm_body(k, g, 1, j, j, j, None, "dma", vmwait=g.ND, extra={0: [poll_issue]})
    gemm_body(k, g, 2, j, j, j, None, "dma", vmwait=g.ND, post_barrier=poll_check_and_switch)
    gemm_loop(k, g, j, 0, 15, "ob")
    gemm_tail(k, g, j, 0)
    stamp(k, 13)
    vTk = g.vTmp + 5
    OWN = 128
    k.e("s_load_dwordx2 s[40:41], s[0:1], %d" % ARG_X)
    k.e("s_load_dwordx4 s[44:47], s[0:1], %d" % ARG_B2)
    k.e("s_lshl3_add_u32 s67, s65, s66")
    k.e("s_lshl_b32 s70, s67, 19")
    k.e("s_lshl_b32 s71, s%d, 14" % g.sWave)
    k.e("s_add_u32 s70, s70, s71")
    srd(k, g.sO, AT.sWS, WS_PART, 32 * MB)
    k.e("s_lshl3_add_u32 s67, s67, s%d" % g.sWave)
    k.e("s_lshl_b32 s67, s67, 6")
    k.e("s_lshl_b32 s71, s64, 17")
    k.e("s_add_u32 s71, s71, s70")
    for sp in range(4):
        if sp < 3:
            k.e("s_cmp_lg_u32 s64, %d" % sp)
            k.e("s_cbranch_scc1 L_ao_v%d" % (sp + 1))
        for t4 in range(4):
            if t4 == sp:
                continue
            k.e("s_add_u32 s72, s71, %d" % (t4 * 4096))
            b0 = g.vAcc + 16 * t4
            for i in range(8):
                k.e("v_cvt_pk_bf16_f32 v%d, v%d, v%d" % (b0 + i, b0 + 2 * i, b0 + 2 * i + 1))
            for i in range(2):
                k.e("buffer_store_dwordx4 %s, v%d, %s, s72 offen offset:%d sc1" % (vr(b0 + 4 * i, 4), g.vLane16, sr(g.sO, 4), i * 1024))
        for i in range(16):
            k.e("v_mov_b32 v%d, v%d" % (OWN + i, g.vAcc + 16 * sp + i))
        if sp < 3:
            k.e("s_branch L_ao_v4")
            k.label("L_ao_v%d" % (sp + 1))
    k.label("L_ao_v4")
    vX = g.vTmp
    k.e("v_and_b32 v%d, 31, v0" % vX)
    k.e("v_lshlrev_b32 v%d, 11, v%d" % (vX, vX))
    k.e("v_bfe_u32 v%d, v0, 5, 1" % (vX + 1))
    k.e("v_lshl_add_u32 v%d, v%d, 4, v%d" % (vX, vX + 1, vX))
    k.e("v_lshlrev_b32 v%d, 4, v%d" % (vX + 1, vX + 1))
    k.e("s_lshl_b32 s72, s65, 2")
    k.e("s_add_u32 s72, s72, s%d" % g.sWm)
    k.e("s_lshl_b32 s72, s72, 17")
    k.e("s_lshl1_add_u32 s73, s66, s%d" % g.sWn)
    k.e("s_lshl_b32 s73, s73, 7")
    k.e("v_mov_b32 v%d, s67" % vPA)
    k.e("s_waitcnt lgkmcnt(0)")
    srd(k, 4, 40, 0, 4 * MB)
    srd(k, 8, 44, 0, 2048)
    srd(k, 80, 46, 0, 4 * MB)

    def xb_loads(sq):
        k.e("s_and_b32 s76, s%d, 1" % sq)
        k.e("s_lshl_b32 s76, s76, 6")
        k.e("s_add_u32 s76, s76, s73")
        k.e("s_lshr_b32 s77, s%d, 1" % sq)
        k.e("s_lshl_b32 s77, s77, 16")
        k.e("s_add_u32 s77, s77, s72")
        k.e("s_add_u32 s77, s77, s76")
        for p in range(2):
            k.e("buffer_load_dwordx4 %s, v%d, s[4:7], s77 offen offset:%d" % (vr(28 + 4 * p, 4), vX, p * 32))
            k.e("buffer_load_dwordx4 %s, v%d, s[8:11], s76 offen offset:%d" % (vr(36 + 4 * p, 4), vX + 1, p * 32))

    def finish(b0):
        k.e("s_nop 1")
        for p in range(2):
            for i in range(4):
                k.e("v_permlane16_swap_b32 v%d, v%d" % (b0 + 8 * p + i, b0 + 8 * p + 4 + i))
        T = 44
        for p in range(2):
            b = b0 + 8 * p
            x4, b4 = 28 + 4 * p, 36 + 4 * p
            for i in range(4):
                k.e("v_lshlrev_b32 v%d, 16, v%d" % (T, x4 + i))
                k.e("v_and_b32 v%d, 0xffff0000, v%d" % (T + 1, x4 + i))
                k.e("v_lshlrev_b32 v%d, 16, v%d" % (T + 2, b4 + i))
                k.e("v_and_b32 v%d, 0xffff0000, v%d" % (T + 3, b4 + i))
                k.e("v_pk_add_f32 %s, %s, %s" % (vr(T, 2), vr(T, 2), vr(T + 2, 2)))
                k.e("v_pk_add_f32 %s, %s, %s" % (vr(b + 2 * i, 2), vr(b + 2 * i, 2), vr(T, 2)))
            for i in range(4):
                k.e("v_cvt_pk_bf16_f32 v%d, v%d, v%d" % (48 + 4 * p + i, b + 2 * i, b + 2 * i + 1))
            k.e("buffer_store_dwordx4 %s, v%d, s[80:83], s77 offen offset:%d" % (vr(48 + 4 * p, 4), vX, p * 32))
    k.e("s_waitcnt vmcnt(0)")
    k.e("v_and_b32 v%d, 7, v0" % vPoll)
    k.e("v_lshl_add_u32 v%d, v%d, 2, v%d" % (vPoll, vPoll, vPA))
    k.e("v_mov_b32 v%d, s%d" % (vTk, AT.sNonce))
    k.e("s_lshl_b32 s69, s64, 2")
    k.e("s_mov_b64 exec, 1")
    k.e("buffer_store_dword v%d, v%d, s[16:19], s69 offen sc1" % (vTk, vPA))
    k.e("s_mov_b64 exec, -1")
    xb_loads(64)
    k.e("s_mov_b32 s75, %d" % (3 if FORCE_HELP else 4000))
    k.e("s_waitcnt vmcnt(4)")
    k.label("L_ao_spin")
    k.e("buffer_load_dword v%d, v%d, s[16:19], 0 offen sc1" % (vTk, vPoll))
    k.e("s_waitcnt vmcnt(0)")
    k.e("v_cmp_eq_u32 vcc, s%d, v%d" % (AT.sNonce, vTk))
    k.e("s_and_b32 s69, vcc_lo, 15")
    k.e("s_bfe_u32 s74, vcc_lo, 0x40004")
    k.e("s_cmp_eq_u32 s69, 15")
    k.e("s_cbranch_scc1 L_ao_own")
    k.e("s_cmp_eq_u32 s75, 0")
    k.e("s_cbranch_scc1 L_ao_flush")
    k.e("s_sleep 2")
    k.e("s_sub_u32 s75, s75, 1")
    k.e("s_cmp_lg_u32 s75, 0")
    k.e("s_cbranch_scc1 L_ao_spin")
    k.e("s_lshl_b32 s69, s64, 12")
    k.e("s_add_u32 s69, s69, s71")
    for i in range(8):
        k.e("v_cvt_pk_bf16_f32 v%d, v%d, v%d" % (OWN + 16 + i, OWN + 2 * i, OWN + 2 * i + 1))
    for i in range(2):
        k.e("buffer_store_dwordx4 %s, v%d, %s, s69 offen offset:%d sc1" % (vr(OWN + 16 + 4 * i, 4), g.vLane16, sr(g.sO, 4), i * 1024))
    k.e("s_waitcnt vmcnt(0)")
    k.e("v_mov_b32 v%d, s%d" % (vTk, AT.sNonce))
    k.e("s_lshl_b32 s69, s64, 2")
    k.e("s_mov_b64 exec, 1")
    k.e("buffer_store_dword v%d, v%d, s[16:19], s69 offen offset:16 sc1" % (vTk, vPA))
    k.e("s_mov_b64 exec, -1")
    k.e("s_waitcnt vmcnt(0)")
    k.e("s_branch L_ao_spin")
    k.label("L_ao_own")
    k.e("s_bitset0_b32 s74, s64")
    for i3 in range(1, 4):
        k.e("s_add_u32 s75, s64, %d" % i3)
        k.e("s_and_b32 s75, s75, 3")
        k.e("s_lshl_b32 s75, s75, 17")
        k.e("s_add_u32 s75, s75, s70")
        k.e("s_lshl_b32 s69, s64, 12")
        k.e("s_add_u32 s75, s75, s69")
        for i in range(2):
            k.e("buffer_load_dwordx4 %s, v%d, %s, s75 offen offset:%d sc1" % (vr(64 + 8 * i3 + 4 * i, 4), g.vLane16, sr(g.sO, 4), i * 1024))

    def add_packed(dst, src):
        for i in range(8):
            k.e("v_lshlrev_b32 v100, 16, v%d" % (src + i))
            k.e("v_and_b32 v101, 0xffff0000, v%d" % (src + i))
            k.e("v_pk_add_f32 %s, %s, v[100:101]" % (vr(dst + 2 * i, 2), vr(dst + 2 * i, 2)))
    for i3 in range(1, 4):
        k.e("s_waitcnt vmcnt(%d)" % (2 * (3 - i3)))
        add_packed(OWN, 64 + 8 * i3)
    finish(OWN)
    k.label("L_ao_q")
    k.e("s_cmp_eq_u32 s74, 0")
    k.e("s_cbranch_scc1 L_ao_flush")
    k.e("s_ff1_i32_b32 s75, s74")
    k.e("s_bitset0_b32 s74, s75")
    k.e("s_lshl_b32 s71, s75, 12")
    k.e("s_add_u32 s71, s71, s70")
    for sp in range(4):
        for i in range(2):
            k.e("buffer_load_dwordx4 %s, v%d, %s, s71 offen offset:%d sc1" % (vr(64 + 8 * sp + 4 * i, 4), g.vLane16, sr(g.sO, 4), i * 1024))
        if sp < 3:
            k.e("s_add_u32 s71, s71, 131072")
    xb_loads(75)
    for i in range(16):
        k.e("v_mov_b32 v%d, 0" % (OWN + i))
    k.e("s_waitcnt vmcnt(0)")
    for sp in range(4):
        add_packed(OWN, 64 + 8 * sp)
    finish(OWN)
    k.e("s_branch L_ao_q")
    k.label("L_ao_flush")
    stamp_flush(k, 2, AT.sWS)
    k.label("L_ao_end")
    k.e("s_endpgm")
    for args in slow_blocks:
        AT.emit_slow(k, *args)
    for f in tail_code:
        f()
    for lab, back in slow:
        k.label(lab)
        k.e("s_sleep 2")
        k.e("buffer_load_dword v%d, v%d, %s, 0 offen sc1" % (vPoll, vPA, sr(sFl, 4)))
        k.e("s_waitcnt vmcnt(0)")
        k.e("v_cmp_ne_u32 vcc, s%d, v%d" % (AT.sNonce, vPoll))
        k.e("s_cbranch_vccnz %s" % lab)
        k.e("s_branch %s" % back)
    k.label("L_code_end")
    k.e("s_endpgm")
    return k.text(), 256, 163840
```

```python
class KB:
    def __init__(self):
        self.lines = []
        self.ldsq = []
        self.uid = 0
        self.vmq = []

    def e(self, s):
        self.lines.append("    " + s)

    def c(self, s):
        self.lines.append("    ; " + s)

    def label(self, l):
        self.lines.append(l + ":")

    def newlabel(self, base):
        KB.guid = getattr(KB, "guid", 0) + 1
        return "L_%s_%d" % (base, KB.guid)

    def lds_op(self, text, dst=()):
        self.e(text)
        self.ldsq.append(frozenset(dst))

    def lds_need(self, regs):
        regs = set(regs)
        idx = -1
        for i, d in enumerate(self.ldsq):
            if d & regs:
                idx = i
        if idx < 0:
            return
        n = len(self.ldsq) - idx - 1
        self.e("s_waitcnt lgkmcnt(%d)" % min(n, 15))
        if n > 15:
            self.ldsq = self.ldsq[len(self.ldsq) - 15:]
        else:
            self.ldsq = self.ldsq[idx + 1:]

    def vm_op(self, text, tag=None):
        self.e(text)
        self.vmq.append(tag)

    def vm_count(self, tags):
        idx = -1
        for i, t in enumerate(self.vmq):
            if t in tags:
                idx = i
        if idx < 0:
            return None
        n = len(self.vmq) - idx - 1
        self.vmq = self.vmq[idx + 1:]
        return min(n, 63)

    def vm_need(self, tags):
        n = self.vm_count(tags)
        if n is not None:
            self.e("s_waitcnt vmcnt(%d)" % n)

    def lds_drain(self, extra=""):
        self.e(("s_waitcnt lgkmcnt(0) " + extra).strip())
        self.ldsq = []

    def text(self):
        return "\n".join(self.lines) + "\n"


def vr(b, n):
    if n == 1:
        return "v%d" % b
    return "v[%d:%d]" % (b, b + n - 1)


def sr(b, n):
    if n == 1:
        return "s%d" % b
    return "s[%d:%d]" % (b, b + n - 1)


def rng(b, n):
    return range(b, b + n)


def interleave(k, mains, fillers, per_gap):
    fi = 0
    for i, m in enumerate(mains):
        m()
        n = per_gap[i] if i < len(per_gap) else 0
        for _ in range(n):
            if fi < len(fillers):
                fillers[fi]()
                fi += 1
    while fi < len(fillers):
        fillers[fi]()
        fi += 1


def kernel_header(name):
    return (
        ".globl %s\n.p2align 8\n.type %s,@function\n%s:\n" % (name, name, name)
    )


def kernel_desc(name, vgpr, sgpr=102, accum=None):
    if accum is None:
        accum = (vgpr + 3) // 4 * 4
    return (
        ".amdhsa_kernel %s\n"
        "  .amdhsa_next_free_vgpr %d\n"
        "  .amdhsa_next_free_sgpr %d\n"
        "  .amdhsa_accum_offset %d\n"
        "  .amdhsa_group_segment_fixed_size 0\n"
        "  .amdhsa_kernarg_size 112\n"
        "  .amdhsa_user_sgpr_count 2\n"
        "  .amdhsa_user_sgpr_kernarg_segment_ptr 1\n"
        "  .amdhsa_system_sgpr_workgroup_id_x 1\n"
        ".end_amdhsa_kernel\n" % (name, vgpr, sgpr, accum)
    )


import os
DIAG = bool(os.environ.get("DIAG"))
DIAG_BASE = 200 * (1 << 20)


def stamp(k, idx, rt=False, force=False):
    if not DIAG:
        return
    if os.environ.get("PJT") and 2 <= idx <= 13 and not force:
        return
    k.e("%s vcc" % ("s_memrealtime" if rt else "s_memtime"))
    k.e("s_waitcnt lgkmcnt(0)")
    k.e("v_writelane_b32 v%d, vcc_lo, %d" % (k.vst, idx))
    k.e("v_writelane_b32 v%d, vcc_hi, %d" % (k.vst + 1, idx))
    k.ldsq = []


def stamp_rt(k, idx):
    stamp(k, idx, True)


def stamp_flush(k, kid, sws, n=16):
    if not DIAG:
        return
    lab = k.newlabel("nost")
    k.e("s_waitcnt vmcnt(0)")
    stamp(k, n - 2)
    stamp_rt(k, n - 1)
    k.e("v_cmp_gt_u32 vcc, 64, v0")
    k.e("s_cbranch_vccz %s" % lab)
    k.e("s_lshl_b32 s6, s2, 7")
    k.e("s_add_u32 s6, s6, %d" % (DIAG_BASE + kid * 65536))
    k.e("s_add_u32 s4, s%d, s6" % sws)
    k.e("s_addc_u32 s5, s%d, 0" % (sws + 1))
    k.e("s_mov_b32 s6, 128")
    k.e("s_mov_b32 s7, 0x00020000")
    k.e("v_lshlrev_b32 v1, 3, v0")
    k.e("buffer_store_dwordx2 v[%d:%d], v1, s[4:7], 0 offen" % (k.vst, k.vst + 1))
    k.label(lab)
```

```python
import struct
from asmlib import *

MB = 1 << 20
WS_Q = 4 * MB
WS_K = 20 * MB
WS_VT = 36 * MB
WS_AH = 52 * MB
ARG_WS = 104
STF = os.environ.get("STFLAGS", "sc1")


def f32bits(x):
    return struct.unpack("<I", struct.pack("<f", x))[0]


vL16 = 1
vKA = 2
vVA = 3
vL0, vL1 = 4, 5
vMax = 6
vT0 = 7
vThr = 8
vNeg = 9
vD = 10
vT1 = 11
vT2 = 12
vT3 = 13
vQ = 16
vKf = 48
vVf = 80
vS = [112, 128]
vNm = 144
vP = 160
vE = 168
vLa, vLb = 174, 175
vO = 176
NV = 248
sK, sV, sO, sQ = 4, 8, 12, 16
sJ, sJL, sKoff, sVoff, sWave, sG, sWq = 20, 21, 22, 23, 24, 25, 26
sM0K, sM0V = 27, 29
sT, sPhase, sHead, sPi = 31, 32, 33, 34
sA, sB = 35, 36
sPar = 37
sMask = 40
sWS = 48
THRESH = 2.0 ** 24
XCH = 131072


def srd(k, d, base, off, nbytes):
    k.e("s_add_u32 s%d, s%d, %s" % (d, base, off))
    k.e("s_addc_u32 s%d, s%d, 0" % (d + 1, base + 1))
    k.e("s_mov_b32 s%d, %s" % (d + 2, nbytes))
    k.e("s_mov_b32 s%d, 0x00020000" % (d + 3))


def kread(k, slot, n):
    out = []
    if "nolds" in os.environ.get("XP", ""):
        return [lambda: None] * 8
    for C in range(8):
        def f(C=C):
            d = vKf + 4 * C
            k.lds_op("ds_read_b128 %s, v%d offset:%d" % (vr(d, 4), vKA, slot * 32768 + n * 8192 + C * 1024), rng(d, 4))
        out.append(f)
    return out


def vread(k, slot, n):
    out = []
    if "nolds" in os.environ.get("XP", ""):
        return [lambda: None] * 8
    for jj in range(2):
        for R in range(4):
            def f(R=R, jj=jj):
                d = vVf + 4 * (jj * 4 + R)
                k.lds_op("ds_read_b128 %s, v%d offset:%d" % (vr(d, 4), vVA, slot * 32768 + n * 8192 + R * 2048 + jj * 1024), rng(d, 4))
            out.append(f)
    return out


def qk(k, sb, zero_c=False):
    out = []
    for C in range(8):
        def f(C=C):
            a = vKf + 4 * C
            k.lds_need(rng(a, 4))
            if C == 0:
                c = "0" if zero_c else vr(vNm, 16)
            else:
                c = vr(vS[sb], 16)
            k.e("v_mfma_f32_32x32x16_bf16 %s, %s, %s, %s" % (vr(vS[sb], 16), vr(a, 4), vr(vQ + 4 * C, 4), c))
        out.append(f)
    return out


def pv(k):
    out = []
    for jj in range(2):
        for R in range(4):
            def f(R=R, jj=jj):
                a = vVf + 4 * (jj * 4 + R)
                k.lds_need(rng(a, 4))
                o = vO + 16 * R
                k.e("v_mfma_f32_32x32x16_bf16 %s, %s, %s, %s" % (vr(o, 16), vr(a, 4), vr(vP + 4 * jj, 4), vr(o, 16)))
            out.append(f)
    return out


XP = os.environ.get("XP", "")


def exp_half(k, sb, h):
    if "noexp" in XP:
        return [lambda: k.e("v_mov_b32 v%d, 0" % (vLa if h == 0 else vLb))] * 9
    S = vS[sb] + 8 * h
    L = vLa if h == 0 else vLb
    out = []
    E = lambda s: (lambda: k.e(s))
    for i in range(4):
        e0, e1 = vE + 2 * (i % 3), vE + 2 * (i % 3) + 1
        out.append(E("v_exp_f32 v%d, v%d" % (e0, S + 2 * i)))
        out.append(E("v_exp_f32 v%d, v%d" % (e1, S + 2 * i + 1)))
        if i > 0:
            p0, p1 = vE + 2 * ((i - 1) % 3), vE + 2 * ((i - 1) % 3) + 1
            out.append(E("v_cvt_pk_bf16_f32 v%d, v%d, v%d" % (vP + 4 * h + i - 1, p0, p1)))
            if i == 1:
                out.append(E("v_add_f32 v%d, v%d, v%d" % (L, p0, p1)))
            else:
                out.append(E("v_add_f32 v%d, v%d, v%d" % (L, L, p0)))
                out.append(E("v_add_f32 v%d, v%d, v%d" % (L, L, p1)))
    p0, p1 = vE + 0, vE + 1
    out.append(E("s_nop 0"))
    out.append(E("v_cvt_pk_bf16_f32 v%d, v%d, v%d" % (vP + 4 * h + 3, p0, p1)))
    out.append(E("v_add_f32 v%d, v%d, v%d" % (L, L, p0)))
    out.append(E("v_add_f32 v%d, v%d, v%d" % (L, L, p1)))
    return out


def max_code(k, sb):
    S = vS[sb]
    k.e("v_max3_f32 v%d, v%d, v%d, v%d" % (vMax, S, S + 1, S + 2))
    k.e("v_max3_f32 v%d, v%d, v%d, v%d" % (vT0, S + 3, S + 4, S + 5))
    for i in range(6, 14, 4):
        k.e("v_max3_f32 v%d, v%d, v%d, v%d" % (vMax, vMax, S + i, S + i + 1))
        k.e("v_max3_f32 v%d, v%d, v%d, v%d" % (vT0, vT0, S + i + 2, S + i + 3))
    k.e("v_max3_f32 v%d, v%d, v%d, v%d" % (vMax, vMax, S + 14, S + 15))
    k.e("v_max_f32 v%d, v%d, v%d" % (vMax, vMax, vT0))
    k.e("v_mov_b32 v%d, v%d" % (vT0, vMax))
    k.e("s_nop 1")
    k.e("v_permlane32_swap_b32 v%d, v%d" % (vT0, vMax))
    k.e("v_max_f32 v%d, v%d, v%d" % (vMax, vMax, vT0))


def mask_code(k, sb, n):
    S = vS[sb]
    for r0 in range(0, 16, 4):
        for i in range(4):
            r = r0 + i
            c = 16 * (r >> 3) + (r & 7) + 32 * n
            k.e("v_cmp_le_i32 %s, %d, v%d" % (sr(sMask + 2 * i, 2), c, vThr))
        for i in range(4):
            r = r0 + i
            k.e("v_cndmask_b32 v%d, v%d, v%d, %s" % (S + r, vNeg, S + r, sr(sMask + 2 * i, 2)))


def dma_k(k, slot):
    out = []
    for j in range(4):
        def f(j=j):
            if j == 0:
                k.e("s_mov_b32 m0, s%d" % (sM0K + slot))
                k.e("s_nop 0")
            k.e("buffer_load_dwordx4 v%d, %s, s%d offen offset:%d lds" % (vD, sr(sK, 4), sKoff, 1024 * j))
            if j == 3:
                k.e("s_add_u32 s%d, s%d, 32768" % (sKoff, sKoff))
        out.append(f)
    return out


def dma_v(k, slot):
    out = []
    for j in range(4):
        def f(j=j):
            if j == 0:
                k.e("s_mov_b32 m0, s%d" % (sM0V + slot))
                k.e("s_nop 0")
            k.e("buffer_load_dwordx4 v%d, %s, s%d offen offset:%d lds" % (vD, sr(sV, 4), sVoff, 1024 * j))
            if j == 3:
                k.e("s_add_u32 s%d, s%d, 32768" % (sVoff, sVoff))
        out.append(f)
    return out


def q_loads(k, sqb):
    k.e("s_lshl2_add_u32 s%d, s%d, s%d" % (sA, sqb, sWq))
    k.e("s_lshl_b32 s%d, s%d, 13" % (sA, sA))
    k.e("s_add_u32 s%d, s%d, 4096" % (sB, sA))
    for C in range(8):
        k.e("buffer_load_dwordx4 %s, v%d, %s, s%d offen offset:%d" % (vr(vQ + 4 * C, 4), vL16, sr(sQ, 4), sA if C < 4 else sB, (C & 3) * 1024))


def check(k, sb, h, other_valid, nredo, slow_blocks):
    lab = k.newlabel("slow")
    back = k.newlabel("back")
    L = vLa if h == 0 else vLb
    if "nochk" not in XP:
        k.e("s_cbranch_vccnz %s" % lab)
    k.label(back)
    k.e("v_add_f32 v%d, v%d, v%d" % (vL0, vL0, L))
    slow_blocks.append((lab, back, sb, h, other_valid, nredo))


def emit_slow(k, lab, back, sb, h, other_valid, nredo):
    S = vS[sb]
    So = vS[sb ^ 1]
    k.label(lab)
    k.e("s_nop 15")
    max_code(k, sb)
    k.e("v_max_f32 v%d, 0, v%d" % (vMax, vMax))
    k.e("v_sub_f32 v%d, 0, v%d" % (vT0, vMax))
    k.e("v_exp_f32 v%d, v%d" % (vT0, vT0))
    for r in range(16):
        k.e("v_sub_f32 v%d, v%d, v%d" % (S + r, S + r, vMax))
    if other_valid:
        for r in range(16):
            k.e("v_sub_f32 v%d, v%d, v%d" % (So + r, So + r, vMax))
    for r in range(16):
        k.e("v_sub_f32 v%d, v%d, v%d" % (vNm + r, vNm + r, vMax))
    k.e("v_mul_f32 v%d, v%d, v%d" % (vL0, vL0, vT0))
    for r in range(64):
        k.e("v_mul_f32 v%d, v%d, v%d" % (vO + r, vO + r, vT0))
    for f in exp_half(k, sb, h):
        f()
    if h == 0:
        for f in exp_half(k, sb, 1)[:nredo]:
            f()
    k.e("s_nop 1")
    k.e("s_branch %s" % back)


def spread(n_items, n_gaps, start=0):
    per = [0] * n_gaps
    m = n_gaps - start
    for i in range(n_items):
        per[start + (i * m) // n_items] += 1
    return per


def merge_fillers(lists_and_plans, n_gaps):
    flat, per = [], []
    idx = [0] * len(lists_and_plans)
    for gph in range(n_gaps):
        cnt = 0
        for li, (lst, plan) in enumerate(lists_and_plans):
            for _ in range(plan[gph]):
                if idx[li] < len(lst):
                    flat.append(lst[idx[li]])
                    idx[li] += 1
                    cnt += 1
        per.append(cnt)
    for li, (lst, plan) in enumerate(lists_and_plans):
        assert idx[li] == len(lst), (li, idx[li], len(lst))
    return flat, per


NB1 = int(os.environ.get("AT_NB1", "8"))


def half_step(k, p, n, last, slow_blocks, dma=None, post_qk=None):
    cur = n
    nxt = cur ^ 1
    do_qk = not (last and n == 1)
    e0 = exp_half(k, cur, 0)
    e1 = exp_half(k, cur, 1)
    cmp0 = lambda: k.e("v_cmp_nge_f32 vcc, s%d, v%d" % (sT, vLa))
    cmp1 = lambda: k.e("v_cmp_nge_f32 vcc, s%d, v%d" % (sT, vLb))
    ea = e0 + [cmp0] + e1[:NB1]
    eb = e1[NB1:] + [cmp1]
    lists = [(vread(k, p, n), [2, 2, 2, 2, 0, 0, 0, 0]), (ea, spread(len(ea), 8))]
    if dma:
        lists.append((dma, spread(len(dma), 7, 1) + [0]))
    fl, per = merge_fillers(lists, 8)
    if do_qk:
        interleave(k, qk(k, nxt), fl, per)
    else:
        for f in fl:
            f()
    if post_qk:
        post_qk()
    check(k, cur, 0, do_qk, NB1, slow_blocks)
    k.e("s_nop 0")
    pvl = pv(k)
    kr = kread(k, p ^ 1, n) if not last else []
    lists = [(eb, spread(len(eb), 3) + [0])]
    if kr:
        lists.append((kr[:4], [0, 1, 1, 2]))
    fl, per = merge_fillers(lists, 4)
    interleave(k, pvl[:4], fl, per)
    check(k, cur, 1, do_qk, 0, slow_blocks)
    k.e("s_nop 0")
    tail = list(kr[4:])
    if do_qk:
        if last:
            tail.append(lambda: mask_code(k, nxt, 1))
        elif n == 1:
            nomask = k.newlabel("nomask")

            def maybe_mask():
                k.e("s_add_u32 s%d, s%d, 1" % (sA, sJ))
                k.e("s_cmp_lg_u32 s%d, s%d" % (sA, sJL))
                k.e("s_cbranch_scc1 %s" % nomask)
                mask_code(k, nxt, 0)
                k.label(nomask)
            tail.append(maybe_mask)
    interleave(k, pvl[4:], tail, [2, 2, 1, 0])


def interval(k, p, last, slow_blocks):
    k.c("==== interval parity %d last=%s" % (p, last))
    if not last:
        skipk = k.newlabel("skipk")
        dk = dma_k(k, p)
        dv = dma_v(k, p ^ 1)

        def dk_all():
            k.e("s_add_u32 s%d, s%d, 2" % (sA, sJ))
            k.e("s_cmp_gt_u32 s%d, s%d" % (sA, sJL))
            k.e("s_cbranch_scc1 %s" % skipk)
            for f in dk:
                f()
            k.label(skipk)
        half_step(k, p, 0, False, slow_blocks, dma=None if "nodma" in XP else dv + [dk_all])
        half_step(k, p, 1, False, slow_blocks)
        k.lds_drain("vmcnt(0)")
        if "nobar" not in XP:
            k.e("s_barrier")
        if p == 0:
            pend_signal(k)
    else:
        nonext = k.newlabel("nonext")
        noq = k.newlabel("noq")

        def next_loads():
            k.e("s_cmp_lg_u32 s%d, 0" % sPhase)
            k.e("s_cbranch_scc1 %s" % nonext)
            k.e("s_mov_b32 s%d, 0" % sKoff)
            k.e("s_mov_b32 s%d, 0" % sVoff)
            for f in dma_k(k, p ^ 1) + dma_v(k, p ^ 1):
                f()
            k.label(nonext)

        def next_q():
            k.e("s_cmp_lg_u32 s%d, 0" % sPhase)
            k.e("s_cbranch_scc1 %s" % noq)
            k.e("s_lshl_b32 s%d, s%d, 13" % (sA, sWq))
            k.e("s_add_u32 s%d, s%d, %d" % (sA, sA, XCH))
            k.e("v_add_u32 v%d, s%d, v%d" % (vChk, sA, vL16))
            for C in range(8):
                k.e("ds_read_b128 %s, v%d offset:%d" % (vr(vQ + 4 * C, 4), vChk, C * 1024))
            lq = k.newlabel("noq2")
            k.e("s_branch %s" % lq)
            k.label(noq)
            if "early" in HOOK:
                k.e("s_mov_b64 %s, vcc" % sr(sMask, 2))
                HOOK["early"](p ^ 1)
                k.e("s_mov_b64 vcc, %s" % sr(sMask, 2))
            k.label(lq)
        half_step(k, p, 0, True, slow_blocks, dma=[next_loads], post_qk=next_q)
        k.lds_drain()
        k.e("s_barrier")
        half_step(k, p, 1, True, slow_blocks)
        k.e("s_mov_b32 s%d, %d" % (sPar, p ^ 1))


sPend = 39


def pend_signal(k):
    lab = k.newlabel("nopend")
    k.e("s_cmp_eq_u32 s%d, 0" % sPend)
    k.e("s_cbranch_scc1 %s" % lab)
    k.e("s_lshr_b32 s%d, s%d, 2" % (sA, sPend))
    flag_store(k, sA, 0)
    k.e("s_mov_b32 s%d, 0" % sPend)
    k.label(lab)


def first_subtile(k, p, vmn=0):
    for f in kread(k, p, 0):
        f()
    for f in qk(k, 0, zero_c=True):
        f()
    for f in kread(k, p, 1):
        f()
    k.e("s_nop 7")
    lab = k.newlabel("nomask0")
    k.e("s_cmp_lg_u32 s%d, 0" % sJL)
    k.e("s_cbranch_scc1 %s" % lab)
    mask_code(k, 0, 0)
    k.label(lab)
    max_code(k, 0)
    for r in range(16):
        k.e("v_sub_f32 v%d, v%d, v%d" % (vS[0] + r, vS[0] + r, vMax))
    for r in range(16):
        k.e("v_sub_f32 v%d, 0, v%d" % (vNm + r, vMax))
    k.lds_drain("vmcnt(%d)" % vmn)
    k.e("s_barrier")
    l1, l2 = k.newlabel("ph1"), k.newlabel("ph2")
    k.e("s_cmp_lg_u32 s%d, 0" % sPhase)
    k.e("s_cbranch_scc1 %s" % l1)
    flag_store(k, sTask, FL_AS)
    k.e("s_branch %s" % l2)
    k.label(l1)
    k.e("s_sub_u32 s%d, 15, s%d" % (sA, sPi))
    k.e("s_lshl_b32 s%d, s%d, 5" % (sA, sA))
    k.e("s_add_u32 s%d, s%d, s%d" % (sA, sA, sHead))

    def chk_load():
        k.e("s_movk_i32 s%d, %d" % (sB, FL_AS))
        k.e("buffer_load_dwordx4 %s, v%d, %s, s%d offen sc1" % (vr(vChk, 4), vL16, sr(sFl, 4), sB))
    flag_store(k, sA, FL_AD, also=chk_load)
    if "hpoll" in HOOK:
        HOOK["hpoll"]()
    k.label(l2)


sTask = 38
sFl = 52
WS_FLAGS = 83 * MB
FL_LN, FL_PS, FL_KV, FL_QH, FL_AS, FL_AD, FL_ST = 1024, 2048, 3072, 4096, 5120, 6144, 8192
sNonce = 95
CHKW = 163840 - 64
vChk = 240
vPf, vDum = 246, 247
sKV = 56
sPfOff = 60


PFA = int(os.environ.get("PFA", "1"))


def pf_kv(k):
    lab = k.newlabel("nopf")
    k.e("s_cmp_ge_u32 s%d, %d" % (sPfOff, 16 * 32768))
    k.e("s_cselect_b32 s%d, %d, s%d" % (sA, 15 * 32768, sPfOff))
    k.e("buffer_load_dword v%d, v%d, %s, s%d offen" % (vDum, vPf, sr(sKV, 4), sA))
    k.e("s_add_u32 s%d, s%d, 32768" % (sPfOff, sPfOff))


def flag_store(k, soff_reg, imm, also=None):
    lab = k.newlabel("nofl")
    k.e("s_cmp_lg_u32 s%d, 0" % sWave)
    k.e("s_cbranch_scc1 %s" % lab)
    k.e("s_lshl_b32 s%d, s%d, 2" % (sB, soff_reg))
    k.e("v_mov_b32 v%d, %d" % (vT2, imm))
    k.e("v_mov_b32 v%d, s%d" % (vT3, sNonce))
    k.e("s_mov_b64 exec, 1")
    k.e("buffer_store_dword v%d, v%d, %s, s%d offen sc1" % (vT3, vT2, sr(sFl, 4), sB))
    k.e("s_mov_b64 exec, -1")
    if also:
        also()
    k.label(lab)


def attn_setup(k):
    k.e("s_and_b32 s%d, s%d, 7" % (sA, sTask))
    k.e("s_bfe_u32 s%d, s%d, 0x20003" % (sB, sTask))
    k.e("s_lshl2_add_u32 s%d, s%d, s%d" % (sHead, sA, sB))
    k.e("s_lshr_b32 s%d, s%d, 5" % (sPi, sTask))
    k.e("v_lshrrev_b32 v%d, 6, v0" % vT0)
    k.e("v_and_b32 v%d, 63, v0" % vT1)
    k.e("v_readfirstlane_b32 s%d, v%d" % (sWave, vT0))
    k.e("v_lshlrev_b32 v%d, 4, v%d" % (vL16, vT1))
    k.e("s_nop 1")
    k.e("s_lshr_b32 s%d, s%d, 2" % (sG, sWave))
    k.e("s_and_b32 s%d, s%d, 3" % (sWq, sWave))
    k.e("s_lshl_b32 s%d, s%d, 12" % (sA, sWave))
    k.e("s_mov_b32 s%d, s%d" % (sM0K, sA))
    k.e("s_add_u32 s%d, s%d, 32768" % (sM0K + 1, sA))
    k.e("s_add_u32 s%d, s%d, 65536" % (sM0V, sA))
    k.e("s_add_u32 s%d, s%d, 98304" % (sM0V + 1, sA))
    k.e("v_add_u32 v%d, s%d, v%d" % (vD, sA, vL16))
    k.e("s_sub_u32 s%d, 15, s%d" % (sJL, sPi))
    k.e("s_mov_b32 s%d, 0" % sKoff)
    k.e("s_mov_b32 s%d, 0" % sVoff)
    k.e("s_lshl_b32 s%d, s%d, 19" % (sA, sHead))
    k.e("s_add_u32 s%d, s%d, %d" % (sB, sA, WS_K))
    srd(k, sK, sWS, "s%d" % sB, 512 * 1024)
    k.e("s_add_u32 s%d, s%d, %d" % (sB, sA, WS_Q))
    srd(k, sQ, sWS, "s%d" % sB, 512 * 1024)
    k.e("s_add_u32 s%d, s%d, %d" % (sB, sA, WS_VT))
    srd(k, sV, sWS, "s%d" % sB, 512 * 1024)
    srd(k, sFl, sWS, WS_FLAGS, 65536)


def attn_setup2(k):
    srd(k, sO, sWS, WS_AH, 2048 * 7680 * 2)
    k.e("s_mov_b32 s%d, 0x%08x" % (sT, f32bits(THRESH)))
    k.e("v_mov_b32 v%d, 0x%08x" % (vNeg, f32bits(-1e30)))
    k.e("v_and_b32 v%d, 63, v0" % vT1)
    k.e("v_and_b32 v%d, 0x33, v%d" % (vT0, vT1))
    k.e("v_bfe_u32 v%d, v%d, 2, 1" % (vT2, vT1))
    k.e("v_lshl_or_b32 v%d, v%d, 3, v%d" % (vT0, vT2, vT0))
    k.e("v_bfe_u32 v%d, v%d, 3, 1" % (vT2, vT1))
    k.e("v_lshl_or_b32 v%d, v%d, 2, v%d" % (vT0, vT2, vT0))
    k.e("s_lshl_b32 s%d, s%d, 14" % (sA, sG))
    k.e("v_lshl_add_u32 v%d, v%d, 4, s%d" % (vKA, vT0, sA))
    k.e("s_add_u32 s%d, s%d, 65536" % (sB, sA))
    k.e("v_add_u32 v%d, s%d, v%d" % (vVA, sB, vL16))
    k.e("v_and_b32 v%d, 31, v%d" % (vT0, vT1))
    k.e("v_lshrrev_b32 v%d, 5, v%d" % (vT2, vT1))
    k.e("v_lshlrev_b32 v%d, 3, v%d" % (vT2, vT2))
    k.e("v_sub_u32 v%d, v%d, v%d" % (vT0, vT0, vT2))
    k.e("s_lshl_b32 s%d, s%d, 5" % (sA, sWq))
    k.e("s_lshl_b32 s%d, s%d, 6" % (sB, sG))
    k.e("s_sub_u32 s%d, s%d, s%d" % (sA, sA, sB))
    k.e("v_add_u32 v%d, s%d, v%d" % (vThr, sA, vT0))
    k.e("s_mov_b32 s%d, 0" % sPhase)
    k.e("s_mov_b32 s%d, 0" % sPar)


def kv_flag_addr(k, vd, vt, stask, s1, s2_):
    k.e("s_and_b32 s%d, s%d, 7" % (s1, stask))
    k.e("s_bfe_u32 s%d, s%d, 0x20003" % (s2_, stask))
    k.e("s_lshl2_add_u32 s%d, s%d, s%d" % (s1, s1, s2_))
    k.e("s_lshr_b32 s%d, s%d, 1" % (s1, s1))
    k.e("s_lshl_b32 s%d, s%d, 5" % (s1, s1))
    k.e("s_add_u32 s%d, s%d, %d" % (s1, s1, FL_KV))
    k.e("v_and_b32 v%d, 7, v0" % vd)
    k.e("v_lshlrev_b32 v%d, 2, v%d" % (vd, vd))
    k.e("v_bfe_u32 v%d, v0, 3, 1" % vt)
    k.e("v_lshl_add_u32 v%d, v%d, 9, v%d" % (vd, vt, vd))
    k.e("v_add_u32 v%d, s%d, v%d" % (vd, s1, vd))


def q_flag_addr(k, vd, sqb):
    k.e("s_lshr_b32 s%d, s%d, 1" % (sA, sHead))
    k.e("s_lshl_b32 s%d, s%d, 5" % (sA, sA))
    k.e("s_add_u32 s%d, s%d, %d" % (sA, sA, FL_QH))
    k.e("s_lshr_b32 s%d, s%d, 1" % (sB, sqb))
    k.e("s_lshl2_add_u32 s%d, s%d, s%d" % (sB, sB, sA))
    k.e("v_mov_b32 v%d, s%d" % (vd, sB))


def spin_flags(k, vaddr, vres, first_loaded=False):
    l0, l1, l2 = k.newlabel("spn"), k.newlabel("spnok"), k.newlabel("spnc")
    if first_loaded:
        k.e("s_branch %s" % l2)
    k.label(l0)
    k.e("buffer_load_dword v%d, v%d, %s, 0 offen sc1" % (vres, vaddr, sr(sFl, 4)))
    k.e("s_waitcnt vmcnt(0)")
    k.label(l2)
    k.e("v_cmp_ne_u32 vcc, s%d, v%d" % (sNonce, vres))
    k.e("s_cbranch_vccz %s" % l1)
    k.e("s_sleep 8")
    k.e("s_branch %s" % l0)
    k.label(l1)


def spin_wg(k, vaddr, vres, swave):
    l0, l1 = k.newlabel("spw"), k.newlabel("spwok")
    k.e("s_cmp_lg_u32 s%d, 0" % swave)
    k.e("s_cbranch_scc1 %s" % l1)
    k.label(l0)
    k.e("buffer_load_dword v%d, v%d, %s, 0 offen sc1" % (vres, vaddr, sr(sFl, 4)))
    k.e("s_waitcnt vmcnt(0)")
    k.e("v_cmp_ne_u32 vcc, s%d, v%d" % (sNonce, vres))
    k.e("s_cbranch_vccz %s" % l1)
    k.e("s_sleep %d" % int(os.environ.get("SLP", "6")))
    k.e("s_branch %s" % l0)
    k.label(l1)
    k.e("s_barrier")


HOOK = {}


def emit_attn(k, slow_blocks):
    k.label("L_at_qblock")
    k.e("s_mov_b32 s%d, 0" % sJ)
    for r in range(64):
        k.e("v_mov_b32 v%d, 0" % (vO + r))
    k.e("v_mov_b32 v%d, 0" % vL0)
    k.e("s_waitcnt vmcnt(8)")
    k.e("s_barrier")
    k.e("s_cmp_lg_u32 s%d, 0" % sPar)
    k.e("s_cbranch_scc1 L_at_first1")
    first_subtile(k, 0)
    if DIAG:
        k.e("s_cmp_lg_u32 s%d, 0" % sPhase)
        k.e("s_cbranch_scc1 L_at_st5")
        stamp(k, 8)
        k.e("s_branch L_at_loop")
        k.label("L_at_st5")
        stamp(k, 10)
    AL = os.environ.get("AT_AL")
    if AL is not None:
        k.lines.append(".p2align 6")
        for _ in range(int(AL)):
            k.e("s_nop 0")
    k.label("L_at_loop")
    k.e("s_cmp_eq_u32 s%d, s%d" % (sJ, sJL))
    k.e("s_cbranch_scc1 L_at_last0")
    interval(k, 0, False, slow_blocks)
    k.e("s_add_u32 s%d, s%d, 1" % (sJ, sJ))
    k.label("L_at_loop1")
    k.e("s_cmp_eq_u32 s%d, s%d" % (sJ, sJL))
    k.e("s_cbranch_scc1 L_at_last1")
    interval(k, 1, False, slow_blocks)
    k.e("s_add_u32 s%d, s%d, 1" % (sJ, sJ))
    k.e("s_branch L_at_loop")
    k.label("L_at_fast")
    k.ldsq = []
    k.e("s_mov_b32 s%d, 0" % sJ)
    for r in range(64):
        k.e("v_mov_b32 v%d, 0" % (vO + r))
    k.e("v_mov_b32 v%d, 0" % vL0)
    k.e("s_waitcnt lgkmcnt(0)")
    first_subtile(k, 0, 16)
    stamp(k, 8)
    k.e("s_branch L_at_loop")
    k.label("L_at_first1")
    k.ldsq = []
    first_subtile(k, 1)
    stamp(k, 10)
    k.e("s_branch L_at_loop1")
    k.label("L_at_last0")
    k.ldsq = []
    interval(k, 0, True, slow_blocks)
    k.e("s_branch L_at_fin")
    k.label("L_at_last1")
    k.ldsq = []
    interval(k, 1, True, slow_blocks)
    k.label("L_at_fin")
    k.ldsq = []
    if DIAG:
        k.e("s_cmp_lg_u32 s%d, 0" % sPhase)
        k.e("s_cbranch_scc1 L_at_st2")
        stamp(k, 9)
        k.e("s_branch L_at_st3")
        k.label("L_at_st2")
        stamp(k, 11)
        k.label("L_at_st3")
    k.e("v_mov_b32 v%d, v%d" % (vT0, vL0))
    k.e("s_nop 1")
    k.e("v_permlane32_swap_b32 v%d, v%d" % (vT0, vL0))
    k.e("v_add_f32 v%d, v%d, v%d" % (vL1, vL0, vT0))
    k.e("v_sub_f32 v%d, 0, v%d" % (vL0, vNm))
    k.e("s_xor_b32 s%d, s%d, 1" % (sA, sPar))
    k.e("s_lshl_b32 s%d, s%d, 15" % (sA, sA))
    k.e("s_add_u32 s%d, s%d, 65536" % (sB, sA))
    k.e("s_cmp_eq_u32 s%d, 0" % sG)
    k.e("s_cselect_b32 s%d, s%d, %d" % (sMask, sA, XCH))
    k.e("s_cselect_b32 s%d, %d, s%d" % (sMask + 1, XCH, sA))
    k.e("s_lshl_b32 s%d, s%d, 13" % (sA, sWq))
    k.e("s_add_u32 s%d, s%d, s%d" % (sMask, sMask, sA))
    k.e("s_add_u32 s%d, s%d, s%d" % (sMask + 1, sMask + 1, sA))
    k.e("v_add_u32 v%d, s%d, v%d" % (vT1, sMask, vL16))
    k.e("v_add_u32 v%d, s%d, v%d" % (vT3, sMask + 1, vL16))
    k.e("s_lshl_b32 s%d, s%d, 9" % (sA, sWave))
    k.e("s_add_u32 s%d, s%d, s%d" % (sA, sA, sB))
    k.e("v_lshrrev_b32 v%d, 1, v%d" % (vT2, vL16))
    k.e("v_add_u32 v%d, s%d, v%d" % (vT2, sA, vT2))
    k.e("s_cmp_eq_u32 s%d, 0" % sG)
    k.e("s_cbranch_scc1 L_at_send23")
    for i in range(8):
        k.e("ds_write_b128 v%d, %s offset:%d" % (vT1, vr(vO + 4 * i, 4), i * 1024))
    k.e("s_waitcnt lgkmcnt(0)")
    for i in range(32):
        k.e("v_mov_b32 v%d, v%d" % (vO + i, vO + 32 + i))
    k.e("s_branch L_at_sent")
    k.label("L_at_send23")
    for i in range(8):
        k.e("ds_write_b128 v%d, %s offset:%d" % (vT1, vr(vO + 32 + 4 * i, 4), i * 1024))
    k.label("L_at_sent")
    lab = k.newlabel("nochk")
    k.e("s_cmp_eq_u32 s%d, 0" % sPhase)
    k.e("s_cbranch_scc1 %s" % lab)
    k.e("s_cmp_lg_u32 s%d, 0" % sWave)
    k.e("s_cbranch_scc1 %s" % lab)
    k.e("s_waitcnt vmcnt(0)")
    for i in range(4):
        k.e("v_xor_b32 v%d, s%d, v%d" % (vChk + i, sNonce, vChk + i))
    k.e("v_or3_b32 v%d, v%d, v%d, v%d" % (vChk + 4, vChk, vChk + 1, vChk + 2))
    k.e("v_or_b32 v%d, v%d, v%d" % (vChk + 4, vChk + 4, vChk + 3))
    k.e("v_cmp_ne_u32 vcc, 0, v%d" % (vChk + 4))
    k.e("s_ff1_i32_b64 s%d, vcc" % sMask)
    k.e("v_cmp_ne_u32 vcc, 0, v%d" % (vChk + 2))
    k.e("s_nop 1")
    k.e("v_cndmask_b32 v%d, 3, 2, vcc" % (vChk + 4))
    k.e("v_cmp_ne_u32 vcc, 0, v%d" % (vChk + 1))
    k.e("s_nop 1")
    k.e("v_cndmask_b32 v%d, v%d, 1, vcc" % (vChk + 4, vChk + 4))
    k.e("v_cmp_ne_u32 vcc, 0, v%d" % vChk)
    k.e("s_nop 1")
    k.e("v_cndmask_b32 v%d, v%d, 0, vcc" % (vChk + 4, vChk + 4))
    k.e("s_nop 1")
    k.e("v_readlane_b32 s%d, v%d, s%d" % (sMask + 1, vChk + 4, sMask))
    k.e("s_nop 3")
    k.e("s_lshl2_add_u32 s%d, s%d, s%d" % (sMask + 1, sMask, sMask + 1))
    k.e("s_cmp_lt_i32 s%d, 0" % sMask)
    k.e("s_cselect_b32 s%d, -1, s%d" % (sMask + 1, sMask + 1))
    k.e("v_mov_b32 v%d, s%d" % (vChk, sMask + 1))
    k.label(lab)
    k.e("s_add_u32 s%d, s%d, 8192" % (sMask, sB))
    k.e("v_mov_b32 v%d, s%d" % (vChk + 1, sMask))
    k.e("s_waitcnt lgkmcnt(0)")
    k.e("s_barrier")
    lab = k.newlabel("nochk2")
    k.e("s_cmp_lg_u32 s%d, 0" % sWave)
    k.e("s_cbranch_scc1 %s" % lab)
    k.e("ds_write_b32 v%d, v%d" % (vChk + 1, vChk))
    k.label(lab)
    k.e("ds_write_b64 v%d, v[%d:%d]" % (vT2, vL0, vL1))
    for i in range(8):
        k.e("ds_read_b128 %s, v%d offset:%d" % (vr(vO + 32 + 4 * i, 4), vT3, i * 1024))
    k.e("v_xor_b32 v%d, 0x800, v%d" % (vT2, vT2))
    k.e("s_waitcnt lgkmcnt(0)")
    k.e("s_barrier")
    k.e("ds_read_b64 v[%d:%d], v%d" % (vE, vE + 1, vT2))
    k.e("ds_read_b32 v%d, v%d" % (vChk, vChk + 1))
    k.e("s_waitcnt lgkmcnt(0)")
    k.e("v_max_f32 v%d, v%d, v%d" % (vT0, vL0, vE))
    k.e("v_sub_f32 v%d, v%d, v%d" % (vL0, vL0, vT0))
    k.e("v_sub_f32 v%d, v%d, v%d" % (vE, vE, vT0))
    k.e("v_exp_f32 v%d, v%d" % (vL0, vL0))
    k.e("v_exp_f32 v%d, v%d" % (vE, vE))
    k.e("s_nop 0")
    k.e("v_mul_f32 v%d, v%d, v%d" % (vL1, vL1, vL0))
    k.e("v_fmac_f32 v%d, v%d, v%d" % (vL1, vE + 1, vE))
    k.e("v_rcp_f32 v%d, v%d" % (vL1, vL1))
    k.e("s_nop 0")
    k.e("v_mul_f32 v%d, v%d, v%d" % (vL0, vL0, vL1))
    k.e("v_mul_f32 v%d, v%d, v%d" % (vE, vE, vL1))
    for i in range(32):
        k.e("v_mul_f32 v%d, v%d, v%d" % (vO + i, vO + i, vL0))
    for i in range(32):
        k.e("v_fmac_f32 v%d, v%d, v%d" % (vO + i, vO + 32 + i, vE))
    k.e("s_lshl2_add_u32 s%d, s%d, s%d" % (sA, sJL, sWq))
    k.e("s_mul_i32 s%d, s%d, 480" % (sA, sA))
    k.e("s_lshl3_add_u32 s%d, s%d, s%d" % (sA, sHead, sA))
    k.e("s_lshl2_add_u32 s%d, s%d, s%d" % (sA, sG, sA))
    k.e("s_lshl_b32 s%d, s%d, 10" % (sA, sA))
    for i in range(4):
        src = vO + 8 * i
        tq = vKf + 4 * i
        for c in range(4):
            k.e("v_cvt_pk_bf16_f32 v%d, v%d, v%d" % (tq + c, src + 2 * c, src + 2 * c + 1))
        k.e("s_nop 1")
        k.e("v_permlane32_swap_b32 v%d, v%d" % (tq, tq + 2))
        k.e("v_permlane32_swap_b32 v%d, v%d" % (tq + 1, tq + 3))
        k.e("buffer_store_dwordx4 %s, v%d, %s, s%d offen offset:%d %s" % (vr(tq, 4), vL16, sr(sO, 4), sA, i * 1024, STF))
    k.e("s_cmp_lg_u32 s%d, 0" % sPhase)
    k.e("s_cbranch_scc1 L_at_done")
    k.e("s_mov_b32 s%d, 1" % sPhase)
    k.e("s_mov_b32 s%d, s%d" % (sJL, sPi))
    k.e("s_xor_b32 s%d, s%d, 1" % (sA, sPar))
    k.e("s_lshl_b32 s%d, s%d, 15" % (sA, sA))
    k.e("s_add_u32 m0, s%d, s%d" % (sM0K, sA))
    k.e("s_nop 0")
    for j in range(4):
        k.e("buffer_load_dwordx4 v%d, %s, s%d offen offset:%d lds" % (vD, sr(sK, 4), sKoff, 1024 * j))
    k.e("s_add_u32 s%d, s%d, 32768" % (sKoff, sKoff))
    k.e("s_branch L_at_qblock")
    k.label("L_at_done")
```

```python
from asmlib import *

STFLAGS = os.environ.get("STFLAGS", "sc1")


def log2(x):
    n = x.bit_length() - 1
    assert 1 << n == x
    return n


class Job:
    def __init__(self, amode, swap, sA, sB, sAoff, sBoff, sAstep, sBstep, sPitchA, sPitchB, vDA, vDB, vRA, name="j"):
        self.amode, self.swap = amode, swap
        self.sA, self.sB, self.sAoff, self.sBoff = sA, sB, sAoff, sBoff
        self.sAstep, self.sBstep, self.sPitchA, self.sPitchB = sAstep, sBstep, sPitchA, sPitchB
        self.vDA, self.vDB, self.vRA = vDA, vDB, vRA
        self.bswitch = None
        self.name = name
        self.sAoff2 = None
        self.sBoff2 = None
        self.splitB = None


class GemmCfg:
    def __init__(self, TM=4, TN=2, WM=2, WN=4, NS=2, vRB=14, vTmp=16, vF=24):
        self.TM, self.TN, self.WM, self.WN, self.NS = TM, TN, WM, WN, NS
        self.BM = 32 * TM * WM
        self.BN = 32 * TN * WN
        self.NW = WM * WN
        self.A_stage = self.BM * 128
        self.B_stage = self.BN * 128
        self.NA = self.A_stage // 1024 // self.NW
        self.NB = self.B_stage // 1024 // self.NW
        self.ND = self.NA + self.NB
        self.lds_bytes = NS * (self.A_stage + self.B_stage)
        assert self.NA <= 4 and self.NB <= 4
        self.sep_stage = (NS > 2)
        self.nst = NS if self.sep_stage else 1
        self.vLane16 = 1
        self.vRB = vRB
        self.vTmp = vTmp
        self.fragsz = 4 * (TM + TN)
        self.vF = vF
        self.vAcc = (self.vF + 2 * self.fragsz + 15) // 16 * 16
        self.nvgpr = self.vAcc + 16 * TM * TN
        assert self.nvgpr <= 256, self.nvgpr
        self.sO = 12
        self.sCnt = 18
        self.sWave = 19
        self.sM0A = 20
        self.sM0B = 23
        self.sWm = 27
        self.sWn = 28
        self.sT0 = 31
        self.sT1 = 32
        self.sVW = self.sWave

    def fA(self, s, tm):
        return self.vF + s * self.fragsz + 4 * tm

    def fB(self, s, tn):
        return self.vF + s * self.fragsz + 4 * self.TM + 4 * tn

    def acc(self, tm, tn):
        return self.vAcc + 16 * (tm * self.TN + tn)

    def ldsA(self, s):
        if getattr(self, "layA", None):
            return self.layA[s]
        return s * self.A_stage

    def ldsB(self, s):
        if getattr(self, "layB", None):
            return self.layB[s]
        return self.NS * self.A_stage + s * self.B_stage


def gemm_setup_common(k, g):
    t0, t1, t2, t3 = g.vTmp, g.vTmp + 1, g.vTmp + 2, g.vTmp + 3
    lane = g.vTmp + 4
    k.c("---- gemm setup (common)")
    k.e("v_lshrrev_b32 v%d, 6, v0" % t0)
    k.e("v_and_b32 v%d, 63, v0" % lane)
    k.e("v_readfirstlane_b32 s%d, v%d" % (g.sWave, t0))
    k.e("v_lshlrev_b32 v%d, 4, v%d" % (g.vLane16, lane))
    k.e("s_nop 1")
    if getattr(g, "altmap", False):
        k.e("s_bfe_u32 s%d, s%d, 0x10001" % (g.sWm, g.sWave))
        k.e("s_and_b32 s%d, s%d, 1" % (g.sWn, g.sWave))
        k.e("s_lshr_b32 s%d, s%d, 2" % (g.sT0, g.sWave))
        k.e("s_lshl1_add_u32 s%d, s%d, s%d" % (g.sWn, g.sT0, g.sWn))
    else:
        k.e("s_lshr_b32 s%d, s%d, %d" % (g.sWm, g.sWave, log2(g.WN)))
        k.e("s_and_b32 s%d, s%d, %d" % (g.sWn, g.sWave, g.WN - 1))
    if g.sVW != g.sWave:
        k.e("s_and_b32 s%d, s%d, 3" % (g.sVW, g.sWave))
        k.e("s_lshl_b32 s%d, s%d, 1" % (g.sVW, g.sVW))
    for s in range(g.NS):
        k.e("s_mul_i32 s%d, s%d, %d" % (g.sT0, g.sVW, g.NA * 1024))
        k.e("s_add_u32 s%d, s%d, %d" % (g.sM0A + s, g.sT0, g.ldsA(s)))
        k.e("s_mul_i32 s%d, s%d, %d" % (g.sT0, g.sVW, g.NB * 1024))
        k.e("s_add_u32 s%d, s%d, %d" % (g.sM0B + s, g.sT0, g.ldsB(s)))
    rowb = g.BN * 2
    k.e("v_bfe_u32 v%d, v%d, 2, 2" % (t0, lane))
    k.e("v_lshrrev_b32 v%d, 5, v%d" % (t1, lane))
    k.e("v_lshl_add_u32 v%d, v%d, 3, v%d" % (t1, t1, t0))
    k.e("v_lshlrev_b32 v%d, %d, v%d" % (t1, log2(rowb), t1))
    k.e("v_and_b32 v%d, 1, v%d" % (t2, lane))
    k.e("v_lshl_add_u32 v%d, v%d, 3, v%d" % (t1, t2, t1))
    k.e("v_bfe_u32 v%d, v%d, 4, 1" % (t2, lane))
    k.e("v_bfe_u32 v%d, v%d, 1, 1" % (t3, lane))
    k.e("v_lshl_add_u32 v%d, v%d, 1, v%d" % (t2, t2, t3))
    k.e("v_lshlrev_b32 v%d, 2, v%d" % (t0, t0))
    for tn in range(g.TN):
        k.e("s_mul_i32 s%d, s%d, %d" % (g.sT0, g.sWn, g.TN * 4))
        k.e("s_add_u32 s%d, s%d, %d" % (g.sT0, g.sT0, tn * 4))
        k.e("v_add_u32 v%d, s%d, v%d" % (t3, g.sT0, t2))
        k.e("v_xor_b32 v%d, v%d, v%d" % (t3, t3, t0))
        k.e("v_lshl_add_u32 v%d, v%d, 4, v%d" % (t3, t3, t1))
        for s in range(g.nst):
            k.e("v_add_u32 v%d, %d, v%d" % (g.vRB + s * g.TN + tn, g.ldsB(s), t3))


def gemm_setup_job(k, g, j):
    t0, t1, t2, t3 = g.vTmp, g.vTmp + 1, g.vTmp + 2, g.vTmp + 3
    lane = g.vTmp + 4
    k.c("---- gemm setup job %s" % j.name)
    if j.amode == "frag":
        k.e("s_mul_i32 s%d, s%d, %d" % (g.sT0, g.sVW, g.NA))
        k.e("s_lshr_b32 s%d, s%d, 2" % (g.sT1, g.sT0))
        k.e("s_and_b32 s%d, s%d, 3" % (g.sT0, g.sT0))
        k.e("s_mul_i32 s%d, s%d, s%d" % (g.sT1, g.sT1, j.sPitchA))
        k.e("s_lshl_b32 s%d, s%d, 10" % (g.sT0, g.sT0))
        k.e("s_add_u32 s%d, s%d, s%d" % (g.sT0, g.sT0, g.sT1))
        k.e("v_add_u32 v%d, s%d, v%d" % (j.vDA, g.sT0, g.vLane16))
    else:
        assert g.NA == 4
        k.e("s_mul_i32 s%d, s%d, %d" % (g.sT0, g.sVW, 8 * g.NA))
        k.e("v_lshrrev_b32 v%d, 3, v%d" % (t0, lane))
        k.e("v_add_u32 v%d, s%d, v%d" % (t0, g.sT0, t0))
        k.e("v_and_b32 v%d, 7, v%d" % (t1, lane))
        for i in range(g.NA):
            k.e("v_add_u32 v%d, %d, v%d" % (t2, 8 * i, t0))
            k.e("v_bfe_u32 v%d, v%d, 1, 3" % (t3, t2))
            k.e("v_xor_b32 v%d, v%d, v%d" % (t3, t3, t1))
            k.e("v_mul_lo_u32 v%d, v%d, s%d" % (t2, t2, j.sPitchA))
            k.e("v_lshl_add_u32 v%d, v%d, 4, v%d" % (t2, t3, t2))
            k.e("v_subrev_u32 v%d, %d, v%d" % (j.vDA + i, 1024 * i, t2))
    rpi = 1024 // (g.BN * 2)
    cpr = g.BN // 8
    k.e("s_mul_i32 s%d, s%d, %d" % (g.sT0, g.sVW, g.NB * rpi))
    if j.sAoff2 is not None:
        assert g.NA == 4
        if j.amode == "frag":
            k.e("s_add_u32 s%d, s%d, s%d" % (j.sAoff2, j.sAoff, j.sPitchA))
        else:
            k.e("s_lshl_b32 s%d, s%d, 5" % (j.sAoff2, j.sPitchA))
            k.e("s_add_u32 s%d, s%d, s%d" % (j.sAoff2, j.sAoff2, j.sAoff))
        k.e("s_mul_i32 s%d, s%d, %d" % (j.sBoff2, j.sPitchB, g.NB * rpi))
        k.e("s_add_u32 s%d, s%d, s%d" % (j.sBoff2, j.sBoff2, j.sBoff))
    k.e("v_lshrrev_b32 v%d, %d, v%d" % (t0, log2(cpr), lane))
    k.e("v_add_u32 v%d, s%d, v%d" % (t0, g.sT0, t0))
    k.e("v_and_b32 v%d, %d, v%d" % (t1, cpr - 1, lane))
    for i in range(g.NB):
        k.e("v_add_u32 v%d, %d, v%d" % (t2, rpi * i, t0))
        k.e("v_and_b32 v%d, 3, v%d" % (t3, t2))
        k.e("v_lshlrev_b32 v%d, 2, v%d" % (t3, t3))
        k.e("v_xor_b32 v%d, v%d, v%d" % (t3, t3, t1))
        k.e("v_mul_lo_u32 v%d, v%d, s%d" % (t2, t2, j.sPitchB))
        k.e("v_lshl_add_u32 v%d, v%d, 4, v%d" % (t2, t3, t2))
        k.e("v_subrev_u32 v%d, %d, v%d" % (j.vDB + i, 1024 * i, t2))
    if j.amode == "frag":
        k.e("s_mul_i32 s%d, s%d, %d" % (g.sT0, g.sWm, g.TM * 4096))
        for s in range(g.nst):
            k.e("s_add_u32 s%d, s%d, %d" % (g.sT1, g.sT0, g.ldsA(s)))
            k.e("v_add_u32 v%d, s%d, v%d" % (j.vRA + s, g.sT1, g.vLane16))
    else:
        k.e("s_mul_i32 s%d, s%d, %d" % (g.sT0, g.sWm, g.TM * 32 * 128))
        k.e("v_and_b32 v%d, 31, v%d" % (t0, lane))
        k.e("v_bfe_u32 v%d, v%d, 1, 3" % (t1, lane))
        k.e("v_lshrrev_b32 v%d, 5, v%d" % (t2, lane))
        k.e("v_xor_b32 v%d, v%d, v%d" % (t1, t1, t2))
        k.e("v_lshlrev_b32 v%d, 7, v%d" % (t0, t0))
        k.e("v_add_u32 v%d, s%d, v%d" % (t0, g.sT0, t0))
        for s in range(g.nst):
            for kk in range(4):
                k.e("v_xor_b32 v%d, %d, v%d" % (t2, 2 * kk, t1))
                k.e("v_lshl_add_u32 v%d, v%d, 4, v%d" % (t2, t2, t0))
                k.e("v_add_u32 v%d, %d, v%d" % (j.vRA + s * 4 + kk, g.ldsA(s), t2))


def dma_list(k, g, j, s, tag="dma"):
    out = []
    halves = [0, 1] if j.sAoff2 is not None else [0]

    def a_i(i, h):
        def f():
            off = j.sAoff2 if h else j.sAoff
            if i == 0:
                if h:
                    k.e("s_add_u32 m0, s%d, %d" % (g.sM0A + s, g.NA * 1024))
                else:
                    k.e("s_mov_b32 m0, s%d" % (g.sM0A + s))
                k.e("s_nop 0")
            va = j.vDA if j.amode == "frag" else j.vDA + i
            k.vm_op("buffer_load_dwordx4 v%d, %s, s%d offen offset:%d lds" % (va, sr(j.sA, 4), off, 1024 * i), tag)
            if i == g.NA - 1:
                k.e("s_add_u32 s%d, s%d, s%d" % (off, off, j.sAstep))
        return f

    def b_split(i, h):
        def f():
            sB2, vDB2, sBstep2, _ = j.splitB
            off = j.sBoff2 if h else j.sBoff
            if i == 0:
                k.e("s_lshl_b32 s%d, s%d, 11" % (g.sT0, g.sVW))
                k.e("s_sub_u32 s%d, s%d, s%d" % (g.sT0, g.sM0B + s, g.sT0))
                k.e("s_add_u32 m0, s%d, %d" % (g.sT0, h * 16384))
                k.e("s_nop 0")
            k.vm_op("buffer_load_dwordx4 v%d, %s, s%d offen offset:%d lds" % ((vDB2 if h else j.vDB) + i, sr(sB2 if h else j.sB, 4), off, 1024 * i), tag)
            if i == g.NB - 1:
                k.e("s_add_u32 s%d, s%d, s%d" % (off, off, sBstep2 if h else j.sBstep))
        return f

    def b_i(i, h):
        if j.splitB:
            return b_split(i, h)

        def f():
            off = j.sBoff2 if h else j.sBoff
            if i == 0:
                if h:
                    k.e("s_add_u32 m0, s%d, %d" % (g.sM0B + s, g.NB * 1024))
                else:
                    k.e("s_mov_b32 m0, s%d" % (g.sM0B + s))
                k.e("s_nop 0")
            k.vm_op("buffer_load_dwordx4 v%d, %s, s%d offen offset:%d lds" % (j.vDB + i, sr(j.sB, 4), off, 1024 * i), tag)
            if i == g.NB - 1:
                k.e("s_add_u32 s%d, s%d, s%d" % (off, off, j.sBstep))
                if j.bswitch:
                    lo, hi, nrec, sw = j.bswitch
                    k.e("s_cmp_eq_u32 s%d, %d" % (j.sBoff, sw))
                    k.e("s_cselect_b32 s%d, s%d, s%d" % (j.sB, lo, j.sB))
                    k.e("s_cselect_b32 s%d, s%d, s%d" % (j.sB + 1, hi, j.sB + 1))
                    k.e("s_cselect_b32 s%d, s%d, s%d" % (j.sB + 2, nrec, j.sB + 2))
                    k.e("s_cselect_b32 s%d, 0, s%d" % (j.sBoff, j.sBoff))
        return f

    for h in halves:
        for i in range(g.NB):
            out.append(b_i(i, h))
    for h in halves:
        for i in range(g.NA):
            out.append(a_i(i, h))
    return out


def read_list(k, g, j, s, kk, fset):
    rowb = 256 if j.splitB else g.BN * 2

    def ra(tm):
        def f():
            if j.amode == "frag":
                if g.sep_stage:
                    addr, off = j.vRA + s, tm * 4096 + kk * 1024
                else:
                    addr, off = j.vRA, g.ldsA(s) + tm * 4096 + kk * 1024
            else:
                if g.sep_stage:
                    addr, off = j.vRA + s * 4 + kk, tm * 4096
                else:
                    addr, off = j.vRA + kk, g.ldsA(s) + tm * 4096
            assert off < 65536
            d = g.fA(fset, tm)
            k.lds_op("ds_read_b128 %s, v%d offset:%d" % (vr(d, 4), addr, off), rng(d, 4))
        return f

    def rb(tn, sub):
        def f():
            if g.sep_stage:
                addr, off = g.vRB + s * g.TN + tn, (16 * kk + 4 * sub) * rowb
            else:
                addr, off = g.vRB + tn, s * g.B_stage + (16 * kk + 4 * sub) * rowb
            assert off < 65536
            d = g.fB(fset, tn) + 2 * sub
            k.lds_op("ds_read_b64_tr_b16 %s, v%d offset:%d" % (vr(d, 2), addr, off), rng(d, 2))
        return f

    out = [rb(0, 0), rb(0, 1), ra(0)]
    for tn in range(1, g.TN):
        out += [rb(tn, 0), rb(tn, 1)]
    for tm in range(1, g.TM):
        out.append(ra(tm))
    return out


def mfma_list(k, g, j, fset, cinit=None, pre=None):
    out = []
    for tm in range(g.TM):
        for tn in range(g.TN):
            def f(tm=tm, tn=tn):
                if pre:
                    pre(tm, tn)
                a, b, c = g.fA(fset, tm), g.fB(fset, tn), g.acc(tm, tn)
                k.lds_need(list(rng(a, 4)) + list(rng(b, 4)))
                if j.swap:
                    a, b = b, a
                cs = cinit(tm, tn) if cinit else vr(c, 16)
                k.e("v_mfma_f32_32x32x16_bf16 %s, %s, %s, %s" % (vr(c, 16), vr(a, 4), vr(b, 4), cs))
            out.append(f)
    return out


def gemm_body(k, g, u, jc, jn, jd, need_tags, dma_tag, extra=None, cinit=None, pre=None, post_barrier=None, vmwait=None, carry=None, ncarry=0):
    nm = g.TM * g.TN
    extra = dict(extra or {})
    carry_out = []
    if carry:
        extra[0] = list(carry) + list(extra.get(0, []))
    for kk in range(4):
        cur = kk & 1
        nxt = cur ^ 1
        fillers = []
        if kk == 3:
            if jn is not None:
                if vmwait is None:
                    n = k.vm_count(need_tags)
                else:
                    n = vmwait
                k.lds_drain("vmcnt(%d)" % n if n is not None else "")
                k.e("s_barrier")
                if post_barrier:
                    post_barrier()
                fillers += read_list(k, g, jn, (u + 1) % g.NS, 0, nxt)
            if jd is not None:
                dl = dma_list(k, g, jd, u, dma_tag)
                if ncarry:
                    carry_out = dl[len(dl) - ncarry:]
                    dl = dl[:len(dl) - ncarry]
                fillers += dl
        else:
            fillers += read_list(k, g, jc, u, kk + 1, nxt)
        ex = list(extra.get(kk, []))
        if kk == 3 or not ex:
            fillers += ex
            per = [max(2, -(-len(fillers) // nm))] * nm
        else:
            per = []
            nf, ne = len(fillers), len(ex)
            merged = []
            fi = ei = 0
            for gph in range(nm):
                c = 0
                for _ in range(2):
                    if fi < nf:
                        merged.append(fillers[fi]); fi += 1; c += 1
                tgt = ((gph + 1) * ne) // nm
                while ei < tgt:
                    merged.append(ex[ei]); ei += 1; c += 1
                per.append(c)
            fillers = merged
        interleave(k, mfma_list(k, g, jc, cur, cinit if kk == 0 else None, pre if kk == 0 else None), fillers, per)
    return carry_out


def gemm_loop(k, g, j, first_stage, ntiles_dma, name, extra3=None):
    assert ntiles_dma % g.NS == 0
    nloop = ntiles_dma // g.NS
    if nloop == 0:
        return
    lab = k.newlabel(name + "_loop")
    k.e("s_mov_b32 s%d, %d" % (g.sCnt, nloop))
    q0 = list(k.ldsq)
    k.label(lab)
    for i in range(g.NS):
        nx = len(extra3) if extra3 else 0
        gemm_body(k, g, (first_stage + i) % g.NS, j, j, j, None, "dma", vmwait=(g.NS - 2) * (g.ND + nx) + nx,
                  extra={3: extra3} if extra3 else None)
    assert k.ldsq == q0, (k.ldsq, q0)
    k.e("s_sub_u32 s%d, s%d, 1" % (g.sCnt, g.sCnt))
    k.e("s_cmp_lg_u32 s%d, 0" % g.sCnt)
    k.e("s_cbranch_scc1 %s" % lab)
    k.vmq = []


def gemm_tail(k, g, j, first_stage, nx=0):
    for i in range(g.NS):
        last = i == g.NS - 1
        gemm_body(k, g, (first_stage + i) % g.NS, j, None if last else j, None, None, None, vmwait=max(0, (g.NS - 2 - i)) * (g.ND + nx) + nx)
    k.e("s_nop 15")


def acc_zero(k, g):
    for r in range(g.vAcc, g.nvgpr):
        k.e("v_mov_b32 v%d, 0" % r)


def pack_only(k, src, tq):
    for i in range(4):
        k.e("v_cvt_pk_bf16_f32 v%d, v%d, v%d" % (tq + i, src + 2 * i, src + 2 * i + 1))
    k.e("s_nop 1")
    k.e("v_permlane32_swap_b32 v%d, v%d" % (tq, tq + 2))
    k.e("v_permlane32_swap_b32 v%d, v%d" % (tq + 1, tq + 3))


def pack_store(k, g, src, tq, soff, imm, flags=None):
    if flags is None:
        flags = (" " + STFLAGS) if STFLAGS else ""
    for i in range(4):
        k.e("v_cvt_pk_bf16_f32 v%d, v%d, v%d" % (tq + i, src + 2 * i, src + 2 * i + 1))
    k.e("s_nop 1")
    k.e("v_permlane32_swap_b32 v%d, v%d" % (tq, tq + 2))
    k.e("v_permlane32_swap_b32 v%d, v%d" % (tq + 1, tq + 3))
    k.vm_op("buffer_store_dwordx4 %s, v%d, %s, s%d offen offset:%d%s" % (vr(tq, 4), g.vLane16, sr(g.sO, 4), soff, imm, flags), "st")


def gemm_setup_dma(k, g, j, swave, sXor, vt):
    t0, t1, t2, t3 = vt, vt + 1, vt + 2, vt + 3
    for s in range(g.NS):
        for (reg, n, base) in ((g.sM0A + s, g.NA, g.ldsA(s)), (g.sM0B + s, g.NB, g.ldsB(s))):
            k.e("s_mul_i32 s%d, s%d, %d" % (reg, swave, n * 1024))
            k.e("s_add_u32 s%d, s%d, %d" % (reg, reg, base))
            if base < 131072:
                k.e("s_xor_b32 s%d, s%d, s%d" % (reg, reg, sXor))
    assert j.amode == "frag" and g.NA == 4
    k.e("s_mul_i32 s%d, s%d, s%d" % (g.sT0, swave, j.sPitchA))
    k.e("v_add_u32 v%d, s%d, v%d" % (j.vDA, g.sT0, g.vLane16))
    rpi = 1024 // (g.BN * 2)
    cpr = g.BN // 8
    k.e("s_mul_i32 s%d, s%d, %d" % (g.sT0, swave, g.NB * rpi))
    k.e("v_and_b32 v%d, 63, v0" % t1)
    k.e("v_lshrrev_b32 v%d, %d, v%d" % (t0, log2(cpr), t1))
    k.e("v_add_u32 v%d, s%d, v%d" % (t0, g.sT0, t0))
    k.e("v_and_b32 v%d, %d, v%d" % (t1, cpr - 1, t1))
    for i in range(g.NB):
        k.e("v_add_u32 v%d, %d, v%d" % (t2, rpi * i, t0))
        k.e("v_and_b32 v%d, 3, v%d" % (t3, t2))
        k.e("v_lshlrev_b32 v%d, 2, v%d" % (t3, t3))
        k.e("v_xor_b32 v%d, v%d, v%d" % (t3, t3, t1))
        k.e("v_mul_lo_u32 v%d, v%d, s%d" % (t2, t2, j.sPitchB))
        k.e("v_lshl_add_u32 v%d, v%d, 4, v%d" % (t2, t3, t2))
        k.e("v_subrev_u32 v%d, %d, v%d" % (j.vDB + i, 1024 * i, t2))


def gemm_setup_reads(k, g, j, sXor):
    t0, t1, t2, t3 = g.vTmp, g.vTmp + 1, g.vTmp + 2, g.vTmp + 3
    lane = g.vTmp + 4
    k.e("v_and_b32 v%d, 63, v0" % lane)
    k.e("s_lshr_b32 s%d, s%d, %d" % (g.sWm, g.sWave, log2(g.WN)))
    k.e("s_and_b32 s%d, s%d, %d" % (g.sWn, g.sWave, g.WN - 1))
    rowb = g.BN * 2
    k.e("v_bfe_u32 v%d, v%d, 2, 2" % (t0, lane))
    k.e("v_lshrrev_b32 v%d, 5, v%d" % (t1, lane))
    k.e("v_lshl_add_u32 v%d, v%d, 3, v%d" % (t1, t1, t0))
    k.e("v_lshlrev_b32 v%d, %d, v%d" % (t1, log2(rowb), t1))
    k.e("v_and_b32 v%d, 1, v%d" % (t2, lane))
    k.e("v_lshl_add_u32 v%d, v%d, 3, v%d" % (t1, t2, t1))
    k.e("v_bfe_u32 v%d, v%d, 4, 1" % (t2, lane))
    k.e("v_bfe_u32 v%d, v%d, 1, 1" % (t3, lane))
    k.e("v_lshl_add_u32 v%d, v%d, 1, v%d" % (t2, t2, t3))
    k.e("v_lshlrev_b32 v%d, 2, v%d" % (t0, t0))
    for tn in range(g.TN):
        k.e("s_mul_i32 s%d, s%d, %d" % (g.sT0, g.sWn, g.TN * 4))
        k.e("s_add_u32 s%d, s%d, %d" % (g.sT0, g.sT0, tn * 4))
        k.e("v_add_u32 v%d, s%d, v%d" % (t3, g.sT0, t2))
        k.e("v_xor_b32 v%d, v%d, v%d" % (t3, t3, t0))
        k.e("v_lshl_add_u32 v%d, v%d, 4, v%d" % (t3, t3, t1))
        for s in range(g.nst):
            d = g.vRB + s * g.TN + tn
            k.e("v_add_u32 v%d, %d, v%d" % (d, g.ldsB(s), t3))
            if g.ldsB(s) < 131072:
                k.e("v_xor_b32 v%d, s%d, v%d" % (d, sXor, d))
    k.e("s_mul_i32 s%d, s%d, %d" % (g.sT0, g.sWm, g.TM * 4096))
    for s in range(g.nst):
        k.e("s_add_u32 s%d, s%d, %d" % (g.sT1, g.sT0, g.ldsA(s)))
        k.e("s_xor_b32 s%d, s%d, s%d" % (g.sT1, g.sT1, sXor))
        k.e("v_add_u32 v%d, s%d, v%d" % (j.vRA + s, g.sT1, g.vLane16))


def setup_splitB_dma(k, g, j, vt):
    t0, t1, t2, t3 = vt, vt + 1, vt + 2, vt + 3
    sB2, vDB2, sBstep2, sPitch2 = j.splitB
    k.e("s_lshl_b32 s%d, s%d, 3" % (g.sT0, g.sVW))
    k.e("v_lshrrev_b32 v%d, 8, v%d" % (t0, g.vLane16))
    k.e("v_add_u32 v%d, s%d, v%d" % (t0, g.sT0, t0))
    k.e("v_bfe_u32 v%d, v%d, 4, 4" % (t1, g.vLane16))
    k.e("v_and_b32 v%d, 3, v%d" % (t3, t0))
    k.e("v_lshlrev_b32 v%d, 2, v%d" % (t3, t3))
    k.e("v_xor_b32 v%d, v%d, v%d" % (t1, t3, t1))
    for (vd, sp) in ((j.vDB, j.sPitchB), (vDB2, sPitch2)):
        for i in range(4):
            k.e("v_add_u32 v%d, %d, v%d" % (t2, 4 * i, t0))
            k.e("v_mul_lo_u32 v%d, v%d, s%d" % (t2, t2, sp))
            k.e("v_lshl_add_u32 v%d, v%d, 4, v%d" % (t2, t1, t2))
            k.e("v_subrev_u32 v%d, %d, v%d" % (vd + i, 1024 * i, t2))


def setup_splitB_reads(k, g, vt):
    t0, t1, t2, t3 = vt, vt + 1, vt + 2, vt + 3
    k.e("v_bfe_u32 v%d, v%d, 6, 2" % (t0, g.vLane16))
    k.e("v_lshrrev_b32 v%d, 9, v%d" % (t1, g.vLane16))
    k.e("v_lshl_add_u32 v%d, v%d, 3, v%d" % (t1, t1, t0))
    k.e("v_lshlrev_b32 v%d, 8, v%d" % (t1, t1))
    k.e("v_bfe_u32 v%d, v%d, 4, 1" % (t2, g.vLane16))
    k.e("v_lshl_add_u32 v%d, v%d, 3, v%d" % (t1, t2, t1))
    k.e("v_bfe_u32 v%d, v%d, 8, 1" % (t2, g.vLane16))
    k.e("v_bfe_u32 v%d, v%d, 5, 1" % (t3, g.vLane16))
    k.e("v_lshl_add_u32 v%d, v%d, 1, v%d" % (t2, t2, t3))
    k.e("v_lshlrev_b32 v%d, 2, v%d" % (t0, t0))
    k.e("s_lshl_b32 s%d, s%d, 2" % (g.sT0, g.sWn))
    k.e("v_add_u32 v%d, s%d, v%d" % (t3, g.sT0, t2))
    k.e("v_xor_b32 v%d, v%d, v%d" % (t3, t3, t0))
    k.e("v_lshl_add_u32 v%d, v%d, 4, v%d" % (t3, t3, t1))
    for tn in range(g.TN):
        k.e("v_add_u32 v%d, %d, v%d" % (g.vRB + tn, g.ldsB(0) + tn * 16384, t3))
```

```python
import math, struct
from asmlib import *
from gemm import *
import attn as AT

MB = 1 << 20
WS_XN = 0
WS_Q = 4 * MB
WS_K = 20 * MB
WS_VT = 36 * MB
WS_AH = 52 * MB
ARG_X, ARG_CKV, ARG_WQ, ARG_WUK, ARG_WUV, ARG_WO, ARG_BX, ARG_W1, ARG_B1, ARG_W2, ARG_B2, ARG_OUT, ARG_DBG, ARG_WS = [8 * i for i in range(14)]
QSCALE = math.log2(math.e) / math.sqrt(128.0)
GELU_C1 = -2.0 * math.sqrt(2.0 / math.pi) * math.log2(math.e)
GELU_C2 = GELU_C1 * 0.044715
TRFLAGS = os.environ.get("TRFLAGS", " sc1")
FORCE_HELP = int(os.environ.get("FORCE_HELP", "0"))


def f32bits(x):
    return struct.unpack("<I", struct.pack("<f", x))[0]


def srd(k, d, base, off, nbytes):
    k.e("s_add_u32 s%d, s%d, %s" % (d, base, off))
    k.e("s_addc_u32 s%d, s%d, 0" % (d + 1, base + 1))
    k.e("s_mov_b32 s%d, %s" % (d + 2, nbytes))
    k.e("s_mov_b32 s%d, 0x00020000" % (d + 3))


sX, sCKV = 40, 42
sWUK, sWUV = 44, 46
sWS = 48
sWQ, sW1, sB1 = 50, 52, 54
sWO, sW2 = 56, 58
sDBG = 60
sMtA, sNtA, sIsV = 62, 63, 96
sMtB, sNtB, sIsH = 97, 98, 99
sStA = 100
sLnX, sLnO = 36, 80
sPf = 84
sBs = 56
sDb = 88
sRow = 34
sPfOff = 92
sWG = 93
sNonce = 95
sHelp = 61
WS_FLAGS = 83 * MB
FL_LN, FL_PS, FL_KV, FL_QH, FL_AS, FL_AD, FL_ST = 1024, 2048, 3072, 4096, 5120, 6144, 8192
NONCEW = 147456
PFD = 3
sTa, sTb = 35, 101
vBias = 208
vPk = 240
vRaw = 248
vLn = 208


def wave_sum(k, v, t):
    out = []
    for ctl in ["quad_perm:[1,0,3,2]", "quad_perm:[2,3,0,1]", "row_half_mirror", "row_mirror"]:
        out.append(lambda: k.e("s_nop 1"))
        out.append(lambda ctl=ctl: k.e("v_add_f32_dpp v%d, v%d, v%d %s row_mask:0xf bank_mask:0xf" % (v, v, v, ctl)))
    for sw in ["v_permlane16_swap_b32", "v_permlane32_swap_b32"]:
        out.append(lambda: k.e("v_mov_b32 v%d, v%d" % (t, v)))
        out.append(lambda: k.e("s_nop 1"))
        out.append(lambda sw=sw: k.e("%s v%d, v%d" % (sw, t, v)))
        out.append(lambda: k.e("v_add_f32 v%d, v%d, v%d" % (v, v, t)))
    return out


def ln_load(k, g):
    t = g.vTmp
    k.e("s_lshl_b32 s%d, s%d, 11" % (sTa, sRow))
    k.e("v_lshlrev_b32 v%d, 1, v%d" % (t, g.vLane16))
    k.vm_op("buffer_load_dwordx4 %s, v%d, %s, s%d offen" % (vr(vRaw, 4), t, sr(sLnX, 4), sTa), "ln")
    k.vm_op("buffer_load_dwordx4 %s, v%d, %s, s%d offen offset:16" % (vr(vRaw + 4, 4), t, sr(sLnX, 4), sTa), "ln")


def ln_steps(k, g, via_lds=False):
    X = vLn
    S, V, T = vLn + 16, vLn + 17, vLn + 18
    D = vLn + 19
    A = vLn + 20
    o = []
    E = lambda s: (lambda: k.e(s))
    o.append(lambda: k.vm_need(["ln"]))
    for i in range(8):
        o.append(E("v_lshlrev_b32 v%d, 16, v%d" % (X + 2 * i, vRaw + i)))
        o.append(E("v_and_b32 v%d, 0xffff0000, v%d" % (X + 2 * i + 1, vRaw + i)))
    o.append(E("v_add_f32 v%d, v%d, v%d" % (S, X, X + 1)))
    o.append(E("v_add_f32 v%d, v%d, v%d" % (T, X + 2, X + 3)))
    for i in range(4, 16, 2):
        o.append(E("v_add_f32 v%d, v%d, v%d" % (S, S, X + i)))
        o.append(E("v_add_f32 v%d, v%d, v%d" % (T, T, X + i + 1)))
    o.append(E("v_add_f32 v%d, v%d, v%d" % (S, S, T)))
    o += wave_sum(k, S, T)
    o.append(E("v_mul_f32 v%d, 0x%08x, v%d" % (S, f32bits(1.0 / 1024), S)))
    o.append(E("v_sub_f32 v%d, v%d, v%d" % (D, X, S)))
    o.append(E("v_mul_f32 v%d, v%d, v%d" % (V, D, D)))
    for i in range(1, 16):
        o.append(E("v_sub_f32 v%d, v%d, v%d" % (D, X + i, S)))
        o.append(E("v_fmac_f32 v%d, v%d, v%d" % (V, D, D)))
    o += wave_sum(k, V, T)
    o.append(E("v_mul_f32 v%d, 0x%08x, v%d" % (V, f32bits(1.0 / 1024), V)))

    def rbf(r):
        return [E("v_cvt_pk_bf16_f32 v%d, v%d, v%d" % (r, r, r)), E("v_lshlrev_b32 v%d, 16, v%d" % (r, r))]
    o += rbf(S) + rbf(V)
    o.append(E("v_add_f32 v%d, 0x%08x, v%d" % (V, f32bits(1e-5), V)))
    o += rbf(V)
    o.append(E("v_sqrt_f32 v%d, v%d" % (V, V)))
    o.append(E("s_nop 0"))
    o += rbf(V)
    o.append(E("v_rcp_f32 v%d, v%d" % (V, V)))
    for i in range(16):
        o.append(E("v_sub_f32 v%d, v%d, v%d" % (X + i, X + i, S)))
    for i in range(8):
        o.append(E("v_cvt_pk_bf16_f32 v%d, v%d, v%d" % (vRaw + i, X + 2 * i, X + 2 * i + 1)))
    for i in range(8):
        o.append(E("v_lshlrev_b32 v%d, 16, v%d" % (X + 2 * i, vRaw + i)))
        o.append(E("v_and_b32 v%d, 0xffff0000, v%d" % (X + 2 * i + 1, vRaw + i)))
    for i in range(16):
        o.append(E("v_mul_f32 v%d, v%d, v%d" % (X + i, X + i, V)))
    for i in range(8):
        o.append(E("v_cvt_pk_bf16_f32 v%d, v%d, v%d" % (vRaw + i, X + 2 * i, X + 2 * i + 1)))
    if via_lds:
        def wr():
            k.e("s_lshl_b32 s%d, s%d, 4" % (sTa, g.sWave))
            k.e("s_add_u32 s%d, s%d, %d" % (sTa, sTa, g.lds_bytes))
            k.e("v_lshl_add_u32 v%d, v%d, 4, s%d" % (A, g.vLane16, sTa))
            k.lds_op("ds_write_b128 v%d, %s" % (A, vr(vRaw, 4)))
            k.lds_op("ds_write_b128 v%d, %s offset:128" % (A, vr(vRaw + 4, 4)))
        o.append(wr)
        return o
    o.append(E("v_lshlrev_b32 v%d, 6, v%d" % (A, g.vLane16)))

    def st():
        k.e("s_lshr_b32 s%d, s%d, 5" % (sTa, sRow))
        k.e("s_lshl_b32 s%d, s%d, 16" % (sTa, sTa))
        k.e("s_and_b32 s%d, s%d, 31" % (sTb, sRow))
        k.e("s_lshl4_add_u32 s%d, s%d, s%d" % (sTa, sTb, sTa))
        k.vm_op("buffer_store_dwordx4 %s, v%d, %s, s%d offen sc1" % (vr(vRaw, 4), A, sr(sLnO, 4), sTa), "lnst")
        k.vm_op("buffer_store_dwordx4 %s, v%d, %s, s%d offen offset:512 sc1" % (vr(vRaw + 4, 4), A, sr(sLnO, 4), sTa), "lnst")
        k.e("s_nop 1")
    o.append(st)
    return o


def ln_store_steps(k, g):
    A, B = vLn + 20, vLn + 21
    R = vLn
    o = []

    def rd():
        k.e("s_and_b32 s%d, s%d, 3" % (sTa, g.sWave))
        k.e("s_lshl_b32 s%d, s%d, 12" % (sTa, sTa))
        k.e("s_add_u32 s%d, s%d, %d" % (sTa, sTa, g.lds_bytes))
        k.e("v_add_u32 v%d, s%d, v%d" % (A, sTa, g.vLane16))
        for i in range(4):
            k.lds_op("ds_read_b128 %s, v%d offset:%d" % (vr(R + 4 * i, 4), A, 1024 * i), rng(R + 4 * i, 4))
    o.append(rd)

    def addr():
        k.e("v_lshrrev_b32 v%d, 8, v%d" % (B, g.vLane16))
        k.e("v_lshlrev_b32 v%d, 10, v%d" % (B, B))
        k.e("v_bfe_u32 v%d, v%d, 7, 1" % (B + 1, g.vLane16))
        k.e("v_lshl_add_u32 v%d, v%d, 9, v%d" % (B, B + 1, B))
        k.e("v_and_b32 v%d, 0x70, v%d" % (B + 1, g.vLane16))
        k.e("v_add_u32 v%d, v%d, v%d" % (B, B, B + 1))
    o.append(addr)

    def st():
        k.e("s_lshr_b32 s%d, s2, 2" % sTa)
        k.e("s_lshl_b32 s%d, s%d, 16" % (sTa, sTa))
        k.e("s_and_b32 s%d, s%d, 3" % (sTb, g.sWave))
        k.e("s_lshl_b32 s%d, s%d, 14" % (sTb, sTb))
        k.e("s_add_u32 s%d, s%d, s%d" % (sTa, sTa, sTb))
        k.e("s_and_b32 s%d, s2, 3" % sTb)
        k.e("s_lshl_b32 s%d, s%d, 7" % (sTb, sTb))
        k.e("s_add_u32 s%d, s%d, s%d" % (sTa, sTa, sTb))
        k.lds_need(rng(R, 16))
        for i in range(4):
            k.vm_op("buffer_store_dwordx4 %s, v%d, %s, s%d offen sc1" % (vr(R + 4 * i, 4), B, sr(sLnO, 4), sTa), "lnst")
            if i < 3:
                k.e("s_add_u32 s%d, s%d, 4096" % (sTa, sTa))
        k.e("s_nop 1")
    o.append(st)
    return o


def split_list(lst, n):
    m = len(lst)
    return [lst[(i * m) // n:((i + 1) * m) // n] for i in range(n)]


def emit_proj(k, tail_code):
    g = GemmCfg(vRB=14, vTmp=16, vF=24)
    g.sVW = 3
    assert g.vAcc == 80 and g.nvgpr == 208
    jK = Job("row", True, 4, 8, 16, 17, 33, 26, 29, 30, 2, 6, 10, "K")
    jV = Job("row", False, 4, 8, 16, 17, 33, 26, 29, 30, 2, 6, 10, "V")
    jB = Job("frag", True, 64, 68, 72, 73, 74, 75, 76, 77, 72, 73, 77, "B")
    for j in (jK, jV):
        j.sAoff2, j.sBoff2 = 18, 22
    jB.sAoff2, jB.sBoff2 = 25, 94
    jB.splitB = (sPf, 20, 76, 78)
    sHeadB, sPiB, sHv = 97, 98, 99
    vPf, vDummy, vPoll = g.vTmp + 5, g.vTmp + 6, g.vTmp + 7
    PFS = int(os.environ.get("PFS", "6"))
    NCARRY = int(os.environ.get("NCARRY", "8"))
    k.label("L_pj_task")
    k.e("s_load_dwordx4 s[40:43], s[0:1], 0")
    k.e("s_load_dwordx4 s[44:47], s[0:1], 24")
    k.e("s_load_dwordx2 s[48:49], s[0:1], %d" % ARG_WS)
    k.e("s_load_dwordx2 s[50:51], s[0:1], %d" % ARG_WQ)
    k.e("s_load_dwordx4 s[52:55], s[0:1], %d" % ARG_W1)
    k.e("s_load_dwordx2 s[56:57], s[0:1], %d" % ARG_WO)
    k.e("s_load_dwordx2 s[58:59], s[0:1], %d" % ARG_W2)
    k.e("s_load_dwordx2 s[60:61], s[0:1], %d" % ARG_DBG)
    k.e("s_and_b32 s%d, s2, 7" % sTa)
    k.e("s_bfe_u32 s%d, s2, 0x20003" % sTb)
    k.e("s_lshl2_add_u32 s%d, s%d, s%d" % (sTa, sTa, sTb))
    k.e("s_lshr_b32 s%d, s2, 5" % sMtA)
    k.e("s_and_b32 s%d, s%d, 15" % (sNtA, sTa))
    k.e("s_lshr_b32 s%d, s%d, 4" % (sIsV, sTa))
    k.e("s_movk_i32 s%d, 1024" % jK.sPitchA)
    k.e("s_movk_i32 s%d, 8192" % jK.sPitchB)
    k.e("s_movk_i32 s%d, 128" % jK.sAstep)
    k.e("s_mov_b32 s%d, %d" % (jK.sBstep, 64 * 8192))
    k.e("s_mov_b32 s%d, 0" % jK.sAoff)
    k.e("s_mov_b32 s%d, 0" % jK.sBoff)
    gemm_setup_common(k, g)
    gemm_setup_job(k, g, jK)
    k.e("s_waitcnt lgkmcnt(0)")
    k.e("s_lshl_b32 s%d, s%d, 18" % (sTa, sMtA))
    k.e("s_sub_u32 s%d, %d, s%d" % (sTb, 2048 * 1024, sTa))
    srd(k, jK.sA, sCKV, "s%d" % sTa, "s%d" % sTb)
    k.e("s_cmp_eq_u32 s%d, 0" % sIsV)
    k.e("s_cselect_b32 s78, s%d, s%d" % (sWUK, sWUV))
    k.e("s_cselect_b32 s79, s%d, s%d" % (sWUK + 1, sWUV + 1))
    k.e("s_lshl_b32 s%d, s%d, 9" % (sTa, sNtA))
    k.e("s_sub_u32 s%d, %d, s%d" % (sTb, 512 * 8192, sTa))
    srd(k, jK.sB, 78, "s%d" % sTa, "s%d" % sTb)
    srd(k, sLnX, sX, 0, 4 * MB)
    k.e("s_lshl3_add_u32 s%d, s2, s%d" % (sRow, g.sWave))

    def pf(base, nbytes, off):
        def f():
            srd(k, sPf, base, 0, nbytes)
            k.e("s_mov_b32 s%d, %d" % (sPfOff, off))
            k.e("buffer_load_dword v%d, v%d, %s, s%d offen" % (vDummy, vPf, sr(sPf, 4), sPfOff))
        return f
    PFW = 1024 * 64 << PFS

    def pf_all(base, nbytes):
        return [pf(base, nbytes, o) for o in range(0, nbytes, PFW)]

    k.e("s_and_b32 s%d, s%d, 3" % (sTa, g.sWave))
    k.e("s_lshl2_add_u32 s%d, s2, s%d" % (sTa, sTa))
    k.e("s_lshl_b32 s%d, s%d, %d" % (sTa, sTa, 6 + PFS))
    k.e("v_lshlrev_b32 v%d, %d, v%d" % (vPf, PFS - 4, g.vLane16))
    k.e("v_add_u32 v%d, s%d, v%d" % (vPf, sTa, vPf))
    k.e("s_cmp_ge_u32 s%d, 4" % g.sWave)
    k.e("s_cbranch_scc1 L_pj_startP")
    for s_ in range(2):
        for f in dma_list(k, g, jK, s_, "dma%d" % s_):
            f()
    ln_load(k, g)
    vmqD = list(k.vmq)
    k.e("s_branch L_pj_start2")
    k.label("L_pj_startP")
    k.vmq = []
    labn = k.newlabel("non1")
    k.e("v_mov_b32 v%d, 0" % (vPk + 1))
    k.e("v_mov_b32 v%d, 0" % (vPk + 3))
    k.e("s_cmp_lg_u32 s%d, 7" % g.sWave)
    k.e("s_cbranch_scc1 %s" % labn)
    k.e("s_memrealtime vcc")
    srd(k, sPf, sDBG, 0, 256)
    k.e("s_waitcnt lgkmcnt(0)")
    k.e("v_mov_b32 v%d, vcc_lo" % vPk)
    k.e("v_or_b32 v%d, 1, v%d" % (vPk, vPk))
    k.e("v_mov_b32 v%d, v%d" % (vPk + 2, vPk))
    k.e("s_mov_b64 exec, 1")
    k.e("buffer_atomic_cmpswap %s, v%d, %s, 0 offen sc0 sc1" % (vr(vPk, 2), vPk + 3, sr(sPf, 4)))
    k.e("s_mov_b64 exec, -1")
    k.label(labn)
    ln_load(k, g)
    vmqP = list(k.vmq)
    for f in pf_all(sCKV, 2 * MB) + pf_all(sWUK, 4 * MB) + pf_all(sWUV, 4 * MB):
        f()
        vmqP.append("pf")
    if os.environ.get("CODEPF", "0") == "1":
        k.e("s_getpc_b64 s[78:79]")
        k.label("L_pj_pc")
        k.e("s_sub_u32 s78, s78, L_pj_pc-mega_kernel")
        k.e("s_subb_u32 s79, s79, 0")
        srd(k, sPf, 78, 0, "L_code_end-mega_kernel")
        k.e("s_and_b32 s%d, s%d, 3" % (sTa, g.sWave))
        k.e("s_lshl_b32 s%d, s%d, 13" % (sTa, sTa))
        k.e("v_lshlrev_b32 v%d, 3, v%d" % (vPoll, g.vLane16))
        for i in range(4):
            k.e("buffer_load_dword v%d, v%d, %s, s%d offen" % (vDummy, vPoll, sr(sPf, 4), sTa))
            k.e("s_add_u32 s%d, s%d, 32768" % (sTa, sTa))
            vmqP.append("pf")
    k.label("L_pj_start2")
    srd(k, sLnO, sWS, WS_XN, 4 * MB)
    srd(k, sDb, sWS, WS_FLAGS, 65536)
    k.e("s_and_b32 s%d, s2, 7" % sTa)
    k.e("s_bfe_u32 s%d, s2, 0x20003" % sTb)
    k.e("s_lshl2_add_u32 s%d, s%d, s%d" % (sHeadB, sTa, sTb))
    k.e("s_lshr_b32 s%d, s2, 5" % sPiB)
    k.e("s_cmp_lt_u32 s%d, 28" % sHeadB)
    k.e("s_cselect_b32 s%d, 1, 0" % sHv)
    k.e("s_movk_i32 s%d, 8192" % jB.sPitchB)
    k.e("s_movk_i32 s%d, 4096" % jB.sAstep)
    k.e("s_mov_b32 s%d, %d" % (jB.sBstep, 64 * 8192))
    k.e("s_mov_b32 s76, %d" % (64 * 7168))
    k.e("s_mov_b32 s%d, 0" % jB.sAoff)
    k.e("s_mov_b32 s%d, 65536" % jB.sAoff2)
    k.e("s_mov_b32 s%d, 0" % jB.sBoff)
    k.e("s_mov_b32 s%d, 0" % jB.sBoff2)
    k.e("s_sub_u32 s%d, 15, s%d" % (sTa, sPiB))
    k.e("s_sub_u32 s%d, s%d, 1" % (sTb, sPiB))
    k.e("s_cmp_lt_u32 s%d, 4" % g.sVW)
    k.e("s_cselect_b32 s%d, s%d, s%d" % (sTa, sTa, sTb))
    k.e("s_lshl2_add_u32 s%d, s%d, s%d" % (sTa, sTa, g.sVW))
    k.e("s_lshl_b32 s%d, s%d, 16" % (sTa, sTa))
    k.e("v_add_u32 v%d, s%d, v%d" % (jB.vDA, sTa, g.vLane16))
    k.e("s_lshl_b32 s%d, s%d, 14" % (sTa, g.sWm))
    k.e("v_add_u32 v%d, s%d, v%d" % (jB.vRA, sTa, g.vLane16))
    srd(k, jB.sA, sWS, WS_XN, 4 * MB)
    k.e("s_lshl_b32 s%d, s%d, 8" % (sTa, sHeadB))
    k.e("s_sub_u32 s%d, %d, s%d" % (sTb, 8 * MB, sTa))
    srd(k, jB.sB, sWQ, "s%d" % sTa, "s%d" % sTb)
    k.e("s_lshr_b32 s%d, s%d, 1" % (sTa, g.sWn))
    k.e("s_lshl1_add_u32 s%d, s%d, s%d" % (sTa, sNtA, sTa))
    k.e("s_lshl_b32 s%d, s%d, 19" % (sStA, sTa))
    k.e("s_lshl_b32 s%d, s%d, 3" % (sTa, sMtA))
    k.e("s_lshl2_add_u32 s%d, s%d, s%d" % (sTa, g.sWm, sTa))
    k.e("s_lshl_b32 s%d, s%d, 13" % (sTa, sTa))
    k.e("s_add_u32 s%d, s%d, s%d" % (sStA, sStA, sTa))
    k.e("s_and_b32 s%d, s%d, 1" % (sTa, g.sWn))
    k.e("s_lshl_b32 s%d, s%d, 12" % (sTa, sTa))
    k.e("s_add_u32 s%d, s%d, s%d" % (sStA, sStA, sTa))
    k.e("s_lshl_b32 s%d, s%d, 24" % (sTa, sIsV))
    k.e("s_add_u32 s%d, s%d, %d" % (sTa, sTa, WS_K))
    srd(k, g.sO, sWS, "s%d" % sTa, 16 * MB)

    def flag(off_expr_emit, imms, wave=4):
        lab = k.newlabel("nosig")
        k.e("s_cmp_lg_u32 s%d, %d" % (g.sWave, wave))
        k.e("s_cbranch_scc1 %s" % lab)
        off_expr_emit(lab)
        k.e("v_mov_b32 v216, 0")
        k.e("v_mov_b32 v217, s%d" % sNonce)
        k.e("s_mov_b64 exec, 1")
        for imm in imms:
            k.e("s_add_u32 s%d, s%d, %d" % (sTa, sTa, imm))
            k.e("buffer_store_dword v217, v216, %s, s%d offen sc1" % (sr(sDb, 4), sTa))
        k.e("s_mov_b64 exec, -1")
        k.label(lab)

    def signal():
        def off(lab):
            if FORCE_HELP & 1:
                k.e("s_and_b32 s%d, s2, 15" % sTa)
                k.e("s_cmp_eq_u32 s%d, 3" % sTa)
                k.e("s_cbranch_scc1 %s" % lab)
            k.e("s_lshl_b32 s%d, s2, 2" % sTa)
        flag(off, [FL_LN])

        def off2(lab):
            k.e("s_lshl_b32 s%d, s2, 2" % sTa)
        flag(off2, [FL_PS])

    def signal_kv(wave=4):
        def off(lab):
            k.e("s_lshl4_add_u32 s%d, s%d, s%d" % (sTa, sIsV, sNtA))
            k.e("s_lshl3_add_u32 s%d, s%d, s%d" % (sTa, sTa, sMtA))
            k.e("s_lshl_b32 s%d, s%d, 2" % (sTa, sTa))
        flag(off, [FL_KV], wave)

    def nonce2():
        lab = k.newlabel("non2")
        k.e("s_cmp_lg_u32 s%d, 7" % g.sWave)
        k.e("s_cbranch_scc1 %s" % lab)
        k.e("v_cmp_eq_u32 vcc, 0, v%d" % vPk)
        k.e("v_mov_b32 v%d, %d" % (vPk + 1, NONCEW))
        k.e("s_nop 0")
        k.e("v_cndmask_b32 v%d, v%d, v%d, vcc" % (vPk, vPk, vPk + 2))
        k.e("s_mov_b64 exec, 1")
        k.e("ds_write_b32 v%d, v%d" % (vPk + 1, vPk))
        k.e("s_mov_b64 exec, -1")
        k.label(lab)

    def nonce3():
        k.e("v_mov_b32 v%d, %d" % (vPk + 1, NONCEW))
        k.lds_op("ds_read_b32 v%d, v%d" % (vPk, vPk + 1), [vPk])

    def nonce4():
        k.lds_need([vPk])
        k.e("v_readfirstlane_b32 s%d, v%d" % (sNonce, vPk))

    def bias_loads():
        out = []

        def setup():
            k.e("s_mul_i32 s%d, s%d, s%d" % (sTa, sHeadB, sHv))
            k.e("s_lshl_b32 s%d, s%d, 8" % (sTa, sTa))
            k.e("s_lshl_b32 s%d, s%d, 6" % (sTb, g.sWn))
            k.e("s_add_u32 s%d, s%d, s%d" % (sTa, sTa, sTb))
            k.e("s_sub_u32 s%d, %d, s%d" % (sTb, 3584 * 2, sTa))
            srd(k, sLnX, sB1, "s%d" % sTa, "s%d" % sTb)
            k.e("v_bfe_u32 v18, v0, 5, 1")
            k.e("v_lshlrev_b32 v18, 3, v18")
        out.append(setup)
        for gq in range(4):
            out.append(lambda gq=gq: k.vm_op("buffer_load_dwordx2 %s, v18, %s, 0 offen offset:%d" % (vr(vPk + gq * 2, 2), sr(sLnX, 4), gq * 16), "bias"))
        return out

    def bias_unpack():
        out = [lambda: k.vm_need(["bias"])]
        for r in range(16):
            src = vPk + (r >> 2) * 2 + ((r & 3) >> 1)
            d = vBias + 16 + r
            if r & 1:
                out.append(lambda d=d, src=src: k.e("v_and_b32 v%d, 0xffff0000, v%d" % (d, src)))
            else:
                out.append(lambda d=d, src=src: k.e("v_lshlrev_b32 v%d, 16, v%d" % (d, src)))
        return out

    def poll_issue():
        k.vm_op("buffer_load_dwordx4 %s, v%d, %s, 0 offen offset:%d sc1" % (vr(vRaw, 4), g.vLane16, sr(sDb, 4), FL_LN), "poll")

    slow = []

    def poll_eval(vRaw=vRaw):
        k.e("v_xor_b32 v%d, s%d, v%d" % (vRaw, sNonce, vRaw))
        k.e("v_xor_b32 v%d, s%d, v%d" % (vRaw + 1, sNonce, vRaw + 1))
        k.e("v_xor_b32 v%d, s%d, v%d" % (vRaw + 2, sNonce, vRaw + 2))
        k.e("v_xor_b32 v%d, s%d, v%d" % (vRaw + 3, sNonce, vRaw + 3))
        k.e("v_or3_b32 v%d, v%d, v%d, v%d" % (vRaw + 4, vRaw, vRaw + 1, vRaw + 2))
        k.e("v_or_b32 v%d, v%d, v%d" % (vRaw + 4, vRaw + 4, vRaw + 3))
        k.e("v_cmp_ne_u32 vcc, 0, v%d" % (vRaw + 4))

    def first_missing(sdst, stmp, vRaw=vRaw):
        k.e("s_ff1_i32_b64 s%d, vcc" % stmp)
        k.e("v_cmp_ne_u32 vcc, 0, v%d" % (vRaw + 2))
        k.e("s_nop 1")
        k.e("v_cndmask_b32 v%d, 3, 2, vcc" % (vRaw + 4))
        k.e("v_cmp_ne_u32 vcc, 0, v%d" % (vRaw + 1))
        k.e("s_nop 1")
        k.e("v_cndmask_b32 v%d, v%d, 1, vcc" % (vRaw + 4, vRaw + 4))
        k.e("v_cmp_ne_u32 vcc, 0, v%d" % vRaw)
        k.e("s_nop 1")
        k.e("v_cndmask_b32 v%d, v%d, 0, vcc" % (vRaw + 4, vRaw + 4))
        k.e("s_nop 1")
        k.e("v_readlane_b32 s%d, v%d, s%d" % (sdst, vRaw + 4, stmp))
        k.e("s_nop 3")
        k.e("s_lshl2_add_u32 s%d, s%d, s%d" % (sdst, stmp, sdst))
        k.e("s_cmp_lt_i32 s%d, 0" % stmp)
        k.e("s_cselect_b32 s%d, -1, s%d" % (sdst, sdst))

    def poll_check():
        lab, back = k.newlabel("pollslow"), k.newlabel("pollback")
        poll_eval()
        k.e("s_cbranch_vccnz %s" % lab)
        k.label(back)
        slow.append((lab, back))

    def trk(f):
        def h():
            f()
            k.vmq.append("pf")
        return h

    quads = [208 + 4 * i for i in range(12)] + [2, 6, 10, 16]
    vPS = 208

    def ps_issue():
        lab = k.newlabel("nops")
        k.e("s_cmp_lg_u32 s%d, 0" % g.sWave)
        k.e("s_cbranch_scc1 %s" % lab)
        k.e("buffer_load_dwordx4 %s, v%d, %s, 0 offen offset:%d sc1" % (vr(vPS, 4), g.vLane16, sr(sDb, 4), FL_PS))
        k.label(lab)

    def ps_eval():
        lab = k.newlabel("nops2")
        k.e("s_cmp_lg_u32 s%d, 0" % g.sWave)
        k.e("s_cbranch_scc1 %s" % lab)
        poll_eval(vPS)
        first_missing(78, 79, vPS)
        k.e("v_mov_b32 v%d, s78" % vPS)
        k.e("v_mov_b32 v%d, %d" % (vPS + 1, NONCEW + 4))
        k.e("ds_write_b32 v%d, v%d" % (vPS + 1, vPS))
        k.label(lab)

    def ps_read():
        k.e("v_mov_b32 v%d, %d" % (vPS + 1, NONCEW + 4))
        k.lds_op("ds_read_b32 v%d, v%d" % (vPS, vPS + 1), [vPS])
        k.lds_need([vPS])
        k.e("v_readfirstlane_b32 s%d, v%d" % (sHelp, vPS))

    def kv_poll():
        AT.kv_flag_addr(k, 17, 16, 2, sTa, sTb)
        k.vm_op("buffer_load_dword v16, v17, %s, 0 offen sc1" % sr(sDb, 4), "kvp")

    STG = g.lds_bytes
    sStD = 61
    vStg = 20

    def kvstage(i, slot, idx):
        def f():
            if i == 0:
                k.e("s_and_b32 s%d, s%d, 3" % (sTa, g.sWave))
                k.e("s_lshl_b32 s%d, s%d, 11" % (sTa, sTa))
                k.e("s_add_u32 s%d, s%d, %d" % (sTa, sTa, STG))
                k.e("v_add_u32 v%d, s%d, v%d" % (vStg, sTa, g.vLane16))
            k.lds_op("ds_write_b128 v%d, %s offset:%d" % (vStg, vr(quads[i], 4), slot * 8192 + idx * 1024))
        return f

    def kvfetch(i, slot, idx):
        def f():
            if i == 0:
                k.e("s_and_b32 s%d, s%d, 3" % (sTa, g.sWave))
                k.e("s_lshl_b32 s%d, s%d, 11" % (sTa, sTa))
                k.e("s_add_u32 s%d, s%d, %d" % (sTa, sTa, STG))
                k.e("v_add_u32 v%d, s%d, v%d" % (vStg, sTa, g.vLane16))
                k.e("s_sub_u32 s%d, s%d, 32768" % (sStD, sStA))
            k.lds_op("ds_read_b128 %s, v%d offset:%d" % (vr(quads[i], 4), vStg, slot * 8192 + idx * 1024), rng(quads[i], 4))
        return f

    def kvstore2(i):
        def f():
            r = i % 4
            k.lds_need(rng(quads[i], 4))
            k.vm_op("buffer_store_dwordx4 %s, v%d, %s, s%d offen offset:%d%s" % (vr(quads[i], 4), g.vLane16, sr(g.sO, 4), sStD, r * 1024, TRFLAGS), "st")
            if r == 3:
                k.e("s_add_u32 s%d, s%d, 8192" % (sStD, sStD))
        return f

    def kvstore(i):
        def f():
            tm, r = i // 4, i % 4
            k.vm_op("buffer_store_dwordx4 %s, v%d, %s, s%d offen offset:%d%s" % (vr(quads[i], 4), g.vLane16, sr(g.sO, 4), sStA, r * 1024, TRFLAGS), "st")
            if r == 3:
                k.e("s_add_u32 s%d, s%d, 8192" % (sStA, sStA))
        return f

    stamp(k, 2)
    k.e("s_cmp_ge_u32 s%d, 4" % g.sWave)
    k.e("s_cbranch_scc1 L_pj_roleP")
    for role in ("D", "P"):
        D = role == "D"
        if not D:
            k.label("L_pj_roleP")
        k.ldsq = []
        k.vmq = list(vmqD if D else vmqP)
        if D:
            k.e("s_mul_i32 s%d, s%d, s%d" % (sTa, sHeadB, sHv))
            k.e("s_lshl_b32 s%d, s%d, 8" % (sTa, sTa))
            k.e("s_sub_u32 s%d, %d, s%d" % (sTb, 1024 * 7168, sTa))
            srd(k, sPf, sW1, "s%d" % sTa, "s%d" % sTb)
            k.e("s_movk_i32 s78, 7168")
            setup_splitB_dma(k, g, jB, 16)
            k.vm_need(["dma0"])
        k.e("s_barrier")
        stamp(k, 3)
        if os.environ.get("PJT"):
            stamp(k, 2, force=True)
        state0 = (list(k.ldsq), list(k.vmq))
        k.e("s_cmp_eq_u32 s%d, 0" % sIsV)
        k.e("s_cbranch_scc0 L_pj_V%s" % role)
        end_state = None
        pfB = [trk(f) for f in pf_all(sWQ, 8 * MB) + pf_all(sW1, 1024 * 7168)]
        pfB = pfB[0::2] + pfB[1::2] if len(pfB) == 4 else pfB
        pfO = [trk(f) for f in pf_all(sWO, 8 * MB) + pf_all(sW2, 3584 * 2048)]
        for jA in (jK, jV):
            if jA is jV:
                k.label("L_pj_V%s" % role)
                k.ldsq, k.vmq = list(state0[0]), list(state0[1])
            for f in read_list(k, g, jA, 0, 0, 0):
                f()
            lnp = split_list(ln_steps(k, g, via_lds=True), 6)
            lns = ln_store_steps(k, g)
            carry = []
            pfsplit = split_list(pfB, 4)
            for t in range(8):
                extra = {}
                post = None
                need = ["dma%d" % (t + 1)]
                if t == 0:
                    extra = {0: lnp[0], 1: lnp[1], 2: lnp[2]}
                elif t == 1:
                    extra = {0: lnp[3], 1: lnp[4], 2: lnp[5]}
                elif t == 2:
                    extra = {} if D else {0: lns[0:2], 1: lns[2:3], 2: [nonce2]}
                elif t == 3:
                    extra = {0: [nonce3], 1: [nonce4]}
                    need.append("lnst")
                    if not D:
                        post = signal
                elif t == 5 and D:
                    extra = {2: [poll_issue]}
                elif t == 6 and D:
                    need.append("poll")
                    post = poll_check
                if t == 7:
                    post = lambda: setup_splitB_reads(k, g, 16)
                if not D and 3 <= t < 7:
                    extra[3] = pfsplit[t - 3]
                if os.environ.get("PJT") == "A":
                    post0 = post
                    post = (lambda post0=post0, t=t: (stamp(k, 3 + t, force=True), post0() if post0 else None))
                jd = (jA if t < 6 else jB) if D else None
                jn = jA if t < 7 else jB
                carry = gemm_body(k, g, t % 2, jA, jn, jd, need, "dma%d" % (t + 2), extra=extra,
                                  cinit=(lambda tm, tn: "0") if t == 0 else None, post_barrier=post,
                                  carry=carry, ncarry=NCARRY if D else 0)
            st = (list(k.ldsq), list(k.vmq))
            if end_state is None:
                end_state = st
                k.e("s_branch L_pj_T%s" % role)
            else:
                assert st == end_state
        k.label("L_pj_T%s" % role)
        if DIAG:
            stamp(k, 5)
        cnt = [0]

        def pre(tm, tn):
            for p in range(2):
                pack_only(k, g.acc(tm, tn) + 8 * p, quads[cnt[0]])
                cnt[0] += 1
        PFO0 = int(os.environ.get("PFO0", "19"))
        PFON = int(os.environ.get("PFON", "3"))
        pfsplit = split_list(pfO, PFON)
        for t in range(8, 24):
            last = t == 23
            NST = int(os.environ.get("NST", "10"))
            st0, st1 = ((t - 8) * 16) // NST, ((t - 7) * 16) // NST
            sts = [kvstore(i) for i in range(st0, min(st1, 16))] if t < 8 + NST else []
            ex = {0: sts[:1], 1: sts[1:], 2: []}
            needB = ["dma%d" % (t + 1)]
            postB = None
            if t == 9 + NST:
                needB.append("st")
                if not D:
                    postB = signal_kv
            if os.environ.get("PJT") == "B" and t < 20:
                postB = (lambda post0=postB, t=t: (stamp(k, 2 + t - 8, force=True), post0() if post0 else None))
            if t == 15 and D:
                ex[2] = ex[2] + [ps_issue]
            if t == 17 and D:
                ex[2] = [ps_eval]
            if t == 19:
                ex[2] = [ps_read]
            if t == 22:
                ex[2] = [kv_poll]
            if not D and PFO0 <= t < PFO0 + PFON:
                ex[3] = pfsplit[t - PFO0]
            if t == 20:
                ex[0] = ex[0] + bias_loads()
            if t == 21:
                bu = split_list(bias_unpack(), 3)
                ex[0] = bu[0]; ex[1] = bu[1]; ex[2] = bu[2]
            carry = gemm_body(k, g, t % 2, jB, None if last else jB, jB if (t < 22 and D) else None, needB, "dma%d" % (t + 2), extra=ex, post_barrier=postB,
                              cinit=(lambda tm, tn: "0") if t == 8 else None, pre=pre if t == 8 else None,
                              carry=carry, ncarry=NCARRY if D else 0)
        if D:
            k.e("s_branch L_pj_epi")
    k.label("L_pj_epi")
    k.e("s_waitcnt lgkmcnt(0)")
    k.e("s_barrier")
    stamp(k, 4)
    eO, sFo, sWv, sEm, sEn = 64, 68, 69, 70, 71
    k.e("s_mov_b32 s%d, s%d" % (sWv, g.sWave))
    k.e("s_mov_b32 s%d, s%d" % (sEm, g.sWm))
    k.e("s_mov_b32 s%d, s%d" % (sEn, g.sWn))
    k.e("s_lshl_b32 s%d, s%d, 5" % (sFo, sPiB))
    k.e("s_add_u32 s%d, s%d, s%d" % (sFo, sFo, sHeadB))
    k.e("s_lshl_b32 s%d, s%d, 2" % (sFo, sFo))
    k.e("s_add_u32 s%d, s%d, %d" % (sFo, sFo, FL_QH))
    srd(k, eO, sWS, WS_AH, 2048 * 7680 * 2)
    k.e("s_sub_u32 s%d, 15, s%d" % (sTa, sPiB))
    k.e("s_cmp_eq_u32 s%d, 0" % sEm)
    k.e("s_cselect_b32 s%d, s%d, s%d" % (sTa, sTa, sPiB))
    k.e("s_mul_i32 s%d, s%d, 1920" % (sTa, sTa))
    k.e("s_lshl3_add_u32 s%d, s%d, s%d" % (sStA, sHeadB, sTa))
    k.e("s_lshl1_add_u32 s%d, s%d, s%d" % (sStA, sEn, sStA))
    k.e("s_add_u32 s%d, s%d, 256" % (sStA, sStA))
    k.e("s_lshl_b32 s%d, s%d, 10" % (sStA, sStA))
    k.e("s_mov_b32 s%d, s2" % AT.sTask)
    AT.attn_setup(k)
    k.e("s_cmp_ge_i32 s%d, 0" % sHelp)
    k.e("s_cbranch_scc1 L_pj_noearly0")
    k.e("s_waitcnt vmcnt(0)")
    AT.spin_flags(k, 17, 16, first_loaded=True)
    for f in AT.dma_k(k, 0) + AT.dma_v(k, 0) + AT.dma_k(k, 1):
        f()
    k.label("L_pj_noearly0")
    stamp(k, 2)
    AT.attn_setup2(k)
    k.e("s_mov_b32 s78, 0x%08x" % f32bits(QSCALE))
    k.e("s_mov_b32 s79, 0x%08x" % f32bits(QSCALE))
    k.e("s_lshl_b32 s%d, s%d, 15" % (sEm, sEm))
    k.e("s_lshl_b32 s%d, s%d, 11" % (sEn, sEn))
    k.e("s_add_u32 s%d, s%d, s%d" % (sEm, sEm, sEn))
    k.e("s_add_u32 s%d, s%d, 98304" % (sEm, sEm))
    k.e("v_add_u32 v14, s%d, v%d" % (sEm, g.vLane16))
    for tm in range(4):
        for p in range(2):
            src = g.acc(tm, 0) + 8 * p
            for i in range(4):
                k.e("v_pk_mul_f32 %s, %s, s[78:79]" % (vr(src + 2 * i, 2), vr(src + 2 * i, 2)))
            pack_only(k, src, src)
            k.e("ds_write_b128 v14, %s offset:%d" % (vr(src, 4), tm * 8192 + p * 1024))
    k.e("s_cmp_eq_u32 s%d, 0" % sHv)
    k.e("s_cbranch_scc1 L_pj_H0")
    k.e("s_mov_b32 s78, 0x%08x" % f32bits(GELU_C2))
    k.e("s_mov_b32 s79, 0x%08x" % f32bits(GELU_C2))
    vC = 64
    k.e("v_mov_b32 v%d, 0x%08x" % (vC, f32bits(GELU_C1)))
    k.e("v_mov_b32 v%d, 0x%08x" % (vC + 1, f32bits(GELU_C1)))
    k.e("v_mov_b32 v%d, 1.0" % (vC + 2))
    k.e("v_mov_b32 v%d, 1.0" % (vC + 3))
    c1 = vr(vC, 2)
    one2 = vr(vC + 2, 2)
    tq = 0
    for tm in range(4):
        for p in range(2):
            src = g.acc(tm, 1) + 8 * p
            tb = 48 + 8 * (tq % 2)
            for i in range(4):
                k.e("v_pk_add_f32 %s, %s, %s" % (vr(src + 2 * i, 2), vr(src + 2 * i, 2), vr(vBias + 16 + 8 * p + 2 * i, 2)))
            for i in range(4):
                k.e("v_pk_mul_f32 %s, %s, %s" % (vr(tb + 2 * i, 2), vr(src + 2 * i, 2), vr(src + 2 * i, 2)))
            for i in range(4):
                k.e("v_pk_fma_f32 %s, %s, s[78:79], %s" % (vr(tb + 2 * i, 2), vr(tb + 2 * i, 2), c1))
            for i in range(4):
                k.e("v_pk_mul_f32 %s, %s, %s" % (vr(tb + 2 * i, 2), vr(tb + 2 * i, 2), vr(src + 2 * i, 2)))
            for i in range(8):
                k.e("v_exp_f32 v%d, v%d" % (tb + i, tb + i))
            for i in range(4):
                k.e("v_pk_add_f32 %s, %s, %s" % (vr(tb + 2 * i, 2), vr(tb + 2 * i, 2), one2))
            for i in range(8):
                k.e("v_rcp_f32 v%d, v%d" % (tb + i, tb + i))
            for i in range(4):
                k.e("v_pk_mul_f32 %s, %s, %s" % (vr(src + 2 * i, 2), vr(src + 2 * i, 2), vr(tb + 2 * i, 2)))
            pack_only(k, src, src)
            tq += 1
    k.e("s_waitcnt vmcnt(0)")
    for tm in range(4):
        for p in range(2):
            src = g.acc(tm, 1) + 8 * p
            k.e("buffer_store_dwordx4 %s, v%d, %s, s%d offen offset:%d sc1" % (vr(src, 4), g.vLane16, sr(eO, 4), sStA, p * 1024))
        if tm < 3:
            k.e("s_add_u32 s%d, s%d, %d" % (sStA, sStA, 480 * 1024))
    k.e("s_waitcnt lgkmcnt(0)")
    k.e("s_branch L_pj_fin")
    k.label("L_pj_H0")
    k.e("s_waitcnt vmcnt(0) lgkmcnt(0)")
    k.label("L_pj_fin")
    stamp(k, 3)
    k.e("s_cmp_ge_i32 s%d, 0" % sHelp)
    k.e("s_cbranch_scc1 L_pj_help")
    k.e("s_barrier")
    k.e("s_mul_i32 s%d, s%d, s%d" % (AT.sPend, sFo, sHv))
    k.e("s_lshl_b32 s78, s%d, 13" % AT.sWq)
    k.e("s_add_u32 s78, s78, 98304")
    k.e("v_add_u32 v14, s78, v%d" % g.vLane16)
    for C in range(8):
        k.e("ds_read_b128 %s, v14 offset:%d" % (vr(AT.vQ + 4 * C, 4), C * 1024))
    stamp(k, 7)
    if DIAG:
        k.e("v_mov_b32 v14, v78")
        k.e("v_mov_b32 v15, v79")
    k.e("s_branch L_at_fast")
    k.label("L_pj_help")
    k.e("s_waitcnt vmcnt(0)")
    k.e("s_barrier")
    lab = k.newlabel("noqh")
    k.e("s_cmp_lg_u32 s%d, 4" % sWv)
    k.e("s_cbranch_scc1 %s" % lab)
    k.e("v_mov_b32 v%d, 0" % (vPk + 4))
    k.e("v_mov_b32 v%d, s%d" % (vPk + 5, sNonce))
    k.e("s_mov_b64 exec, 1")
    k.e("buffer_store_dword v%d, v%d, %s, s%d offen sc1" % (vPk + 5, vPk + 4, sr(sDb, 4), sFo))
    k.e("s_mov_b64 exec, -1")
    k.label(lab)
    k.e("s_mov_b32 s2, s%d" % sHelp)
    k.e("s_branch L_pj_task")

    def emit_slow():
        for lab, back in slow:
            spin, helpl, rowl = k.newlabel("spin"), k.newlabel("help"), k.newlabel("rowl")
            k.label(lab)
            k.e("s_mov_b32 s78, 0")
            k.label(spin)
            k.e("buffer_load_dwordx4 %s, v%d, %s, 0 offen offset:%d sc1" % (vr(vRaw, 4), g.vLane16, sr(sDb, 4), FL_LN))
            k.e("s_waitcnt vmcnt(0)")
            poll_eval()
            k.e("s_cbranch_vccz %s" % back)
            k.e("s_add_u32 s78, s78, 1")
            k.e("s_cmp_ge_u32 s78, 32")
            k.e("s_cbranch_scc1 %s" % helpl)
            k.e("s_sleep 8")
            k.e("s_branch %s" % spin)
            k.label(helpl)
            first_missing(79, sTa)
            k.e("s_lshl_b32 s%d, s79, 3" % sRow)
            k.e("s_mov_b32 s78, 8")
            k.label(rowl)
            sv = (list(k.ldsq), list(k.vmq))
            k.vmq = []
            ln_load(k, g)
            for f in ln_steps(k, g):
                f()
            k.e("s_add_u32 s%d, s%d, 1" % (sRow, sRow))
            k.e("s_sub_u32 s78, s78, 1")
            k.e("s_cmp_lg_u32 s78, 0")
            k.e("s_cbranch_scc1 %s" % rowl)
            k.e("s_waitcnt vmcnt(0)")
            k.e("s_lshl_b32 s79, s79, 2")
            k.e("v_mov_b32 v%d, s79" % g.vTmp)
            k.e("v_mov_b32 v%d, s%d" % (g.vTmp + 1, sNonce))
            k.e("s_mov_b64 exec, 1")
            k.e("buffer_store_dword v%d, v%d, %s, 0 offen offset:%d sc1" % (g.vTmp + 1, g.vTmp, sr(sDb, 4), FL_LN))
            k.e("s_mov_b64 exec, -1")
            k.ldsq, k.vmq = sv
            k.e("s_mov_b32 s78, 31")
            k.e("s_branch %s" % spin)
    tail_code.append(emit_slow)
```

```python
import struct
from asmlib import *

MB = 1 << 20
WS_Q = 4 * MB
WS_K = 20 * MB
WS_VT = 36 * MB
WS_AH = 52 * MB
ARG_WS = 104
STF = os.environ.get("STFLAGS", "sc1")


def f32bits(x):
    return struct.unpack("<I", struct.pack("<f", x))[0]


vL16 = 1
vKA = 2
vVA = 3
vL0, vL1 = 4, 5
vMax = 6
vT0 = 7
vThr = 8
vNeg = 9
vD = 10
vT1 = 11
vT2 = 12
vT3 = 13
vQ = 16
vKf = 48
vVf = 80
vS = [112, 128]
vNm = 144
vP = 160
vE = 168
vLa, vLb = 174, 175
vO = 176
NV = 248
sK, sV, sO, sQ = 4, 8, 12, 16
sJ, sJL, sKoff, sVoff, sWave, sG, sWq = 20, 21, 22, 23, 24, 25, 26
sM0K, sM0V = 27, 29
sT, sPhase, sHead, sPi = 31, 32, 33, 34
sA, sB = 35, 36
sPar = 37
sMask = 40
sWS = 48
THRESH = 2.0 ** 24
XCH = 131072


def srd(k, d, base, off, nbytes):
    k.e("s_add_u32 s%d, s%d, %s" % (d, base, off))
    k.e("s_addc_u32 s%d, s%d, 0" % (d + 1, base + 1))
    k.e("s_mov_b32 s%d, %s" % (d + 2, nbytes))
    k.e("s_mov_b32 s%d, 0x00020000" % (d + 3))


def kread(k, slot, n):
    out = []
    if "nolds" in os.environ.get("XP", ""):
        return [lambda: None] * 8
    for C in range(8):
        def f(C=C):
            d = vKf + 4 * C
            k.lds_op("ds_read_b128 %s, v%d offset:%d" % (vr(d, 4), vKA, slot * 32768 + n * 8192 + C * 1024), rng(d, 4))
        out.append(f)
    return out


def vread(k, slot, n):
    out = []
    if "nolds" in os.environ.get("XP", ""):
        return [lambda: None] * 8
    for jj in range(2):
        for R in range(4):
            def f(R=R, jj=jj):
                d = vVf + 4 * (jj * 4 + R)
                k.lds_op("ds_read_b128 %s, v%d offset:%d" % (vr(d, 4), vVA, slot * 32768 + n * 8192 + R * 2048 + jj * 1024), rng(d, 4))
            out.append(f)
    return out


def qk(k, sb, zero_c=False):
    out = []
    for C in range(8):
        def f(C=C):
            a = vKf + 4 * C
            k.lds_need(rng(a, 4))
            if C == 0:
                c = "0" if zero_c else vr(vNm, 16)
            else:
                c = vr(vS[sb], 16)
            k.e("v_mfma_f32_32x32x16_bf16 %s, %s, %s, %s" % (vr(vS[sb], 16), vr(a, 4), vr(vQ + 4 * C, 4), c))
        out.append(f)
    return out


def pv(k):
    out = []
    for jj in range(2):
        for R in range(4):
            def f(R=R, jj=jj):
                a = vVf + 4 * (jj * 4 + R)
                k.lds_need(rng(a, 4))
                o = vO + 16 * R
                k.e("v_mfma_f32_32x32x16_bf16 %s, %s, %s, %s" % (vr(o, 16), vr(a, 4), vr(vP + 4 * jj, 4), vr(o, 16)))
            out.append(f)
    return out


XP = os.environ.get("XP", "")


def exp_half(k, sb, h):
    if "noexp" in XP:
        return [lambda: k.e("v_mov_b32 v%d, 0" % (vLa if h == 0 else vLb))] * 9
    S = vS[sb] + 8 * h
    L = vLa if h == 0 else vLb
    out = []
    E = lambda s: (lambda: k.e(s))
    for i in range(4):
        e0, e1 = vE + 2 * (i % 3), vE + 2 * (i % 3) + 1
        out.append(E("v_exp_f32 v%d, v%d" % (e0, S + 2 * i)))
        out.append(E("v_exp_f32 v%d, v%d" % (e1, S + 2 * i + 1)))
        if i > 0:
            p0, p1 = vE + 2 * ((i - 1) % 3), vE + 2 * ((i - 1) % 3) + 1
            out.append(E("v_cvt_pk_bf16_f32 v%d, v%d, v%d" % (vP + 4 * h + i - 1, p0, p1)))
            if i == 1:
                out.append(E("v_add_f32 v%d, v%d, v%d" % (L, p0, p1)))
            else:
                out.append(E("v_add_f32 v%d, v%d, v%d" % (L, L, p0)))
                out.append(E("v_add_f32 v%d, v%d, v%d" % (L, L, p1)))
    p0, p1 = vE + 0, vE + 1
    out.append(E("s_nop 0"))
    out.append(E("v_cvt_pk_bf16_f32 v%d, v%d, v%d" % (vP + 4 * h + 3, p0, p1)))
    out.append(E("v_add_f32 v%d, v%d, v%d" % (L, L, p0)))
    out.append(E("v_add_f32 v%d, v%d, v%d" % (L, L, p1)))
    return out


def max_code(k, sb):
    S = vS[sb]
    k.e("v_max3_f32 v%d, v%d, v%d, v%d" % (vMax, S, S + 1, S + 2))
    k.e("v_max3_f32 v%d, v%d, v%d, v%d" % (vT0, S + 3, S + 4, S + 5))
    for i in range(6, 14, 4):
        k.e("v_max3_f32 v%d, v%d, v%d, v%d" % (vMax, vMax, S + i, S + i + 1))
        k.e("v_max3_f32 v%d, v%d, v%d, v%d" % (vT0, vT0, S + i + 2, S + i + 3))
    k.e("v_max3_f32 v%d, v%d, v%d, v%d" % (vMax, vMax, S + 14, S + 15))
    k.e("v_max_f32 v%d, v%d, v%d" % (vMax, vMax, vT0))
    k.e("v_mov_b32 v%d, v%d" % (vT0, vMax))
    k.e("s_nop 1")
    k.e("v_permlane32_swap_b32 v%d, v%d" % (vT0, vMax))
    k.e("v_max_f32 v%d, v%d, v%d" % (vMax, vMax, vT0))


def mask_code(k, sb, n):
    S = vS[sb]
    for r0 in range(0, 16, 4):
        for i in range(4):
            r = r0 + i
            c = 16 * (r >> 3) + (r & 7) + 32 * n
            k.e("v_cmp_le_i32 %s, %d, v%d" % (sr(sMask + 2 * i, 2), c, vThr))
        for i in range(4):
            r = r0 + i
            k.e("v_cndmask_b32 v%d, v%d, v%d, %s" % (S + r, vNeg, S + r, sr(sMask + 2 * i, 2)))


def dma_k(k, slot):
    out = []
    for j in range(4):
        def f(j=j):
            if j == 0:
                k.e("s_mov_b32 m0, s%d" % (sM0K + slot))
                k.e("s_nop 0")
            k.e("buffer_load_dwordx4 v%d, %s, s%d offen offset:%d lds" % (vD, sr(sK, 4), sKoff, 1024 * j))
            if j == 3:
                k.e("s_add_u32 s%d, s%d, 32768" % (sKoff, sKoff))
        out.append(f)
    return out


def dma_v(k, slot):
    out = []
    for j in range(4):
        def f(j=j):
            if j == 0:
                k.e("s_mov_b32 m0, s%d" % (sM0V + slot))
                k.e("s_nop 0")
            k.e("buffer_load_dwordx4 v%d, %s, s%d offen offset:%d lds" % (vD, sr(sV, 4), sVoff, 1024 * j))
            if j == 3:
                k.e("s_add_u32 s%d, s%d, 32768" % (sVoff, sVoff))
        out.append(f)
    return out


def q_loads(k, sqb):
    k.e("s_lshl2_add_u32 s%d, s%d, s%d" % (sA, sqb, sWq))
    k.e("s_lshl_b32 s%d, s%d, 13" % (sA, sA))
    k.e("s_add_u32 s%d, s%d, 4096" % (sB, sA))
    for C in range(8):
        k.e("buffer_load_dwordx4 %s, v%d, %s, s%d offen offset:%d" % (vr(vQ + 4 * C, 4), vL16, sr(sQ, 4), sA if C < 4 else sB, (C & 3) * 1024))


def check(k, sb, h, other_valid, nredo, slow_blocks):
    lab = k.newlabel("slow")
    back = k.newlabel("back")
    L = vLa if h == 0 else vLb
    if "nochk" not in XP:
        k.e("s_cbranch_vccnz %s" % lab)
    k.label(back)
    k.e("v_add_f32 v%d, v%d, v%d" % (vL0, vL0, L))
    slow_blocks.append((lab, back, sb, h, other_valid, nredo))


def emit_slow(k, lab, back, sb, h, other_valid, nredo):
    S = vS[sb]
    So = vS[sb ^ 1]
    k.label(lab)
    k.e("s_nop 15")
    max_code(k, sb)
    k.e("v_max_f32 v%d, 0, v%d" % (vMax, vMax))
    k.e("v_sub_f32 v%d, 0, v%d" % (vT0, vMax))
    k.e("v_exp_f32 v%d, v%d" % (vT0, vT0))
    for r in range(16):
        k.e("v_sub_f32 v%d, v%d, v%d" % (S + r, S + r, vMax))
    if other_valid:
        for r in range(16):
            k.e("v_sub_f32 v%d, v%d, v%d" % (So + r, So + r, vMax))
    for r in range(16):
        k.e("v_sub_f32 v%d, v%d, v%d" % (vNm + r, vNm + r, vMax))
    k.e("v_mul_f32 v%d, v%d, v%d" % (vL0, vL0, vT0))
    for r in range(64):
        k.e("v_mul_f32 v%d, v%d, v%d" % (vO + r, vO + r, vT0))
    for f in exp_half(k, sb, h):
        f()
    if h == 0:
        for f in exp_half(k, sb, 1)[:nredo]:
            f()
    k.e("s_nop 1")
    k.e("s_branch %s" % back)


def spread(n_items, n_gaps, start=0):
    per = [0] * n_gaps
    m = n_gaps - start
    for i in range(n_items):
        per[start + (i * m) // n_items] += 1
    return per


def merge_fillers(lists_and_plans, n_gaps):
    flat, per = [], []
    idx = [0] * len(lists_and_plans)
    for gph in range(n_gaps):
        cnt = 0
        for li, (lst, plan) in enumerate(lists_and_plans):
            for _ in range(plan[gph]):
                if idx[li] < len(lst):
                    flat.append(lst[idx[li]])
                    idx[li] += 1
                    cnt += 1
        per.append(cnt)
    for li, (lst, plan) in enumerate(lists_and_plans):
        assert idx[li] == len(lst), (li, idx[li], len(lst))
    return flat, per


NB1 = int(os.environ.get("AT_NB1", "8"))


def half_step(k, p, n, last, slow_blocks, dma=None, post_qk=None):
    cur = n
    nxt = cur ^ 1
    do_qk = not (last and n == 1)
    e0 = exp_half(k, cur, 0)
    e1 = exp_half(k, cur, 1)
    cmp0 = lambda: k.e("v_cmp_nge_f32 vcc, s%d, v%d" % (sT, vLa))
    cmp1 = lambda: k.e("v_cmp_nge_f32 vcc, s%d, v%d" % (sT, vLb))
    ea = e0 + [cmp0] + e1[:NB1]
    eb = e1[NB1:] + [cmp1]
    lists = [(vread(k, p, n), [2, 2, 2, 2, 0, 0, 0, 0]), (ea, spread(len(ea), 8))]
    DM = os.environ.get("AT_DM", "AB")
    dmaB = []
    if dma and DM == "B" and not last:
        dmaB, dma = dma, None
    if dma and DM == "AB" and not last:
        dmaB, dma = dma[4:], [x for x in dma[:4] if x is not None]
    if dma:
        lists.append((dma, spread(len(dma), 7, 1) + [0]))
    fl, per = merge_fillers(lists, 8)
    if do_qk:
        interleave(k, qk(k, nxt), fl, per)
    else:
        for f in fl:
            f()
    if post_qk:
        post_qk()
    check(k, cur, 0, do_qk, NB1, slow_blocks)
    k.e("s_nop 0")
    pvl = pv(k)
    kr = kread(k, p ^ 1, n) if not last else []
    lists = [(eb, spread(len(eb), 3) + [0])]
    if kr:
        lists.append((kr[:4], [0, 1, 1, 2]))
    fl, per = merge_fillers(lists, 4)
    interleave(k, pvl[:4], fl, per)
    check(k, cur, 1, do_qk, 0, slow_blocks)
    k.e("s_nop 0")
    tail = list(kr[4:])
    if do_qk:
        if last:
            tail.append(lambda: mask_code(k, nxt, 1))
        elif n == 1:
            nomask = k.newlabel("nomask")

            def maybe_mask():
                k.e("s_add_u32 s%d, s%d, 1" % (sA, sJ))
                k.e("s_cmp_lg_u32 s%d, s%d" % (sA, sJL))
                k.e("s_cbranch_scc1 %s" % nomask)
                mask_code(k, nxt, 0)
                k.label(nomask)
            tail.append(maybe_mask)
    if dmaB:
        if len(dmaB) == 4:
            tail = [tail[0], dmaB[0], tail[1], dmaB[1], tail[2], dmaB[2], tail[3], dmaB[3]] + tail[4:]
            interleave(k, pvl[4:], tail, [2, 2, 2, 3])
        elif len(dmaB) == 2:
            tail = [tail[0], tail[1], dmaB[0], tail[2], tail[3], dmaB[1]] + tail[4:]
            interleave(k, pvl[4:], tail, [2, 2, 2, 1])
        else:
            tail = tail[:4] + dmaB + tail[4:]
            interleave(k, pvl[4:], tail, [3, 3, 2, 2])
    else:
        interleave(k, pvl[4:], tail, [2, 2, 1, 0])


def interval(k, p, last, slow_blocks):
    k.c("==== interval parity %d last=%s" % (p, last))
    if not last:
        skipk = k.newlabel("skipk")
        dk = dma_k(k, p)
        dv = dma_v(k, p ^ 1)

        def dk_all():
            k.e("s_add_u32 s%d, s%d, 2" % (sA, sJ))
            k.e("s_cmp_gt_u32 s%d, s%d" % (sA, sJL))
            k.e("s_cbranch_scc1 %s" % skipk)
            for f in dk:
                f()
            k.label(skipk)
        KU = os.environ.get("AT_KU", "0")
        if KU == "1":
            half_step(k, p, 0, False, slow_blocks, dma=dv + dk)
            half_step(k, p, 1, False, slow_blocks)
        elif KU == "2":
            half_step(k, p, 0, False, slow_blocks, dma=dv[:2] + [None, None] + dv[2:])
            half_step(k, p, 1, False, slow_blocks, dma=dk[:2] + [None, None] + dk[2:])
        else:
            half_step(k, p, 0, False, slow_blocks, dma=None if "nodma" in XP else dv + [dk_all])
            half_step(k, p, 1, False, slow_blocks)
        k.lds_drain("vmcnt(0)")
        if "nobar" not in XP:
            k.e("s_barrier")
        if p == 0:
            pend_signal(k)
    else:
        nonext = k.newlabel("nonext")
        noq = k.newlabel("noq")

        def next_loads():
            k.e("s_cmp_lg_u32 s%d, 0" % sPhase)
            k.e("s_cbranch_scc1 %s" % nonext)
            k.e("s_mov_b32 s%d, 0" % sKoff)
            k.e("s_mov_b32 s%d, 0" % sVoff)
            for f in dma_k(k, p ^ 1) + dma_v(k, p ^ 1):
                f()
            k.label(nonext)

        def next_q():
            k.e("s_cmp_lg_u32 s%d, 0" % sPhase)
            k.e("s_cbranch_scc1 %s" % noq)
            k.e("s_lshl_b32 s%d, s%d, 13" % (sA, sWq))
            k.e("s_add_u32 s%d, s%d, %d" % (sA, sA, XCH))
            k.e("v_add_u32 v%d, s%d, v%d" % (vChk, sA, vL16))
            for C in range(8):
                k.e("ds_read_b128 %s, v%d offset:%d" % (vr(vQ + 4 * C, 4), vChk, C * 1024))
            lq = k.newlabel("noq2")
            k.e("s_branch %s" % lq)
            k.label(noq)
            if "early" in HOOK:
                k.e("s_mov_b64 %s, vcc" % sr(sMask, 2))
                HOOK["early"](p ^ 1)
                k.e("s_mov_b64 vcc, %s" % sr(sMask, 2))
            k.label(lq)
        half_step(k, p, 0, True, slow_blocks, dma=[next_loads], post_qk=next_q)
        k.lds_drain()
        k.e("s_barrier")
        half_step(k, p, 1, True, slow_blocks)
        k.e("s_mov_b32 s%d, %d" % (sPar, p ^ 1))


sPend = 39


def pend_signal(k):
    lab = k.newlabel("nopend")
    k.e("s_cmp_eq_u32 s%d, 0" % sPend)
    k.e("s_cbranch_scc1 %s" % lab)
    k.e("s_lshr_b32 s%d, s%d, 2" % (sA, sPend))
    flag_store(k, sA, 0)
    k.e("s_mov_b32 s%d, 0" % sPend)
    k.label(lab)


def first_subtile(k, p, vmn=0):
    for f in kread(k, p, 0):
        f()
    for f in qk(k, 0, zero_c=True):
        f()
    for f in kread(k, p, 1):
        f()
    k.e("s_nop 7")
    lab = k.newlabel("nomask0")
    k.e("s_cmp_lg_u32 s%d, 0" % sJL)
    k.e("s_cbranch_scc1 %s" % lab)
    mask_code(k, 0, 0)
    k.label(lab)
    max_code(k, 0)
    for r in range(16):
        k.e("v_sub_f32 v%d, v%d, v%d" % (vS[0] + r, vS[0] + r, vMax))
    for r in range(16):
        k.e("v_sub_f32 v%d, 0, v%d" % (vNm + r, vMax))
    k.lds_drain("vmcnt(%d)" % vmn)
    k.e("s_barrier")
    l1, l2 = k.newlabel("ph1"), k.newlabel("ph2")
    k.e("s_cmp_lg_u32 s%d, 0" % sPhase)
    k.e("s_cbranch_scc1 %s" % l1)
    flag_store(k, sTask, FL_AS)
    k.e("s_branch %s" % l2)
    k.label(l1)
    k.e("s_sub_u32 s%d, 15, s%d" % (sA, sPi))
    k.e("s_lshl_b32 s%d, s%d, 5" % (sA, sA))
    k.e("s_add_u32 s%d, s%d, s%d" % (sA, sA, sHead))

    def chk_load():
        k.e("s_movk_i32 s%d, %d" % (sB, FL_AS))
        k.e("buffer_load_dwordx4 %s, v%d, %s, s%d offen sc1" % (vr(vChk, 4), vL16, sr(sFl, 4), sB))
    flag_store(k, sA, FL_AD, also=chk_load)
    if "hpoll" in HOOK:
        HOOK["hpoll"]()
    k.label(l2)


sTask = 38
sFl = 52
WS_FLAGS = 83 * MB
FL_LN, FL_PS, FL_KV, FL_QH, FL_AS, FL_AD, FL_ST = 1024, 2048, 3072, 4096, 5120, 6144, 8192
sNonce = 95
CHKW = 163840 - 64
vChk = 240
vPf, vDum = 246, 247
sKV = 56
sPfOff = 60


PFA = int(os.environ.get("PFA", "1"))


def pf_kv(k):
    lab = k.newlabel("nopf")
    k.e("s_cmp_ge_u32 s%d, %d" % (sPfOff, 16 * 32768))
    k.e("s_cselect_b32 s%d, %d, s%d" % (sA, 15 * 32768, sPfOff))
    k.e("buffer_load_dword v%d, v%d, %s, s%d offen" % (vDum, vPf, sr(sKV, 4), sA))
    k.e("s_add_u32 s%d, s%d, 32768" % (sPfOff, sPfOff))


def flag_store(k, soff_reg, imm, also=None):
    lab = k.newlabel("nofl")
    k.e("s_cmp_lg_u32 s%d, 0" % sWave)
    k.e("s_cbranch_scc1 %s" % lab)
    k.e("s_lshl_b32 s%d, s%d, 2" % (sB, soff_reg))
    k.e("v_mov_b32 v%d, %d" % (vT2, imm))
    k.e("v_mov_b32 v%d, s%d" % (vT3, sNonce))
    k.e("s_mov_b64 exec, 1")
    k.e("buffer_store_dword v%d, v%d, %s, s%d offen sc1" % (vT3, vT2, sr(sFl, 4), sB))
    k.e("s_mov_b64 exec, -1")
    if also:
        also()
    k.label(lab)


def attn_setup(k):
    k.e("s_and_b32 s%d, s%d, 7" % (sA, sTask))
    k.e("s_bfe_u32 s%d, s%d, 0x20003" % (sB, sTask))
    k.e("s_lshl2_add_u32 s%d, s%d, s%d" % (sHead, sA, sB))
    k.e("s_lshr_b32 s%d, s%d, 5" % (sPi, sTask))
    k.e("v_lshrrev_b32 v%d, 6, v0" % vT0)
    k.e("v_and_b32 v%d, 63, v0" % vT1)
    k.e("v_readfirstlane_b32 s%d, v%d" % (sWave, vT0))
    k.e("v_lshlrev_b32 v%d, 4, v%d" % (vL16, vT1))
    k.e("s_nop 1")
    k.e("s_lshr_b32 s%d, s%d, 2" % (sG, sWave))
    k.e("s_and_b32 s%d, s%d, 3" % (sWq, sWave))
    k.e("s_lshl_b32 s%d, s%d, 12" % (sA, sWave))
    k.e("s_mov_b32 s%d, s%d" % (sM0K, sA))
    k.e("s_add_u32 s%d, s%d, 32768" % (sM0K + 1, sA))
    k.e("s_add_u32 s%d, s%d, 65536" % (sM0V, sA))
    k.e("s_add_u32 s%d, s%d, 98304" % (sM0V + 1, sA))
    k.e("v_add_u32 v%d, s%d, v%d" % (vD, sA, vL16))
    k.e("s_sub_u32 s%d, 15, s%d" % (sJL, sPi))
    k.e("s_mov_b32 s%d, 0" % sKoff)
    k.e("s_mov_b32 s%d, 0" % sVoff)
    k.e("s_lshl_b32 s%d, s%d, 19" % (sA, sHead))
    k.e("s_add_u32 s%d, s%d, %d" % (sB, sA, WS_K))
    srd(k, sK, sWS, "s%d" % sB, 512 * 1024)
    k.e("s_add_u32 s%d, s%d, %d" % (sB, sA, WS_Q))
    srd(k, sQ, sWS, "s%d" % sB, 512 * 1024)
    k.e("s_add_u32 s%d, s%d, %d" % (sB, sA, WS_VT))
    srd(k, sV, sWS, "s%d" % sB, 512 * 1024)
    srd(k, sFl, sWS, WS_FLAGS, 65536)


def attn_setup2(k):
    srd(k, sO, sWS, WS_AH, 2048 * 7680 * 2)
    k.e("s_mov_b32 s%d, 0x%08x" % (sT, f32bits(THRESH)))
    k.e("v_mov_b32 v%d, 0x%08x" % (vNeg, f32bits(-1e30)))
    k.e("v_and_b32 v%d, 63, v0" % vT1)
    k.e("v_and_b32 v%d, 0x33, v%d" % (vT0, vT1))
    k.e("v_bfe_u32 v%d, v%d, 2, 1" % (vT2, vT1))
    k.e("v_lshl_or_b32 v%d, v%d, 3, v%d" % (vT0, vT2, vT0))
    k.e("v_bfe_u32 v%d, v%d, 3, 1" % (vT2, vT1))
    k.e("v_lshl_or_b32 v%d, v%d, 2, v%d" % (vT0, vT2, vT0))
    k.e("s_lshl_b32 s%d, s%d, 14" % (sA, sG))
    k.e("v_lshl_add_u32 v%d, v%d, 4, s%d" % (vKA, vT0, sA))
    k.e("s_add_u32 s%d, s%d, 65536" % (sB, sA))
    k.e("v_add_u32 v%d, s%d, v%d" % (vVA, sB, vL16))
    k.e("v_and_b32 v%d, 31, v%d" % (vT0, vT1))
    k.e("v_lshrrev_b32 v%d, 5, v%d" % (vT2, vT1))
    k.e("v_lshlrev_b32 v%d, 3, v%d" % (vT2, vT2))
    k.e("v_sub_u32 v%d, v%d, v%d" % (vT0, vT0, vT2))
    k.e("s_lshl_b32 s%d, s%d, 5" % (sA, sWq))
    k.e("s_lshl_b32 s%d, s%d, 6" % (sB, sG))
    k.e("s_sub_u32 s%d, s%d, s%d" % (sA, sA, sB))
    k.e("v_add_u32 v%d, s%d, v%d" % (vThr, sA, vT0))
    k.e("s_mov_b32 s%d, 0" % sPhase)
    k.e("s_mov_b32 s%d, 0" % sPar)


def kv_flag_addr(k, vd, vt, stask, s1, s2_):
    k.e("s_and_b32 s%d, s%d, 7" % (s1, stask))
    k.e("s_bfe_u32 s%d, s%d, 0x20003" % (s2_, stask))
    k.e("s_lshl2_add_u32 s%d, s%d, s%d" % (s1, s1, s2_))
    k.e("s_lshr_b32 s%d, s%d, 1" % (s1, s1))
    k.e("s_lshl_b32 s%d, s%d, 5" % (s1, s1))
    k.e("s_add_u32 s%d, s%d, %d" % (s1, s1, FL_KV))
    k.e("v_and_b32 v%d, 7, v0" % vd)
    k.e("v_lshlrev_b32 v%d, 2, v%d" % (vd, vd))
    k.e("v_bfe_u32 v%d, v0, 3, 1" % vt)
    k.e("v_lshl_add_u32 v%d, v%d, 9, v%d" % (vd, vt, vd))
    k.e("v_add_u32 v%d, s%d, v%d" % (vd, s1, vd))


def q_flag_addr(k, vd, sqb):
    k.e("s_lshr_b32 s%d, s%d, 1" % (sA, sHead))
    k.e("s_lshl_b32 s%d, s%d, 5" % (sA, sA))
    k.e("s_add_u32 s%d, s%d, %d" % (sA, sA, FL_QH))
    k.e("s_lshr_b32 s%d, s%d, 1" % (sB, sqb))
    k.e("s_lshl2_add_u32 s%d, s%d, s%d" % (sB, sB, sA))
    k.e("v_mov_b32 v%d, s%d" % (vd, sB))


def spin_flags(k, vaddr, vres, first_loaded=False):
    l0, l1, l2 = k.newlabel("spn"), k.newlabel("spnok"), k.newlabel("spnc")
    if first_loaded:
        k.e("s_branch %s" % l2)
    k.label(l0)
    k.e("buffer_load_dword v%d, v%d, %s, 0 offen sc1" % (vres, vaddr, sr(sFl, 4)))
    k.e("s_waitcnt vmcnt(0)")
    k.label(l2)
    k.e("v_cmp_ne_u32 vcc, s%d, v%d" % (sNonce, vres))
    k.e("s_cbranch_vccz %s" % l1)
    k.e("s_sleep 8")
    k.e("s_branch %s" % l0)
    k.label(l1)


def spin_wg(k, vaddr, vres, swave):
    l0, l1 = k.newlabel("spw"), k.newlabel("spwok")
    k.e("s_cmp_lg_u32 s%d, 0" % swave)
    k.e("s_cbranch_scc1 %s" % l1)
    k.label(l0)
    k.e("buffer_load_dword v%d, v%d, %s, 0 offen sc1" % (vres, vaddr, sr(sFl, 4)))
    k.e("s_waitcnt vmcnt(0)")
    k.e("v_cmp_ne_u32 vcc, s%d, v%d" % (sNonce, vres))
    k.e("s_cbranch_vccz %s" % l1)
    k.e("s_sleep %d" % int(os.environ.get("SLP", "6")))
    k.e("s_branch %s" % l0)
    k.label(l1)
    k.e("s_barrier")


HOOK = {}


def emit_attn(k, slow_blocks):
    k.label("L_at_qblock")
    k.e("s_mov_b32 s%d, 0" % sJ)
    for r in range(64):
        k.e("v_mov_b32 v%d, 0" % (vO + r))
    k.e("v_mov_b32 v%d, 0" % vL0)
    k.e("s_waitcnt vmcnt(8)")
    k.e("s_barrier")
    k.e("s_cmp_lg_u32 s%d, 0" % sPar)
    k.e("s_cbranch_scc1 L_at_first1")
    first_subtile(k, 0)
    if DIAG:
        k.e("s_cmp_lg_u32 s%d, 0" % sPhase)
        k.e("s_cbranch_scc1 L_at_st5")
        stamp(k, 8)
        k.e("s_branch L_at_loop")
        k.label("L_at_st5")
        stamp(k, 10)
    AL = os.environ.get("AT_AL")
    if AL is not None:
        k.lines.append(".p2align 6")
        for _ in range(int(AL)):
            k.e("s_nop 0")
    k.label("L_at_loop")
    k.e("s_cmp_eq_u32 s%d, s%d" % (sJ, sJL))
    k.e("s_cbranch_scc1 L_at_last0")
    interval(k, 0, False, slow_blocks)
    k.e("s_add_u32 s%d, s%d, 1" % (sJ, sJ))
    k.label("L_at_loop1")
    k.e("s_cmp_eq_u32 s%d, s%d" % (sJ, sJL))
    k.e("s_cbranch_scc1 L_at_last1")
    interval(k, 1, False, slow_blocks)
    k.e("s_add_u32 s%d, s%d, 1" % (sJ, sJ))
    k.e("s_branch L_at_loop")
    k.label("L_at_fast")
    k.ldsq = []
    k.e("s_mov_b32 s%d, 0" % sJ)
    for r in range(64):
        k.e("v_mov_b32 v%d, 0" % (vO + r))
    k.e("v_mov_b32 v%d, 0" % vL0)
    k.e("s_waitcnt lgkmcnt(0)")
    if os.environ.get("AT_PRIO"):
        lp = k.newlabel("prio")
        k.e("s_cmp_lg_u32 s%d, %s" % (sG, os.environ["AT_PRIO"]))
        k.e("s_cbranch_scc1 %s" % lp)
        k.e("s_setprio 1")
        k.label(lp)
    first_subtile(k, 0, 16)
    stamp(k, 8)
    k.e("s_branch L_at_loop")
    k.label("L_at_first1")
    k.ldsq = []
    first_subtile(k, 1)
    stamp(k, 10)
    k.e("s_branch L_at_loop1")
    k.label("L_at_last0")
    k.ldsq = []
    interval(k, 0, True, slow_blocks)
    k.e("s_branch L_at_fin")
    k.label("L_at_last1")
    k.ldsq = []
    interval(k, 1, True, slow_blocks)
    k.label("L_at_fin")
    k.ldsq = []
    if DIAG:
        k.e("s_cmp_lg_u32 s%d, 0" % sPhase)
        k.e("s_cbranch_scc1 L_at_st2")
        stamp(k, 9)
        k.e("s_branch L_at_st3")
        k.label("L_at_st2")
        stamp(k, 11)
        k.label("L_at_st3")
    k.e("v_mov_b32 v%d, v%d" % (vT0, vL0))
    k.e("s_nop 1")
    k.e("v_permlane32_swap_b32 v%d, v%d" % (vT0, vL0))
    k.e("v_add_f32 v%d, v%d, v%d" % (vL1, vL0, vT0))
    k.e("v_sub_f32 v%d, 0, v%d" % (vL0, vNm))
    k.e("s_xor_b32 s%d, s%d, 1" % (sA, sPar))
    k.e("s_lshl_b32 s%d, s%d, 15" % (sA, sA))
    k.e("s_add_u32 s%d, s%d, 65536" % (sB, sA))
    k.e("s_cmp_eq_u32 s%d, 0" % sG)
    k.e("s_cselect_b32 s%d, s%d, %d" % (sMask, sA, XCH))
    k.e("s_cselect_b32 s%d, %d, s%d" % (sMask + 1, XCH, sA))
    k.e("s_lshl_b32 s%d, s%d, 13" % (sA, sWq))
    k.e("s_add_u32 s%d, s%d, s%d" % (sMask, sMask, sA))
    k.e("s_add_u32 s%d, s%d, s%d" % (sMask + 1, sMask + 1, sA))
    k.e("v_add_u32 v%d, s%d, v%d" % (vT1, sMask, vL16))
    k.e("v_add_u32 v%d, s%d, v%d" % (vT3, sMask + 1, vL16))
    k.e("s_lshl_b32 s%d, s%d, 9" % (sA, sWave))
    k.e("s_add_u32 s%d, s%d, s%d" % (sA, sA, sB))
    k.e("v_lshrrev_b32 v%d, 1, v%d" % (vT2, vL16))
    k.e("v_add_u32 v%d, s%d, v%d" % (vT2, sA, vT2))
    k.e("s_cmp_eq_u32 s%d, 0" % sG)
    k.e("s_cbranch_scc1 L_at_send23")
    for i in range(8):
        k.e("ds_write_b128 v%d, %s offset:%d" % (vT1, vr(vO + 4 * i, 4), i * 1024))
    k.e("s_waitcnt lgkmcnt(0)")
    for i in range(32):
        k.e("v_mov_b32 v%d, v%d" % (vO + i, vO + 32 + i))
    k.e("s_branch L_at_sent")
    k.label("L_at_send23")
    for i in range(8):
        k.e("ds_write_b128 v%d, %s offset:%d" % (vT1, vr(vO + 32 + 4 * i, 4), i * 1024))
    k.label("L_at_sent")
    lab = k.newlabel("nochk")
    k.e("s_cmp_eq_u32 s%d, 0" % sPhase)
    k.e("s_cbranch_scc1 %s" % lab)
    k.e("s_cmp_lg_u32 s%d, 0" % sWave)
    k.e("s_cbranch_scc1 %s" % lab)
    k.e("s_waitcnt vmcnt(0)")
    for i in range(4):
        k.e("v_xor_b32 v%d, s%d, v%d" % (vChk + i, sNonce, vChk + i))
    k.e("v_or3_b32 v%d, v%d, v%d, v%d" % (vChk + 4, vChk, vChk + 1, vChk + 2))
    k.e("v_or_b32 v%d, v%d, v%d" % (vChk + 4, vChk + 4, vChk + 3))
    k.e("v_cmp_ne_u32 vcc, 0, v%d" % (vChk + 4))
    k.e("s_ff1_i32_b64 s%d, vcc" % sMask)
    k.e("v_cmp_ne_u32 vcc, 0, v%d" % (vChk + 2))
    k.e("s_nop 1")
    k.e("v_cndmask_b32 v%d, 3, 2, vcc" % (vChk + 4))
    k.e("v_cmp_ne_u32 vcc, 0, v%d" % (vChk + 1))
    k.e("s_nop 1")
    k.e("v_cndmask_b32 v%d, v%d, 1, vcc" % (vChk + 4, vChk + 4))
    k.e("v_cmp_ne_u32 vcc, 0, v%d" % vChk)
    k.e("s_nop 1")
    k.e("v_cndmask_b32 v%d, v%d, 0, vcc" % (vChk + 4, vChk + 4))
    k.e("s_nop 1")
    k.e("v_readlane_b32 s%d, v%d, s%d" % (sMask + 1, vChk + 4, sMask))
    k.e("s_nop 3")
    k.e("s_lshl2_add_u32 s%d, s%d, s%d" % (sMask + 1, sMask, sMask + 1))
    k.e("s_cmp_lt_i32 s%d, 0" % sMask)
    k.e("s_cselect_b32 s%d, -1, s%d" % (sMask + 1, sMask + 1))
    k.e("v_mov_b32 v%d, s%d" % (vChk, sMask + 1))
    k.label(lab)
    k.e("s_add_u32 s%d, s%d, 8192" % (sMask, sB))
    k.e("v_mov_b32 v%d, s%d" % (vChk + 1, sMask))
    k.e("s_waitcnt lgkmcnt(0)")
    k.e("s_barrier")
    lab = k.newlabel("nochk2")
    k.e("s_cmp_lg_u32 s%d, 0" % sWave)
    k.e("s_cbranch_scc1 %s" % lab)
    k.e("ds_write_b32 v%d, v%d" % (vChk + 1, vChk))
    k.label(lab)
    k.e("ds_write_b64 v%d, v[%d:%d]" % (vT2, vL0, vL1))
    for i in range(8):
        k.e("ds_read_b128 %s, v%d offset:%d" % (vr(vO + 32 + 4 * i, 4), vT3, i * 1024))
    k.e("v_xor_b32 v%d, 0x800, v%d" % (vT2, vT2))
    k.e("s_waitcnt lgkmcnt(0)")
    k.e("s_barrier")
    k.e("ds_read_b64 v[%d:%d], v%d" % (vE, vE + 1, vT2))
    k.e("ds_read_b32 v%d, v%d" % (vChk, vChk + 1))
    k.e("s_waitcnt lgkmcnt(0)")
    k.e("v_max_f32 v%d, v%d, v%d" % (vT0, vL0, vE))
    k.e("v_sub_f32 v%d, v%d, v%d" % (vL0, vL0, vT0))
    k.e("v_sub_f32 v%d, v%d, v%d" % (vE, vE, vT0))
    k.e("v_exp_f32 v%d, v%d" % (vL0, vL0))
    k.e("v_exp_f32 v%d, v%d" % (vE, vE))
    k.e("s_nop 0")
    k.e("v_mul_f32 v%d, v%d, v%d" % (vL1, vL1, vL0))
    k.e("v_fmac_f32 v%d, v%d, v%d" % (vL1, vE + 1, vE))
    k.e("v_rcp_f32 v%d, v%d" % (vL1, vL1))
    k.e("s_nop 0")
    k.e("v_mul_f32 v%d, v%d, v%d" % (vL0, vL0, vL1))
    k.e("v_mul_f32 v%d, v%d, v%d" % (vE, vE, vL1))
    for i in range(32):
        k.e("v_mul_f32 v%d, v%d, v%d" % (vO + i, vO + i, vL0))
    for i in range(32):
        k.e("v_fmac_f32 v%d, v%d, v%d" % (vO + i, vO + 32 + i, vE))
    k.e("s_lshl2_add_u32 s%d, s%d, s%d" % (sA, sJL, sWq))
    k.e("s_mul_i32 s%d, s%d, 480" % (sA, sA))
    k.e("s_lshl3_add_u32 s%d, s%d, s%d" % (sA, sHead, sA))
    k.e("s_lshl2_add_u32 s%d, s%d, s%d" % (sA, sG, sA))
    k.e("s_lshl_b32 s%d, s%d, 10" % (sA, sA))
    for i in range(4):
        src = vO + 8 * i
        tq = vKf + 4 * i
        for c in range(4):
            k.e("v_cvt_pk_bf16_f32 v%d, v%d, v%d" % (tq + c, src + 2 * c, src + 2 * c + 1))
        k.e("s_nop 1")
        k.e("v_permlane32_swap_b32 v%d, v%d" % (tq, tq + 2))
        k.e("v_permlane32_swap_b32 v%d, v%d" % (tq + 1, tq + 3))
        k.e("buffer_store_dwordx4 %s, v%d, %s, s%d offen offset:%d %s" % (vr(tq, 4), vL16, sr(sO, 4), sA, i * 1024, STF))
    k.e("s_cmp_lg_u32 s%d, 0" % sPhase)
    k.e("s_cbranch_scc1 L_at_done")
    k.e("s_mov_b32 s%d, 1" % sPhase)
    k.e("s_mov_b32 s%d, s%d" % (sJL, sPi))
    k.e("s_xor_b32 s%d, s%d, 1" % (sA, sPar))
    k.e("s_lshl_b32 s%d, s%d, 15" % (sA, sA))
    k.e("s_add_u32 m0, s%d, s%d" % (sM0K, sA))
    k.e("s_nop 0")
    for j in range(4):
        k.e("buffer_load_dwordx4 v%d, %s, s%d offen offset:%d lds" % (vD, sr(sK, 4), sKoff, 1024 * j))
    k.e("s_add_u32 s%d, s%d, 32768" % (sKoff, sKoff))
    k.e("s_branch L_at_qblock")
    k.label("L_at_done")
```

```python
import math, struct
from asmlib import *
from gemm import *
import attn as AT

MB = 1 << 20
WS_XN = 0
WS_Q = 4 * MB
WS_K = 20 * MB
WS_VT = 36 * MB
WS_AH = 52 * MB
ARG_X, ARG_CKV, ARG_WQ, ARG_WUK, ARG_WUV, ARG_WO, ARG_BX, ARG_W1, ARG_B1, ARG_W2, ARG_B2, ARG_OUT, ARG_DBG, ARG_WS = [8 * i for i in range(14)]
QSCALE = math.log2(math.e) / math.sqrt(128.0)
GELU_C1 = -2.0 * math.sqrt(2.0 / math.pi) * math.log2(math.e)
GELU_C2 = GELU_C1 * 0.044715
TRFLAGS = os.environ.get("TRFLAGS", " sc1")
FORCE_HELP = int(os.environ.get("FORCE_HELP", "0"))


def f32bits(x):
    return struct.unpack("<I", struct.pack("<f", x))[0]


def srd(k, d, base, off, nbytes):
    k.e("s_add_u32 s%d, s%d, %s" % (d, base, off))
    k.e("s_addc_u32 s%d, s%d, 0" % (d + 1, base + 1))
    k.e("s_mov_b32 s%d, %s" % (d + 2, nbytes))
    k.e("s_mov_b32 s%d, 0x00020000" % (d + 3))


sX, sCKV = 40, 42
sWUK, sWUV = 44, 46
sWS = 48
sWQ, sW1, sB1 = 50, 52, 54
sWO, sW2 = 56, 58
sDBG = 60
sMtA, sNtA, sIsV = 62, 63, 96
sMtB, sNtB, sIsH = 97, 98, 99
sStA = 100
sLnX, sLnO = 36, 80
sPf = 84
sBs = 56
sDb = 88
sRow = 34
sPfOff = 92
sWG = 93
sNonce = 95
sHelp = 61
WS_FLAGS = 83 * MB
FL_LN, FL_PS, FL_KV, FL_QH, FL_AS, FL_AD, FL_ST = 1024, 2048, 3072, 4096, 5120, 6144, 8192
NONCEW = 147456
PFD = 3
sTa, sTb = 35, 101
vBias = 208
vPk = 240
vRaw = 248
vLn = 208


def wave_sum(k, v, t):
    out = []
    for ctl in ["quad_perm:[1,0,3,2]", "quad_perm:[2,3,0,1]", "row_half_mirror", "row_mirror"]:
        out.append(lambda: k.e("s_nop 1"))
        out.append(lambda ctl=ctl: k.e("v_add_f32_dpp v%d, v%d, v%d %s row_mask:0xf bank_mask:0xf" % (v, v, v, ctl)))
    for sw in ["v_permlane16_swap_b32", "v_permlane32_swap_b32"]:
        out.append(lambda: k.e("v_mov_b32 v%d, v%d" % (t, v)))
        out.append(lambda: k.e("s_nop 1"))
        out.append(lambda sw=sw: k.e("%s v%d, v%d" % (sw, t, v)))
        out.append(lambda: k.e("v_add_f32 v%d, v%d, v%d" % (v, v, t)))
    return out


def ln_load(k, g):
    t = g.vTmp
    k.e("s_lshl_b32 s%d, s%d, 11" % (sTa, sRow))
    k.e("v_lshlrev_b32 v%d, 1, v%d" % (t, g.vLane16))
    k.vm_op("buffer_load_dwordx4 %s, v%d, %s, s%d offen" % (vr(vRaw, 4), t, sr(sLnX, 4), sTa), "ln")
    k.vm_op("buffer_load_dwordx4 %s, v%d, %s, s%d offen offset:16" % (vr(vRaw + 4, 4), t, sr(sLnX, 4), sTa), "ln")


def ln_steps(k, g, via_lds=False):
    X = vLn
    S, V, T = vLn + 16, vLn + 17, vLn + 18
    D = vLn + 19
    A = vLn + 20
    o = []
    E = lambda s: (lambda: k.e(s))
    o.append(lambda: k.vm_need(["ln"]))
    for i in range(8):
        o.append(E("v_lshlrev_b32 v%d, 16, v%d" % (X + 2 * i, vRaw + i)))
        o.append(E("v_and_b32 v%d, 0xffff0000, v%d" % (X + 2 * i + 1, vRaw + i)))
    o.append(E("v_add_f32 v%d, v%d, v%d" % (S, X, X + 1)))
    o.append(E("v_add_f32 v%d, v%d, v%d" % (T, X + 2, X + 3)))
    for i in range(4, 16, 2):
        o.append(E("v_add_f32 v%d, v%d, v%d" % (S, S, X + i)))
        o.append(E("v_add_f32 v%d, v%d, v%d" % (T, T, X + i + 1)))
    o.append(E("v_add_f32 v%d, v%d, v%d" % (S, S, T)))
    o += wave_sum(k, S, T)
    o.append(E("v_mul_f32 v%d, 0x%08x, v%d" % (S, f32bits(1.0 / 1024), S)))
    o.append(E("v_sub_f32 v%d, v%d, v%d" % (D, X, S)))
    o.append(E("v_mul_f32 v%d, v%d, v%d" % (V, D, D)))
    for i in range(1, 16):
        o.append(E("v_sub_f32 v%d, v%d, v%d" % (D, X + i, S)))
        o.append(E("v_fmac_f32 v%d, v%d, v%d" % (V, D, D)))
    o += wave_sum(k, V, T)
    o.append(E("v_mul_f32 v%d, 0x%08x, v%d" % (V, f32bits(1.0 / 1024), V)))

    def rbf(r):
        return [E("v_cvt_pk_bf16_f32 v%d, v%d, v%d" % (r, r, r)), E("v_lshlrev_b32 v%d, 16, v%d" % (r, r))]
    o += rbf(S) + rbf(V)
    o.append(E("v_add_f32 v%d, 0x%08x, v%d" % (V, f32bits(1e-5), V)))
    o += rbf(V)
    o.append(E("v_sqrt_f32 v%d, v%d" % (V, V)))
    o.append(E("s_nop 0"))
    o += rbf(V)
    o.append(E("v_rcp_f32 v%d, v%d" % (V, V)))
    for i in range(16):
        o.append(E("v_sub_f32 v%d, v%d, v%d" % (X + i, X + i, S)))
    for i in range(8):
        o.append(E("v_cvt_pk_bf16_f32 v%d, v%d, v%d" % (vRaw + i, X + 2 * i, X + 2 * i + 1)))
    for i in range(8):
        o.append(E("v_lshlrev_b32 v%d, 16, v%d" % (X + 2 * i, vRaw + i)))
        o.append(E("v_and_b32 v%d, 0xffff0000, v%d" % (X + 2 * i + 1, vRaw + i)))
    for i in range(16):
        o.append(E("v_mul_f32 v%d, v%d, v%d" % (X + i, X + i, V)))
    for i in range(8):
        o.append(E("v_cvt_pk_bf16_f32 v%d, v%d, v%d" % (vRaw + i, X + 2 * i, X + 2 * i + 1)))
    if via_lds:
        def wr():
            k.e("s_lshl_b32 s%d, s%d, 4" % (sTa, g.sWave))
            k.e("s_add_u32 s%d, s%d, %d" % (sTa, sTa, g.lds_bytes))
            k.e("v_lshl_add_u32 v%d, v%d, 4, s%d" % (A, g.vLane16, sTa))
            k.lds_op("ds_write_b128 v%d, %s" % (A, vr(vRaw, 4)))
            k.lds_op("ds_write_b128 v%d, %s offset:128" % (A, vr(vRaw + 4, 4)))
        o.append(wr)
        return o
    o.append(E("v_lshlrev_b32 v%d, 6, v%d" % (A, g.vLane16)))

    def st():
        k.e("s_lshr_b32 s%d, s%d, 5" % (sTa, sRow))
        k.e("s_lshl_b32 s%d, s%d, 16" % (sTa, sTa))
        k.e("s_and_b32 s%d, s%d, 31" % (sTb, sRow))
        k.e("s_lshl4_add_u32 s%d, s%d, s%d" % (sTa, sTb, sTa))
        k.vm_op("buffer_store_dwordx4 %s, v%d, %s, s%d offen sc1" % (vr(vRaw, 4), A, sr(sLnO, 4), sTa), "lnst")
        k.vm_op("buffer_store_dwordx4 %s, v%d, %s, s%d offen offset:512 sc1" % (vr(vRaw + 4, 4), A, sr(sLnO, 4), sTa), "lnst")
        k.e("s_nop 1")
    o.append(st)
    return o


def ln_store_steps(k, g):
    A, B = vLn + 20, vLn + 21
    R = vLn
    o = []

    def rd():
        k.e("s_and_b32 s%d, s%d, 3" % (sTa, g.sWave))
        k.e("s_lshl_b32 s%d, s%d, 12" % (sTa, sTa))
        k.e("s_add_u32 s%d, s%d, %d" % (sTa, sTa, g.lds_bytes))
        k.e("v_add_u32 v%d, s%d, v%d" % (A, sTa, g.vLane16))
        for i in range(4):
            k.lds_op("ds_read_b128 %s, v%d offset:%d" % (vr(R + 4 * i, 4), A, 1024 * i), rng(R + 4 * i, 4))
    o.append(rd)

    def addr():
        k.e("v_lshrrev_b32 v%d, 8, v%d" % (B, g.vLane16))
        k.e("v_lshlrev_b32 v%d, 10, v%d" % (B, B))
        k.e("v_bfe_u32 v%d, v%d, 7, 1" % (B + 1, g.vLane16))
        k.e("v_lshl_add_u32 v%d, v%d, 9, v%d" % (B, B + 1, B))
        k.e("v_and_b32 v%d, 0x70, v%d" % (B + 1, g.vLane16))
        k.e("v_add_u32 v%d, v%d, v%d" % (B, B, B + 1))
    o.append(addr)

    def st():
        k.e("s_lshr_b32 s%d, s2, 2" % sTa)
        k.e("s_lshl_b32 s%d, s%d, 16" % (sTa, sTa))
        k.e("s_and_b32 s%d, s%d, 3" % (sTb, g.sWave))
        k.e("s_lshl_b32 s%d, s%d, 14" % (sTb, sTb))
        k.e("s_add_u32 s%d, s%d, s%d" % (sTa, sTa, sTb))
        k.e("s_and_b32 s%d, s2, 3" % sTb)
        k.e("s_lshl_b32 s%d, s%d, 7" % (sTb, sTb))
        k.e("s_add_u32 s%d, s%d, s%d" % (sTa, sTa, sTb))
        k.lds_need(rng(R, 16))
        for i in range(4):
            k.vm_op("buffer_store_dwordx4 %s, v%d, %s, s%d offen sc1" % (vr(R + 4 * i, 4), B, sr(sLnO, 4), sTa), "lnst")
            if i < 3:
                k.e("s_add_u32 s%d, s%d, 4096" % (sTa, sTa))
        k.e("s_nop 1")
    o.append(st)
    return o


def split_list(lst, n):
    m = len(lst)
    return [lst[(i * m) // n:((i + 1) * m) // n] for i in range(n)]


def emit_proj(k, tail_code):
    g = GemmCfg(vRB=14, vTmp=16, vF=24)
    g.sVW = 3
    assert g.vAcc == 80 and g.nvgpr == 208
    jK = Job("row", True, 4, 8, 16, 17, 33, 26, 29, 30, 2, 6, 10, "K")
    jV = Job("row", False, 4, 8, 16, 17, 33, 26, 29, 30, 2, 6, 10, "V")
    jB = Job("frag", True, 64, 68, 72, 73, 74, 75, 76, 77, 72, 73, 77, "B")
    for j in (jK, jV):
        j.sAoff2, j.sBoff2 = 18, 22
    jB.sAoff2, jB.sBoff2 = 25, 94
    jB.splitB = (sPf, 20, 76, 78)
    sHeadB, sPiB, sHv = 97, 98, 99
    vPf, vDummy, vPoll = g.vTmp + 5, g.vTmp + 6, g.vTmp + 7
    PFS = int(os.environ.get("PFS", "6"))
    NCARRY = int(os.environ.get("NCARRY", "8"))
    k.label("L_pj_task")
    k.e("s_load_dwordx4 s[40:43], s[0:1], 0")
    k.e("s_load_dwordx4 s[44:47], s[0:1], 24")
    k.e("s_load_dwordx2 s[48:49], s[0:1], %d" % ARG_WS)
    k.e("s_load_dwordx2 s[50:51], s[0:1], %d" % ARG_WQ)
    k.e("s_load_dwordx4 s[52:55], s[0:1], %d" % ARG_W1)
    k.e("s_load_dwordx2 s[56:57], s[0:1], %d" % ARG_WO)
    k.e("s_load_dwordx2 s[58:59], s[0:1], %d" % ARG_W2)
    k.e("s_load_dwordx2 s[60:61], s[0:1], %d" % ARG_DBG)
    k.e("s_and_b32 s%d, s2, 7" % sTa)
    k.e("s_bfe_u32 s%d, s2, 0x20003" % sTb)
    k.e("s_lshl2_add_u32 s%d, s%d, s%d" % (sTa, sTa, sTb))
    k.e("s_lshr_b32 s%d, s2, 5" % sMtA)
    k.e("s_and_b32 s%d, s%d, 15" % (sNtA, sTa))
    k.e("s_lshr_b32 s%d, s%d, 4" % (sIsV, sTa))
    k.e("s_movk_i32 s%d, 1024" % jK.sPitchA)
    k.e("s_movk_i32 s%d, 8192" % jK.sPitchB)
    k.e("s_movk_i32 s%d, 128" % jK.sAstep)
    k.e("s_mov_b32 s%d, %d" % (jK.sBstep, 64 * 8192))
    k.e("s_mov_b32 s%d, 0" % jK.sAoff)
    k.e("s_mov_b32 s%d, 0" % jK.sBoff)
    gemm_setup_common(k, g)
    gemm_setup_job(k, g, jK)
    k.e("s_waitcnt lgkmcnt(0)")
    k.e("s_lshl_b32 s%d, s%d, 18" % (sTa, sMtA))
    k.e("s_sub_u32 s%d, %d, s%d" % (sTb, 2048 * 1024, sTa))
    srd(k, jK.sA, sCKV, "s%d" % sTa, "s%d" % sTb)
    k.e("s_cmp_eq_u32 s%d, 0" % sIsV)
    k.e("s_cselect_b32 s78, s%d, s%d" % (sWUK, sWUV))
    k.e("s_cselect_b32 s79, s%d, s%d" % (sWUK + 1, sWUV + 1))
    k.e("s_lshl_b32 s%d, s%d, 9" % (sTa, sNtA))
    k.e("s_sub_u32 s%d, %d, s%d" % (sTb, 512 * 8192, sTa))
    srd(k, jK.sB, 78, "s%d" % sTa, "s%d" % sTb)
    srd(k, sLnX, sX, 0, 4 * MB)
    k.e("s_lshl3_add_u32 s%d, s2, s%d" % (sRow, g.sWave))

    def pf(base, nbytes, off):
        def f():
            srd(k, sPf, base, 0, nbytes)
            k.e("s_mov_b32 s%d, %d" % (sPfOff, off))
            k.e("buffer_load_dword v%d, v%d, %s, s%d offen" % (vDummy, vPf, sr(sPf, 4), sPfOff))
        return f
    PFW = 1024 * 64 << PFS

    def pf_all(base, nbytes):
        return [pf(base, nbytes, o) for o in range(0, nbytes, PFW)]

    k.e("s_and_b32 s%d, s%d, 3" % (sTa, g.sWave))
    k.e("s_lshl2_add_u32 s%d, s2, s%d" % (sTa, sTa))
    k.e("s_lshl_b32 s%d, s%d, %d" % (sTa, sTa, 6 + PFS))
    k.e("v_lshlrev_b32 v%d, %d, v%d" % (vPf, PFS - 4, g.vLane16))
    k.e("v_add_u32 v%d, s%d, v%d" % (vPf, sTa, vPf))
    k.e("v_mov_b32 v23, 0")
    k.e("s_cmp_ge_u32 s%d, 4" % g.sWave)
    k.e("s_cbranch_scc1 L_pj_startP")
    for s_ in range(2):
        for f in dma_list(k, g, jK, s_, "dma%d" % s_):
            f()
    ln_load(k, g)
    vmqD = list(k.vmq)
    k.e("s_branch L_pj_start2")
    k.label("L_pj_startP")
    k.vmq = []
    labn = k.newlabel("non1")
    k.e("v_mov_b32 v%d, 0" % (vPk + 1))
    k.e("v_mov_b32 v%d, 0" % (vPk + 3))
    k.e("s_cmp_lg_u32 s%d, 7" % g.sWave)
    k.e("s_cbranch_scc1 %s" % labn)
    k.e("s_memrealtime vcc")
    srd(k, sPf, sDBG, 0, 256)
    k.e("s_waitcnt lgkmcnt(0)")
    k.e("v_mov_b32 v%d, vcc_lo" % vPk)
    k.e("v_or_b32 v%d, 1, v%d" % (vPk, vPk))
    k.e("v_mov_b32 v%d, v%d" % (vPk + 2, vPk))
    k.e("s_mov_b64 exec, 1")
    k.e("buffer_atomic_cmpswap %s, v%d, %s, 0 offen sc0 sc1" % (vr(vPk, 2), vPk + 3, sr(sPf, 4)))
    k.e("s_mov_b64 exec, -1")
    k.label(labn)
    ln_load(k, g)
    vmqP = list(k.vmq)
    FINE = int(os.environ.get("FINE", "1"))

    def pf1(base, off):
        def f():
            srd(k, sPf, base, 0, 4 * MB)
            k.e("s_mov_b32 s%d, %d" % (sPfOff, off))
            k.e("buffer_load_dword v%d, v23, %s, s%d offen" % (vDummy, sr(sPf, 4), sPfOff))
        return f
    if FINE:
        k.e("s_and_b32 s%d, s%d, 3" % (sTa, g.sWave))
        k.e("s_lshl2_add_u32 s%d, s2, s%d" % (sTa, sTa))
        k.e("s_lshl_b32 s%d, s%d, 10" % (sTa, sTa))
        k.e("v_bfe_u32 v23, v%d, 4, 3" % g.vLane16)
        k.e("v_lshl_add_u32 v23, v23, 7, s%d" % sTa)
        first = [pf1(sWUK, MB), pf1(sWUV, MB)] + pf_all(sCKV, 2 * MB)
    else:
        first = pf_all(sCKV, 2 * MB) + pf_all(sWUK, 4 * MB) + pf_all(sWUV, 4 * MB)
    for f in first:
        f()
        vmqP.append("pf")
    if os.environ.get("CODEPF", "0") == "1":
        k.e("s_getpc_b64 s[78:79]")
        k.label("L_pj_pc")
        k.e("s_sub_u32 s78, s78, L_pj_pc-mega_kernel")
        k.e("s_subb_u32 s79, s79, 0")
        srd(k, sPf, 78, 0, "L_code_end-mega_kernel")
        k.e("s_and_b32 s%d, s%d, 3" % (sTa, g.sWave))
        k.e("s_lshl_b32 s%d, s%d, 13" % (sTa, sTa))
        k.e("v_lshlrev_b32 v%d, 3, v%d" % (vPoll, g.vLane16))
        for i in range(4):
            k.e("buffer_load_dword v%d, v%d, %s, s%d offen" % (vDummy, vPoll, sr(sPf, 4), sTa))
            k.e("s_add_u32 s%d, s%d, 32768" % (sTa, sTa))
            vmqP.append("pf")
    k.label("L_pj_start2")
    srd(k, sLnO, sWS, WS_XN, 4 * MB)
    srd(k, sDb, sWS, WS_FLAGS, 65536)
    k.e("s_and_b32 s%d, s2, 7" % sTa)
    k.e("s_bfe_u32 s%d, s2, 0x20003" % sTb)
    k.e("s_lshl2_add_u32 s%d, s%d, s%d" % (sHeadB, sTa, sTb))
    k.e("s_lshr_b32 s%d, s2, 5" % sPiB)
    k.e("s_cmp_lt_u32 s%d, 28" % sHeadB)
    k.e("s_cselect_b32 s%d, 1, 0" % sHv)
    k.e("s_movk_i32 s%d, 8192" % jB.sPitchB)
    k.e("s_movk_i32 s%d, 4096" % jB.sAstep)
    k.e("s_mov_b32 s%d, %d" % (jB.sBstep, 64 * 8192))
    k.e("s_mov_b32 s76, %d" % (64 * 7168))
    k.e("s_mov_b32 s%d, 0" % jB.sAoff)
    k.e("s_mov_b32 s%d, 65536" % jB.sAoff2)
    k.e("s_mov_b32 s%d, 0" % jB.sBoff)
    k.e("s_mov_b32 s%d, 0" % jB.sBoff2)
    k.e("s_sub_u32 s%d, 15, s%d" % (sTa, sPiB))
    k.e("s_sub_u32 s%d, s%d, 1" % (sTb, sPiB))
    k.e("s_cmp_lt_u32 s%d, 4" % g.sVW)
    k.e("s_cselect_b32 s%d, s%d, s%d" % (sTa, sTa, sTb))
    k.e("s_lshl2_add_u32 s%d, s%d, s%d" % (sTa, sTa, g.sVW))
    k.e("s_lshl_b32 s%d, s%d, 16" % (sTa, sTa))
    k.e("v_add_u32 v%d, s%d, v%d" % (jB.vDA, sTa, g.vLane16))
    k.e("s_lshl_b32 s%d, s%d, 14" % (sTa, g.sWm))
    k.e("v_add_u32 v%d, s%d, v%d" % (jB.vRA, sTa, g.vLane16))
    srd(k, jB.sA, sWS, WS_XN, 4 * MB)
    k.e("s_lshl_b32 s%d, s%d, 8" % (sTa, sHeadB))
    k.e("s_sub_u32 s%d, %d, s%d" % (sTb, 8 * MB, sTa))
    srd(k, jB.sB, sWQ, "s%d" % sTa, "s%d" % sTb)
    k.e("s_lshr_b32 s%d, s%d, 1" % (sTa, g.sWn))
    k.e("s_lshl1_add_u32 s%d, s%d, s%d" % (sTa, sNtA, sTa))
    k.e("s_lshl_b32 s%d, s%d, 19" % (sStA, sTa))
    k.e("s_lshl_b32 s%d, s%d, 3" % (sTa, sMtA))
    k.e("s_lshl2_add_u32 s%d, s%d, s%d" % (sTa, g.sWm, sTa))
    k.e("s_lshl_b32 s%d, s%d, 13" % (sTa, sTa))
    k.e("s_add_u32 s%d, s%d, s%d" % (sStA, sStA, sTa))
    k.e("s_and_b32 s%d, s%d, 1" % (sTa, g.sWn))
    k.e("s_lshl_b32 s%d, s%d, 12" % (sTa, sTa))
    k.e("s_add_u32 s%d, s%d, s%d" % (sStA, sStA, sTa))
    k.e("s_lshl_b32 s%d, s%d, 24" % (sTa, sIsV))
    k.e("s_add_u32 s%d, s%d, %d" % (sTa, sTa, WS_K))
    srd(k, g.sO, sWS, "s%d" % sTa, 16 * MB)

    def flag(off_expr_emit, imms, wave=4):
        lab = k.newlabel("nosig")
        k.e("s_cmp_lg_u32 s%d, %d" % (g.sWave, wave))
        k.e("s_cbranch_scc1 %s" % lab)
        off_expr_emit(lab)
        k.e("v_mov_b32 v216, 0")
        k.e("v_mov_b32 v217, s%d" % sNonce)
        k.e("s_mov_b64 exec, 1")
        for imm in imms:
            k.e("s_add_u32 s%d, s%d, %d" % (sTa, sTa, imm))
            k.e("buffer_store_dword v217, v216, %s, s%d offen sc1" % (sr(sDb, 4), sTa))
        k.e("s_mov_b64 exec, -1")
        k.label(lab)

    def signal():
        def off(lab):
            if FORCE_HELP & 1:
                k.e("s_and_b32 s%d, s2, 15" % sTa)
                k.e("s_cmp_eq_u32 s%d, 3" % sTa)
                k.e("s_cbranch_scc1 %s" % lab)
            k.e("s_lshl_b32 s%d, s2, 2" % sTa)
        flag(off, [FL_LN])

        def off2(lab):
            k.e("s_lshl_b32 s%d, s2, 2" % sTa)
        flag(off2, [FL_PS])

    def signal_kv(wave=4):
        def off(lab):
            k.e("s_lshl4_add_u32 s%d, s%d, s%d" % (sTa, sIsV, sNtA))
            k.e("s_lshl3_add_u32 s%d, s%d, s%d" % (sTa, sTa, sMtA))
            k.e("s_lshl_b32 s%d, s%d, 2" % (sTa, sTa))
        flag(off, [FL_KV], wave)

    def nonce2():
        lab = k.newlabel("non2")
        k.e("s_cmp_lg_u32 s%d, 7" % g.sWave)
        k.e("s_cbranch_scc1 %s" % lab)
        k.e("v_cmp_eq_u32 vcc, 0, v%d" % vPk)
        k.e("v_mov_b32 v%d, %d" % (vPk + 1, NONCEW))
        k.e("s_nop 0")
        k.e("v_cndmask_b32 v%d, v%d, v%d, vcc" % (vPk, vPk, vPk + 2))
        k.e("s_mov_b64 exec, 1")
        k.e("ds_write_b32 v%d, v%d" % (vPk + 1, vPk))
        k.e("s_mov_b64 exec, -1")
        k.label(lab)

    def nonce3():
        k.e("v_mov_b32 v%d, %d" % (vPk + 1, NONCEW))
        k.lds_op("ds_read_b32 v%d, v%d" % (vPk, vPk + 1), [vPk])

    def nonce4():
        k.lds_need([vPk])
        k.e("v_readfirstlane_b32 s%d, v%d" % (sNonce, vPk))

    def bias_loads():
        out = []

        def setup():
            k.e("s_mul_i32 s%d, s%d, s%d" % (sTa, sHeadB, sHv))
            k.e("s_lshl_b32 s%d, s%d, 8" % (sTa, sTa))
            k.e("s_lshl_b32 s%d, s%d, 6" % (sTb, g.sWn))
            k.e("s_add_u32 s%d, s%d, s%d" % (sTa, sTa, sTb))
            k.e("s_sub_u32 s%d, %d, s%d" % (sTb, 3584 * 2, sTa))
            srd(k, sLnX, sB1, "s%d" % sTa, "s%d" % sTb)
            k.e("v_bfe_u32 v18, v0, 5, 1")
            k.e("v_lshlrev_b32 v18, 3, v18")
        out.append(setup)
        for gq in range(4):
            out.append(lambda gq=gq: k.vm_op("buffer_load_dwordx2 %s, v18, %s, 0 offen offset:%d" % (vr(vPk + gq * 2, 2), sr(sLnX, 4), gq * 16), "bias"))
        return out

    def bias_unpack():
        out = [lambda: k.vm_need(["bias"])]
        for r in range(16):
            src = vPk + (r >> 2) * 2 + ((r & 3) >> 1)
            d = vBias + 16 + r
            if r & 1:
                out.append(lambda d=d, src=src: k.e("v_and_b32 v%d, 0xffff0000, v%d" % (d, src)))
            else:
                out.append(lambda d=d, src=src: k.e("v_lshlrev_b32 v%d, 16, v%d" % (d, src)))
        return out

    def poll_issue():
        k.vm_op("buffer_load_dwordx4 %s, v%d, %s, 0 offen offset:%d sc1" % (vr(vRaw, 4), g.vLane16, sr(sDb, 4), FL_LN), "poll")

    slow = []

    def poll_eval(vRaw=vRaw):
        k.e("v_xor_b32 v%d, s%d, v%d" % (vRaw, sNonce, vRaw))
        k.e("v_xor_b32 v%d, s%d, v%d" % (vRaw + 1, sNonce, vRaw + 1))
        k.e("v_xor_b32 v%d, s%d, v%d" % (vRaw + 2, sNonce, vRaw + 2))
        k.e("v_xor_b32 v%d, s%d, v%d" % (vRaw + 3, sNonce, vRaw + 3))
        k.e("v_or3_b32 v%d, v%d, v%d, v%d" % (vRaw + 4, vRaw, vRaw + 1, vRaw + 2))
        k.e("v_or_b32 v%d, v%d, v%d" % (vRaw + 4, vRaw + 4, vRaw + 3))
        k.e("v_cmp_ne_u32 vcc, 0, v%d" % (vRaw + 4))

    def first_missing(sdst, stmp, vRaw=vRaw):
        k.e("s_ff1_i32_b64 s%d, vcc" % stmp)
        k.e("v_cmp_ne_u32 vcc, 0, v%d" % (vRaw + 2))
        k.e("s_nop 1")
        k.e("v_cndmask_b32 v%d, 3, 2, vcc" % (vRaw + 4))
        k.e("v_cmp_ne_u32 vcc, 0, v%d" % (vRaw + 1))
        k.e("s_nop 1")
        k.e("v_cndmask_b32 v%d, v%d, 1, vcc" % (vRaw + 4, vRaw + 4))
        k.e("v_cmp_ne_u32 vcc, 0, v%d" % vRaw)
        k.e("s_nop 1")
        k.e("v_cndmask_b32 v%d, v%d, 0, vcc" % (vRaw + 4, vRaw + 4))
        k.e("s_nop 1")
        k.e("v_readlane_b32 s%d, v%d, s%d" % (sdst, vRaw + 4, stmp))
        k.e("s_nop 3")
        k.e("s_lshl2_add_u32 s%d, s%d, s%d" % (sdst, stmp, sdst))
        k.e("s_cmp_lt_i32 s%d, 0" % stmp)
        k.e("s_cselect_b32 s%d, -1, s%d" % (sdst, sdst))

    def poll_check():
        lab, back = k.newlabel("pollslow"), k.newlabel("pollback")
        poll_eval()
        k.e("s_cbranch_vccnz %s" % lab)
        k.label(back)
        slow.append((lab, back))

    def trk(f):
        def h():
            f()
            k.vmq.append("pf")
        return h

    quads = [208 + 4 * i for i in range(12)] + [2, 6, 10, 16]
    vPS = 208

    def ps_issue():
        lab = k.newlabel("nops")
        k.e("s_cmp_lg_u32 s%d, 0" % g.sWave)
        k.e("s_cbranch_scc1 %s" % lab)
        k.e("buffer_load_dwordx4 %s, v%d, %s, 0 offen offset:%d sc1" % (vr(vPS, 4), g.vLane16, sr(sDb, 4), FL_PS))
        k.label(lab)

    def ps_eval():
        lab = k.newlabel("nops2")
        k.e("s_cmp_lg_u32 s%d, 0" % g.sWave)
        k.e("s_cbranch_scc1 %s" % lab)
        poll_eval(vPS)
        first_missing(78, 79, vPS)
        k.e("v_mov_b32 v%d, s78" % vPS)
        k.e("v_mov_b32 v%d, %d" % (vPS + 1, NONCEW + 4))
        k.e("ds_write_b32 v%d, v%d" % (vPS + 1, vPS))
        k.label(lab)

    def ps_read():
        k.e("v_mov_b32 v%d, %d" % (vPS + 1, NONCEW + 4))
        k.lds_op("ds_read_b32 v%d, v%d" % (vPS, vPS + 1), [vPS])
        k.lds_need([vPS])
        k.e("v_readfirstlane_b32 s%d, v%d" % (sHelp, vPS))

    def kv_poll():
        AT.kv_flag_addr(k, 17, 16, 2, sTa, sTb)
        k.vm_op("buffer_load_dword v16, v17, %s, 0 offen sc1" % sr(sDb, 4), "kvp")

    STG = g.lds_bytes
    sStD = 61
    vStg = 20

    def kvstage(i, slot, idx):
        def f():
            if i == 0:
                k.e("s_and_b32 s%d, s%d, 3" % (sTa, g.sWave))
                k.e("s_lshl_b32 s%d, s%d, 11" % (sTa, sTa))
                k.e("s_add_u32 s%d, s%d, %d" % (sTa, sTa, STG))
                k.e("v_add_u32 v%d, s%d, v%d" % (vStg, sTa, g.vLane16))
            k.lds_op("ds_write_b128 v%d, %s offset:%d" % (vStg, vr(quads[i], 4), slot * 8192 + idx * 1024))
        return f

    def kvfetch(i, slot, idx):
        def f():
            if i == 0:
                k.e("s_and_b32 s%d, s%d, 3" % (sTa, g.sWave))
                k.e("s_lshl_b32 s%d, s%d, 11" % (sTa, sTa))
                k.e("s_add_u32 s%d, s%d, %d" % (sTa, sTa, STG))
                k.e("v_add_u32 v%d, s%d, v%d" % (vStg, sTa, g.vLane16))
                k.e("s_sub_u32 s%d, s%d, 32768" % (sStD, sStA))
            k.lds_op("ds_read_b128 %s, v%d offset:%d" % (vr(quads[i], 4), vStg, slot * 8192 + idx * 1024), rng(quads[i], 4))
        return f

    def kvstore2(i):
        def f():
            r = i % 4
            k.lds_need(rng(quads[i], 4))
            k.vm_op("buffer_store_dwordx4 %s, v%d, %s, s%d offen offset:%d%s" % (vr(quads[i], 4), g.vLane16, sr(g.sO, 4), sStD, r * 1024, TRFLAGS), "st")
            if r == 3:
                k.e("s_add_u32 s%d, s%d, 8192" % (sStD, sStD))
        return f

    def kvstore(i):
        def f():
            tm, r = i // 4, i % 4
            k.vm_op("buffer_store_dwordx4 %s, v%d, %s, s%d offen offset:%d%s" % (vr(quads[i], 4), g.vLane16, sr(g.sO, 4), sStA, r * 1024, TRFLAGS), "st")
            if r == 3:
                k.e("s_add_u32 s%d, s%d, 8192" % (sStA, sStA))
        return f

    stamp(k, 2)
    k.e("s_cmp_ge_u32 s%d, 4" % g.sWave)
    k.e("s_cbranch_scc1 L_pj_roleP")
    for role in ("D", "P"):
        D = role == "D"
        if not D:
            k.label("L_pj_roleP")
        k.ldsq = []
        k.vmq = list(vmqD if D else vmqP)
        if D:
            k.e("s_mul_i32 s%d, s%d, s%d" % (sTa, sHeadB, sHv))
            k.e("s_lshl_b32 s%d, s%d, 8" % (sTa, sTa))
            k.e("s_sub_u32 s%d, %d, s%d" % (sTb, 1024 * 7168, sTa))
            srd(k, sPf, sW1, "s%d" % sTa, "s%d" % sTb)
            k.e("s_movk_i32 s78, 7168")
            setup_splitB_dma(k, g, jB, 16)
            k.vm_need(["dma0"])
        k.e("s_barrier")
        stamp(k, 3)
        if os.environ.get("PJT"):
            stamp(k, 2, force=True)
        state0 = (list(k.ldsq), list(k.vmq))
        k.e("s_cmp_eq_u32 s%d, 0" % sIsV)
        k.e("s_cbranch_scc0 L_pj_V%s" % role)
        end_state = None
        pfB = [trk(f) for f in pf_all(sWQ, 8 * MB) + pf_all(sW1, 1024 * 7168)]
        pfB = pfB[0::2] + pfB[1::2] if len(pfB) == 4 else pfB
        pfO = [trk(f) for f in pf_all(sWO, 8 * MB) + pf_all(sW2, 3584 * 2048)]
        for jA in (jK, jV):
            if jA is jV:
                k.label("L_pj_V%s" % role)
                k.ldsq, k.vmq = list(state0[0]), list(state0[1])
            for f in read_list(k, g, jA, 0, 0, 0):
                f()
            lnp = split_list(ln_steps(k, g, via_lds=True), 6)
            lns = ln_store_steps(k, g)
            carry = []
            pfsplit = split_list(pfB, 4)
            for t in range(8):
                extra = {}
                post = None
                need = ["dma%d" % (t + 1)]
                if t == 0:
                    extra = {0: lnp[0], 1: lnp[1], 2: lnp[2]}
                elif t == 1:
                    extra = {0: lnp[3], 1: lnp[4], 2: lnp[5]}
                elif t == 2:
                    extra = {} if D else {0: lns[0:2], 1: lns[2:3], 2: [nonce2]}
                elif t == 3:
                    extra = {0: [nonce3], 1: [nonce4]}
                    need.append("lnst")
                    if not D:
                        post = signal
                elif t == 5 and D:
                    extra = {2: [poll_issue]}
                elif t == 6 and D:
                    need.append("poll")
                    post = poll_check
                if t == 7:
                    post = lambda: setup_splitB_reads(k, g, 16)
                if not D and FINE and t < 2:
                    extra[1] = extra[1] + [trk(pf1(sWUK, (2 + t) * MB)), trk(pf1(sWUV, (2 + t) * MB))]
                if not D and 3 <= t < 7:
                    extra[3] = pfsplit[t - 3]
                if os.environ.get("PJT") == "A":
                    post0 = post
                    post = (lambda post0=post0, t=t: (stamp(k, 3 + t, force=True), post0() if post0 else None))
                jd = (jA if t < 6 else jB) if D else None
                jn = jA if t < 7 else jB
                carry = gemm_body(k, g, t % 2, jA, jn, jd, need, "dma%d" % (t + 2), extra=extra,
                                  cinit=(lambda tm, tn: "0") if t == 0 else None, post_barrier=post,
                                  carry=carry, ncarry=NCARRY if D else 0)
            st = (list(k.ldsq), list(k.vmq))
            if end_state is None:
                end_state = st
                k.e("s_branch L_pj_T%s" % role)
            else:
                assert st == end_state
        k.label("L_pj_T%s" % role)
        if DIAG:
            stamp(k, 5)
        cnt = [0]

        def pre(tm, tn):
            for p in range(2):
                pack_only(k, g.acc(tm, tn) + 8 * p, quads[cnt[0]])
                cnt[0] += 1
        PFO0 = int(os.environ.get("PFO0", "19"))
        PFON = int(os.environ.get("PFON", "3"))
        pfsplit = split_list(pfO, PFON)
        for t in range(8, 24):
            last = t == 23
            NST = int(os.environ.get("NST", "10"))
            st0, st1 = ((t - 8) * 16) // NST, ((t - 7) * 16) // NST
            sts = [kvstore(i) for i in range(st0, min(st1, 16))] if t < 8 + NST else []
            ex = {0: sts[:1], 1: sts[1:], 2: []}
            needB = ["dma%d" % (t + 1)]
            postB = None
            if t == 9 + NST:
                needB.append("st")
                if not D:
                    postB = signal_kv
            if os.environ.get("PJT") == "B" and t < 20:
                postB = (lambda post0=postB, t=t: (stamp(k, 2 + t - 8, force=True), post0() if post0 else None))
            if t == 15 and D:
                ex[2] = ex[2] + [ps_issue]
            if t == 17 and D:
                ex[2] = [ps_eval]
            if t == 19:
                ex[2] = [ps_read]
            if t == 22:
                ex[2] = [kv_poll]
            if not D and PFO0 <= t < PFO0 + PFON:
                ex[3] = pfsplit[t - PFO0]
            if t == 20:
                ex[0] = ex[0] + bias_loads()
            if t == 21:
                bu = split_list(bias_unpack(), 3)
                ex[0] = bu[0]; ex[1] = bu[1]; ex[2] = bu[2]
            carry = gemm_body(k, g, t % 2, jB, None if last else jB, jB if (t < 22 and D) else None, needB, "dma%d" % (t + 2), extra=ex, post_barrier=postB,
                              cinit=(lambda tm, tn: "0") if t == 8 else None, pre=pre if t == 8 else None,
                              carry=carry, ncarry=NCARRY if D else 0)
        if D:
            k.e("s_branch L_pj_epi")
    k.label("L_pj_epi")
    k.e("s_waitcnt lgkmcnt(0)")
    k.e("s_barrier")
    stamp(k, 4)
    eO, sFo, sWv, sEm, sEn = 64, 68, 69, 70, 71
    k.e("s_mov_b32 s%d, s%d" % (sWv, g.sWave))
    k.e("s_mov_b32 s%d, s%d" % (sEm, g.sWm))
    k.e("s_mov_b32 s%d, s%d" % (sEn, g.sWn))
    k.e("s_lshl_b32 s%d, s%d, 5" % (sFo, sPiB))
    k.e("s_add_u32 s%d, s%d, s%d" % (sFo, sFo, sHeadB))
    k.e("s_lshl_b32 s%d, s%d, 2" % (sFo, sFo))
    k.e("s_add_u32 s%d, s%d, %d" % (sFo, sFo, FL_QH))
    srd(k, eO, sWS, WS_AH, 2048 * 7680 * 2)
    k.e("s_sub_u32 s%d, 15, s%d" % (sTa, sPiB))
    k.e("s_cmp_eq_u32 s%d, 0" % sEm)
    k.e("s_cselect_b32 s%d, s%d, s%d" % (sTa, sTa, sPiB))
    k.e("s_mul_i32 s%d, s%d, 1920" % (sTa, sTa))
    k.e("s_lshl3_add_u32 s%d, s%d, s%d" % (sStA, sHeadB, sTa))
    k.e("s_lshl1_add_u32 s%d, s%d, s%d" % (sStA, sEn, sStA))
    k.e("s_add_u32 s%d, s%d, 256" % (sStA, sStA))
    k.e("s_lshl_b32 s%d, s%d, 10" % (sStA, sStA))
    k.e("s_mov_b32 s%d, s2" % AT.sTask)
    AT.attn_setup(k)
    k.e("s_cmp_ge_i32 s%d, 0" % sHelp)
    k.e("s_cbranch_scc1 L_pj_noearly0")
    k.e("s_waitcnt vmcnt(0)")
    AT.spin_flags(k, 17, 16, first_loaded=True)
    for f in AT.dma_k(k, 0) + AT.dma_v(k, 0) + AT.dma_k(k, 1):
        f()
    k.label("L_pj_noearly0")
    stamp(k, 2)
    AT.attn_setup2(k)
    k.e("s_mov_b32 s78, 0x%08x" % f32bits(QSCALE))
    k.e("s_mov_b32 s79, 0x%08x" % f32bits(QSCALE))
    k.e("s_lshl_b32 s%d, s%d, 15" % (sEm, sEm))
    k.e("s_lshl_b32 s%d, s%d, 11" % (sEn, sEn))
    k.e("s_add_u32 s%d, s%d, s%d" % (sEm, sEm, sEn))
    k.e("s_add_u32 s%d, s%d, 98304" % (sEm, sEm))
    k.e("v_add_u32 v14, s%d, v%d" % (sEm, g.vLane16))
    for tm in range(4):
        for p in range(2):
            src = g.acc(tm, 0) + 8 * p
            for i in range(4):
                k.e("v_pk_mul_f32 %s, %s, s[78:79]" % (vr(src + 2 * i, 2), vr(src + 2 * i, 2)))
            pack_only(k, src, src)
            k.e("ds_write_b128 v14, %s offset:%d" % (vr(src, 4), tm * 8192 + p * 1024))
    k.e("s_cmp_eq_u32 s%d, 0" % sHv)
    k.e("s_cbranch_scc1 L_pj_H0")
    k.e("s_mov_b32 s78, 0x%08x" % f32bits(GELU_C2))
    k.e("s_mov_b32 s79, 0x%08x" % f32bits(GELU_C2))
    vC = 64
    k.e("v_mov_b32 v%d, 0x%08x" % (vC, f32bits(GELU_C1)))
    k.e("v_mov_b32 v%d, 0x%08x" % (vC + 1, f32bits(GELU_C1)))
    k.e("v_mov_b32 v%d, 1.0" % (vC + 2))
    k.e("v_mov_b32 v%d, 1.0" % (vC + 3))
    c1 = vr(vC, 2)
    one2 = vr(vC + 2, 2)
    tq = 0
    for tm in range(4):
        for p in range(2):
            src = g.acc(tm, 1) + 8 * p
            tb = 48 + 8 * (tq % 2)
            for i in range(4):
                k.e("v_pk_add_f32 %s, %s, %s" % (vr(src + 2 * i, 2), vr(src + 2 * i, 2), vr(vBias + 16 + 8 * p + 2 * i, 2)))
            for i in range(4):
                k.e("v_pk_mul_f32 %s, %s, %s" % (vr(tb + 2 * i, 2), vr(src + 2 * i, 2), vr(src + 2 * i, 2)))
            for i in range(4):
                k.e("v_pk_fma_f32 %s, %s, s[78:79], %s" % (vr(tb + 2 * i, 2), vr(tb + 2 * i, 2), c1))
            for i in range(4):
                k.e("v_pk_mul_f32 %s, %s, %s" % (vr(tb + 2 * i, 2), vr(tb + 2 * i, 2), vr(src + 2 * i, 2)))
            for i in range(8):
                k.e("v_exp_f32 v%d, v%d" % (tb + i, tb + i))
            for i in range(4):
                k.e("v_pk_add_f32 %s, %s, %s" % (vr(tb + 2 * i, 2), vr(tb + 2 * i, 2), one2))
            for i in range(8):
                k.e("v_rcp_f32 v%d, v%d" % (tb + i, tb + i))
            for i in range(4):
                k.e("v_pk_mul_f32 %s, %s, %s" % (vr(src + 2 * i, 2), vr(src + 2 * i, 2), vr(tb + 2 * i, 2)))
            pack_only(k, src, src)
            tq += 1
    k.e("s_waitcnt vmcnt(0)")
    for tm in range(4):
        for p in range(2):
            src = g.acc(tm, 1) + 8 * p
            k.e("buffer_store_dwordx4 %s, v%d, %s, s%d offen offset:%d sc1" % (vr(src, 4), g.vLane16, sr(eO, 4), sStA, p * 1024))
        if tm < 3:
            k.e("s_add_u32 s%d, s%d, %d" % (sStA, sStA, 480 * 1024))
    k.e("s_waitcnt lgkmcnt(0)")
    k.e("s_branch L_pj_fin")
    k.label("L_pj_H0")
    k.e("s_waitcnt vmcnt(0) lgkmcnt(0)")
    k.label("L_pj_fin")
    stamp(k, 3)
    k.e("s_cmp_ge_i32 s%d, 0" % sHelp)
    k.e("s_cbranch_scc1 L_pj_help")
    k.e("s_barrier")
    k.e("s_mul_i32 s%d, s%d, s%d" % (AT.sPend, sFo, sHv))
    k.e("s_lshl_b32 s78, s%d, 13" % AT.sWq)
    k.e("s_add_u32 s78, s78, 98304")
    k.e("v_add_u32 v14, s78, v%d" % g.vLane16)
    for C in range(8):
        k.e("ds_read_b128 %s, v14 offset:%d" % (vr(AT.vQ + 4 * C, 4), C * 1024))
    stamp(k, 7)
    if DIAG:
        k.e("v_mov_b32 v14, v78")
        k.e("v_mov_b32 v15, v79")
    k.e("s_branch L_at_fast")
    k.label("L_pj_help")
    k.e("s_waitcnt vmcnt(0)")
    k.e("s_barrier")
    lab = k.newlabel("noqh")
    k.e("s_cmp_lg_u32 s%d, 4" % sWv)
    k.e("s_cbranch_scc1 %s" % lab)
    k.e("v_mov_b32 v%d, 0" % (vPk + 4))
    k.e("v_mov_b32 v%d, s%d" % (vPk + 5, sNonce))
    k.e("s_mov_b64 exec, 1")
    k.e("buffer_store_dword v%d, v%d, %s, s%d offen sc1" % (vPk + 5, vPk + 4, sr(sDb, 4), sFo))
    k.e("s_mov_b64 exec, -1")
    k.label(lab)
    k.e("s_mov_b32 s2, s%d" % sHelp)
    k.e("s_branch L_pj_task")

    def emit_slow():
        for lab, back in slow:
            spin, helpl, rowl = k.newlabel("spin"), k.newlabel("help"), k.newlabel("rowl")
            k.label(lab)
            k.e("s_mov_b32 s78, 0")
            k.label(spin)
            k.e("buffer_load_dwordx4 %s, v%d, %s, 0 offen offset:%d sc1" % (vr(vRaw, 4), g.vLane16, sr(sDb, 4), FL_LN))
            k.e("s_waitcnt vmcnt(0)")
            poll_eval()
            k.e("s_cbranch_vccz %s" % back)
            k.e("s_add_u32 s78, s78, 1")
            k.e("s_cmp_ge_u32 s78, 32")
            k.e("s_cbranch_scc1 %s" % helpl)
            k.e("s_sleep 8")
            k.e("s_branch %s" % spin)
            k.label(helpl)
            first_missing(79, sTa)
            k.e("s_lshl_b32 s%d, s79, 3" % sRow)
            k.e("s_mov_b32 s78, 8")
            k.label(rowl)
            sv = (list(k.ldsq), list(k.vmq))
            k.vmq = []
            ln_load(k, g)
            for f in ln_steps(k, g):
                f()
            k.e("s_add_u32 s%d, s%d, 1" % (sRow, sRow))
            k.e("s_sub_u32 s78, s78, 1")
            k.e("s_cmp_lg_u32 s78, 0")
            k.e("s_cbranch_scc1 %s" % rowl)
            k.e("s_waitcnt vmcnt(0)")
            k.e("s_lshl_b32 s79, s79, 2")
            k.e("v_mov_b32 v%d, s79" % g.vTmp)
            k.e("v_mov_b32 v%d, s%d" % (g.vTmp + 1, sNonce))
            k.e("s_mov_b64 exec, 1")
            k.e("buffer_store_dword v%d, v%d, %s, 0 offen offset:%d sc1" % (g.vTmp + 1, g.vTmp, sr(sDb, 4), FL_LN))
            k.e("s_mov_b64 exec, -1")
            k.ldsq, k.vmq = sv
            k.e("s_mov_b32 s78, 31")
            k.e("s_branch %s" % spin)
    tail_code.append(emit_slow)
```

```python
from asmlib import *

STFLAGS = os.environ.get("STFLAGS", "sc1")


def log2(x):
    n = x.bit_length() - 1
    assert 1 << n == x
    return n


class Job:
    def __init__(self, amode, swap, sA, sB, sAoff, sBoff, sAstep, sBstep, sPitchA, sPitchB, vDA, vDB, vRA, name="j"):
        self.amode, self.swap = amode, swap
        self.sA, self.sB, self.sAoff, self.sBoff = sA, sB, sAoff, sBoff
        self.sAstep, self.sBstep, self.sPitchA, self.sPitchB = sAstep, sBstep, sPitchA, sPitchB
        self.vDA, self.vDB, self.vRA = vDA, vDB, vRA
        self.name = name
        self.sAoff2 = None
        self.sBoff2 = None
        self.splitB = None
        self.vRB = None


class GemmCfg:
    def __init__(self, TM=4, TN=2, WM=2, WN=4, NS=2, vRB=12, vTmp=16, vF=24):
        self.TM, self.TN, self.WM, self.WN, self.NS = TM, TN, WM, WN, NS
        self.BM = 32 * TM * WM
        self.BN = 32 * TN * WN
        self.NW = WM * WN
        self.A_stage = self.BM * 128
        self.B_stage = self.BN * 128
        self.NA = self.A_stage // 1024 // self.NW
        self.NB = self.B_stage // 1024 // self.NW
        self.ND = self.NA + self.NB
        self.lds_bytes = NS * (self.A_stage + self.B_stage)
        assert self.NA <= 4 and self.NB <= 4 and TN == 2
        self.sep_stage = (NS > 2)
        self.nst = NS if self.sep_stage else 1
        self.vLane16 = 1
        self.vRB = vRB
        self.vTmp = vTmp
        self.fragsz = 4 * (TM + TN)
        self.vF = vF
        self.vAcc = (self.vF + 2 * self.fragsz + 15) // 16 * 16
        self.nvgpr = self.vAcc + 16 * TM * TN
        assert self.nvgpr <= 256, self.nvgpr
        self.sO = 12
        self.sCnt = 18
        self.sWave = 19
        self.sM0A = 20
        self.sM0B = 23
        self.sWm = 27
        self.sWn = 28
        self.sT0 = 31
        self.sT1 = 32
        self.sVW = self.sWave

    def fA(self, s, i):
        return self.vF + s * self.fragsz + 4 * i

    def fB(self, j):
        return self.vF + (j >> 1) * self.fragsz + 4 * self.TM + 4 * (j & 1)

    def acc(self, tm, tn):
        return self.vAcc + 16 * (tm * self.TN + tn)

    def ldsA(self, s):
        if getattr(self, "layA", None):
            return self.layA[s]
        return s * self.A_stage

    def ldsB(self, s):
        if getattr(self, "layB", None):
            return self.layB[s]
        return self.NS * self.A_stage + s * self.B_stage


def swz(k, d, row, t):
    k.e("v_and_b32 v%d, 3, v%d" % (d, row))
    k.e("v_lshlrev_b32 v%d, 2, v%d" % (d, d))
    k.e("v_bfe_u32 v%d, v%d, 3, 1" % (t, row))
    k.e("v_lshl_or_b32 v%d, v%d, 1, v%d" % (d, t, d))


def bread_base(k, g, rowb, vt):
    t0, t1, t2, t3 = vt, vt + 1, vt + 2, vt + 3
    k.e("v_bfe_u32 v%d, v%d, 6, 2" % (t2, g.vLane16))
    k.e("v_lshrrev_b32 v%d, 8, v%d" % (t1, g.vLane16))
    k.e("v_lshl_add_u32 v%d, v%d, 3, v%d" % (t1, t1, t2))
    swz(k, t0, t1, t3)
    k.e("v_lshlrev_b32 v%d, %d, v%d" % (t1, log2(rowb), t1))
    k.e("v_bfe_u32 v%d, v%d, 4, 1" % (t2, g.vLane16))
    k.e("v_lshl_add_u32 v%d, v%d, 3, v%d" % (t1, t2, t1))
    k.e("v_bfe_u32 v%d, v%d, 5, 1" % (t2, g.vLane16))


def gemm_setup_common(k, g):
    t0, t1, t2, t3 = g.vTmp, g.vTmp + 1, g.vTmp + 2, g.vTmp + 3
    lane = g.vTmp + 4
    k.c("---- gemm setup (common)")
    k.e("v_lshrrev_b32 v%d, 6, v0" % t0)
    k.e("v_and_b32 v%d, 63, v0" % lane)
    k.e("v_readfirstlane_b32 s%d, v%d" % (g.sWave, t0))
    k.e("v_lshlrev_b32 v%d, 4, v%d" % (g.vLane16, lane))
    k.e("s_nop 1")
    k.e("s_lshr_b32 s%d, s%d, %d" % (g.sWm, g.sWave, log2(g.WN)))
    k.e("s_and_b32 s%d, s%d, %d" % (g.sWn, g.sWave, g.WN - 1))
    assert g.sVW != g.sWave
    k.e("s_and_b32 s%d, s%d, 3" % (g.sVW, g.sWave))
    k.e("s_lshl_b32 s%d, s%d, 1" % (g.sVW, g.sVW))
    for s in range(g.NS):
        k.e("s_mul_i32 s%d, s%d, %d" % (g.sT0, g.sVW, g.NA * 1024))
        k.e("s_add_u32 s%d, s%d, %d" % (g.sM0A + s, g.sT0, g.ldsA(s)))
        k.e("s_mul_i32 s%d, s%d, %d" % (g.sT0, g.sVW, g.NB * 512))
        k.e("s_add_u32 s%d, s%d, %d" % (g.sM0B + s, g.sT0, g.ldsB(s)))
    bread_base(k, g, g.BN * 2, g.vTmp)
    for j in range(4):
        k.e("s_lshl_b32 s%d, s%d, 3" % (g.sT0, g.sWn))
        k.e("s_add_u32 s%d, s%d, %d" % (g.sT0, g.sT0, j * 2))
        k.e("v_add_u32 v%d, s%d, v%d" % (t3, g.sT0, t2))
        k.e("v_xor_b32 v%d, v%d, v%d" % (t3, t3, t0))
        k.e("v_lshl_add_u32 v%d, v%d, 4, v%d" % (t3, t3, t1))
        k.e("v_add_u32 v%d, %d, v%d" % (g.vRB + j, g.ldsB(0), t3))


def gemm_setup_job(k, g, j):
    t0, t1, t2, t3 = g.vTmp, g.vTmp + 1, g.vTmp + 2, g.vTmp + 3
    lane = g.vTmp + 4
    t5 = g.vTmp + 5
    assert j.amode == "row" and g.NA == 4
    k.e("s_mul_i32 s%d, s%d, %d" % (g.sT0, g.sVW, 8 * g.NA))
    k.e("v_lshrrev_b32 v%d, 3, v%d" % (t0, lane))
    k.e("v_add_u32 v%d, s%d, v%d" % (t0, g.sT0, t0))
    k.e("v_and_b32 v%d, 7, v%d" % (t1, lane))
    for i in range(g.NA):
        k.e("v_add_u32 v%d, %d, v%d" % (t2, 8 * i, t0))
        k.e("v_bfe_u32 v%d, v%d, 1, 3" % (t3, t2))
        k.e("v_xor_b32 v%d, v%d, v%d" % (t3, t3, t1))
        k.e("v_mul_lo_u32 v%d, v%d, s%d" % (t2, t2, j.sPitchA))
        k.e("v_lshl_add_u32 v%d, v%d, 4, v%d" % (t2, t3, t2))
        k.e("v_subrev_u32 v%d, %d, v%d" % (j.vDA + i, 1024 * i, t2))
    rpi = 1024 // (g.BN * 2)
    cpr = g.BN // 8
    k.e("s_lshl_b32 s%d, s%d, 2" % (g.sT0, g.sVW))
    k.e("s_lshl_b32 s%d, s%d, 5" % (j.sAoff2, j.sPitchA))
    k.e("s_add_u32 s%d, s%d, s%d" % (j.sAoff2, j.sAoff2, j.sAoff))
    k.e("s_lshl_b32 s%d, s%d, 5" % (j.sBoff2, j.sPitchB))
    k.e("s_add_u32 s%d, s%d, s%d" % (j.sBoff2, j.sBoff2, j.sBoff))
    k.e("v_lshrrev_b32 v%d, %d, v%d" % (t0, log2(cpr), lane))
    k.e("v_add_u32 v%d, s%d, v%d" % (t0, g.sT0, t0))
    k.e("v_and_b32 v%d, %d, v%d" % (t1, cpr - 1, lane))
    for i in range(g.NB):
        k.e("v_add_u32 v%d, %d, v%d" % (t2, rpi * i, t0))
        swz(k, t3, t2, t5)
        k.e("v_xor_b32 v%d, v%d, v%d" % (t3, t3, t1))
        k.e("v_mul_lo_u32 v%d, v%d, s%d" % (t2, t2, j.sPitchB))
        k.e("v_lshl_add_u32 v%d, v%d, 4, v%d" % (t2, t3, t2))
        k.e("v_subrev_u32 v%d, %d, v%d" % (j.vDB + i, 1024 * i, t2))
    k.e("s_mul_i32 s%d, s%d, %d" % (g.sT0, g.sWm, g.TM * 32 * 128))
    k.e("v_and_b32 v%d, 15, v%d" % (t0, lane))
    k.e("v_bfe_u32 v%d, v%d, 1, 3" % (t1, lane))
    k.e("v_lshrrev_b32 v%d, 4, v%d" % (t2, lane))
    k.e("v_xor_b32 v%d, v%d, v%d" % (t1, t1, t2))
    k.e("v_lshlrev_b32 v%d, 7, v%d" % (t0, t0))
    k.e("v_add_u32 v%d, s%d, v%d" % (t0, g.sT0, t0))
    for ks in range(2):
        k.e("v_xor_b32 v%d, %d, v%d" % (t2, 4 * ks, t1))
        k.e("v_lshl_add_u32 v%d, v%d, 4, v%d" % (j.vRA + ks, t2, t0))


def afrag_lane(k, g, d, t):
    k.e("v_lshrrev_b32 v%d, 8, v%d" % (t, g.vLane16))
    k.e("v_and_b32 v%d, 0xf0, v%d" % (d, g.vLane16))
    k.e("v_lshl_add_u32 v%d, v%d, 9, v%d" % (d, t, d))


def dma_list(k, g, j, s, tag="dma"):
    out = []
    halves = [0, 1] if j.sAoff2 is not None else [0]

    def a_i(i, h):
        def f():
            off = j.sAoff2 if h else j.sAoff
            if i == 0:
                if h:
                    k.e("s_add_u32 m0, s%d, %d" % (g.sM0A + s, g.NA * 1024))
                else:
                    k.e("s_mov_b32 m0, s%d" % (g.sM0A + s))
                k.e("s_nop 0")
            va = j.vDA if j.amode == "frag" else j.vDA + i
            k.vm_op("buffer_load_dwordx4 v%d, %s, s%d offen offset:%d lds" % (va, sr(j.sA, 4), off, 1024 * i), tag)
            if i == g.NA - 1:
                k.e("s_add_u32 s%d, s%d, s%d" % (off, off, j.sAstep))
        return f

    def b_i(i, h):
        def f():
            off = j.sBoff2 if h else j.sBoff
            srdB, vd, step = j.sB, j.vDB, j.sBstep
            if j.splitB and h:
                srdB, vd, step = j.splitB[0], j.splitB[1], j.splitB[2]
            if i == 0:
                if h:
                    k.e("s_add_u32 m0, s%d, 16384" % (g.sM0B + s))
                else:
                    k.e("s_mov_b32 m0, s%d" % (g.sM0B + s))
                k.e("s_nop 0")
            k.vm_op("buffer_load_dwordx4 v%d, %s, s%d offen offset:%d lds" % (vd + i, sr(srdB, 4), off, 1024 * i), tag)
            if i == g.NB - 1:
                k.e("s_add_u32 s%d, s%d, s%d" % (off, off, step))
        return f

    for h in halves:
        for i in range(g.NB):
            out.append(b_i(i, h))
    for h in halves:
        for i in range(g.NA):
            out.append(a_i(i, h))
    return out


def a_reads(k, g, j, s, ph, fset):
    ks, half = ph >> 1, ph & 1
    out = []
    for i in range(g.TM):
        def f(i=i):
            m16 = half * g.TM + i
            if j.amode == "frag":
                off = (m16 >> 1) * 4096 + ks * 2048 + (m16 & 1) * 256
                if g.sep_stage:
                    addr = j.vRA + s
                else:
                    addr, off = j.vRA, off + g.ldsA(s)
            else:
                addr, off = j.vRA + ks, g.ldsA(s) + m16 * 2048
            assert off < 65536
            d = g.fA(fset, i)
            k.lds_op("ds_read_b128 %s, v%d offset:%d" % (vr(d, 4), addr, off), rng(d, 4))
        out.append(f)
    return out


def b_reads(k, g, j, s, ks, n16):
    rowb = 256 if j.splitB else g.BN * 2
    out = []
    for sub in range(2):
        def f(sub=sub):
            off = (32 * ks + 4 * sub) * rowb
            if j.splitB:
                addr, off = j.vRB + (n16 & 1), off + s * g.B_stage + (n16 >> 1) * 16384
            elif g.sep_stage:
                addr = g.vRB + s * 4 + n16
            else:
                addr, off = g.vRB + n16, off + s * g.B_stage
            assert off < 65536
            d = g.fB(n16) + 2 * sub
            k.lds_op("ds_read_b64_tr_b16 %s, v%d offset:%d" % (vr(d, 2), addr, off), rng(d, 2))
        out.append(f)
    return out


def read_list(k, g, j, s, kk, fset):
    assert kk == 0 and fset == 0
    out = b_reads(k, g, j, s, 0, 0) + a_reads(k, g, j, s, 0, 0)
    for n16 in range(1, 4):
        out += b_reads(k, g, j, s, 0, n16)
    return out


def mfma_list(k, g, j, ph, cinit=None, pre=None):
    half, fset = ph & 1, ph & 1
    out = []
    for n16 in range(4):
        for i in range(g.TM):
            def f(n16=n16, i=i):
                m16 = half * g.TM + i
                tm, mh, tn, nh = m16 >> 1, m16 & 1, n16 >> 1, n16 & 1
                if pre and mh == 0 and nh == 0:
                    pre(tm, tn)
                a, b = g.fA(fset, i), g.fB(n16)
                c = g.acc(tm, tn) + (8 * nh + 4 * mh if j.swap else 8 * mh + 4 * nh)
                k.lds_need(list(rng(a, 4)) + list(rng(b, 4)))
                if j.swap:
                    a, b = b, a
                cs = cinit(tm, tn) if cinit else vr(c, 4)
                k.e("v_mfma_f32_16x16x32_bf16 %s, %s, %s, %s" % (vr(c, 4), vr(a, 4), vr(b, 4), cs))
            out.append(f)
    return out


def gemm_body(k, g, u, jc, jn, jd, need_tags, dma_tag, extra=None, cinit=None, pre=None, post_barrier=None, vmwait=None, carry=None, ncarry=0):
    nm = 4 * g.TM
    extra = dict(extra or {})
    carry_out = []
    if carry:
        C2 = int(os.environ.get("CARRY2", "0"))
        c0, c1 = (carry[:len(carry) - C2], carry[len(carry) - C2:]) if C2 else (carry, [])
        extra[0] = list(c0) + list(extra.get(0, []))
        extra[2] = list(c1) + list(extra.get(2, []))
    for ph in range(4):
        nxt = (ph + 1) & 1
        areads, breads, others = [], {}, []
        if ph == 3:
            if jn is not None:
                n = k.vm_count(need_tags) if vmwait is None else vmwait
                k.lds_drain("vmcnt(%d)" % n if n is not None else "")
                k.e("s_barrier")
                if post_barrier:
                    post_barrier()
                areads = a_reads(k, g, jn, (u + 1) % g.NS, 0, nxt)
                breads = {n16: b_reads(k, g, jn, (u + 1) % g.NS, 0, n16) for n16 in range(4)}
            if jd is not None:
                dl = dma_list(k, g, jd, u, dma_tag)
                if ncarry:
                    carry_out = dl[len(dl) - ncarry:]
                    dl = dl[:len(dl) - ncarry]
                others += dl
        else:
            areads = a_reads(k, g, jc, u, ph + 1, nxt)
            if ph == 1:
                breads = {n16: b_reads(k, g, jc, u, 1, n16) for n16 in range(4)}
        others += list(extra.get(ph, []))
        gaps = [[] for _ in range(nm)]
        for i, f in enumerate(areads):
            gaps[i].append(f)
        for n16, fs in breads.items():
            gaps[(n16 + 1) * g.TM - 1] += fs
        ne = len(others)
        for i, f in enumerate(others):
            gaps[(i * nm) // ne].append(f)
        first = ph < 2
        ms = mfma_list(k, g, jc, ph, cinit if first else None, pre if first else None)
        for m, fl in zip(ms, gaps):
            m()
            for f in fl:
                f()
    return carry_out


def gemm_loop(k, g, j, first_stage, ntiles_dma, name, extra3=None):
    assert ntiles_dma % g.NS == 0
    nloop = ntiles_dma // g.NS
    if nloop == 0:
        return
    lab = k.newlabel(name + "_loop")
    k.e("s_mov_b32 s%d, %d" % (g.sCnt, nloop))
    q0 = list(k.ldsq)
    k.label(lab)
    for i in range(g.NS):
        gemm_body(k, g, (first_stage + i) % g.NS, j, j, j, None, "dma", vmwait=(g.NS - 2) * g.ND)
    assert k.ldsq == q0, (k.ldsq, q0)
    k.e("s_sub_u32 s%d, s%d, 1" % (g.sCnt, g.sCnt))
    k.e("s_cmp_lg_u32 s%d, 0" % g.sCnt)
    k.e("s_cbranch_scc1 %s" % lab)
    k.vmq = []


def gemm_tail(k, g, j, first_stage):
    for i in range(g.NS):
        last = i == g.NS - 1
        gemm_body(k, g, (first_stage + i) % g.NS, j, None if last else j, None, None, None, vmwait=max(0, (g.NS - 2 - i)) * g.ND)
    k.e("s_nop 15")


def pack_only(k, src, tq):
    for i in range(4):
        k.e("v_cvt_pk_bf16_f32 v%d, v%d, v%d" % (tq + i, src + 2 * i, src + 2 * i + 1))
    k.e("s_nop 1")
    k.e("v_permlane16_swap_b32 v%d, v%d" % (tq, tq + 2))
    k.e("v_permlane16_swap_b32 v%d, v%d" % (tq + 1, tq + 3))


def gemm_setup_dma(k, g, j, swave, sXor, vt):
    t0, t1, t2, t3 = vt, vt + 1, vt + 2, vt + 3
    for s in range(g.NS):
        for (reg, n, base) in ((g.sM0A + s, g.NA, g.ldsA(s)), (g.sM0B + s, g.NB, g.ldsB(s))):
            k.e("s_mul_i32 s%d, s%d, %d" % (reg, swave, n * 1024))
            k.e("s_add_u32 s%d, s%d, %d" % (reg, reg, base))
            if base < 131072:
                k.e("s_xor_b32 s%d, s%d, s%d" % (reg, reg, sXor))
    assert j.amode == "frag" and g.NA == 4
    k.e("s_mul_i32 s%d, s%d, s%d" % (g.sT0, swave, j.sPitchA))
    k.e("v_add_u32 v%d, s%d, v%d" % (j.vDA, g.sT0, g.vLane16))
    rpi = 1024 // (g.BN * 2)
    cpr = g.BN // 8
    k.e("s_mul_i32 s%d, s%d, %d" % (g.sT0, swave, g.NB * rpi))
    k.e("v_and_b32 v%d, 63, v0" % t1)
    k.e("v_lshrrev_b32 v%d, %d, v%d" % (t0, log2(cpr), t1))
    k.e("v_add_u32 v%d, s%d, v%d" % (t0, g.sT0, t0))
    k.e("v_and_b32 v%d, %d, v%d" % (t1, cpr - 1, t1))
    for i in range(g.NB):
        k.e("v_add_u32 v%d, %d, v%d" % (t2, rpi * i, t0))
        swz(k, t3, t2, j.vDB + i)
        k.e("v_xor_b32 v%d, v%d, v%d" % (t3, t3, t1))
        k.e("v_mul_lo_u32 v%d, v%d, s%d" % (t2, t2, j.sPitchB))
        k.e("v_lshl_add_u32 v%d, v%d, 4, v%d" % (t2, t3, t2))
        k.e("v_subrev_u32 v%d, %d, v%d" % (j.vDB + i, 1024 * i, t2))


def gemm_setup_reads(k, g, j, sXor):
    t0, t1, t2, t3 = g.vTmp, g.vTmp + 1, g.vTmp + 2, g.vTmp + 3
    k.e("s_lshr_b32 s%d, s%d, %d" % (g.sWm, g.sWave, log2(g.WN)))
    k.e("s_and_b32 s%d, s%d, %d" % (g.sWn, g.sWave, g.WN - 1))
    bread_base(k, g, g.BN * 2, g.vTmp)
    for n16 in range(4):
        k.e("s_lshl_b32 s%d, s%d, 3" % (g.sT0, g.sWn))
        k.e("s_add_u32 s%d, s%d, %d" % (g.sT0, g.sT0, n16 * 2))
        k.e("v_add_u32 v%d, s%d, v%d" % (t3, g.sT0, t2))
        k.e("v_xor_b32 v%d, v%d, v%d" % (t3, t3, t0))
        k.e("v_lshl_add_u32 v%d, v%d, 4, v%d" % (t3, t3, t1))
        for s in range(g.nst):
            d = g.vRB + s * 4 + n16
            k.e("v_add_u32 v%d, %d, v%d" % (d, g.ldsB(s), t3))
            if g.ldsB(s) < 131072:
                k.e("v_xor_b32 v%d, s%d, v%d" % (d, sXor, d))
    afrag_lane(k, g, t0, t1)
    k.e("s_mul_i32 s%d, s%d, %d" % (g.sT0, g.sWm, g.TM * 4096))
    for s in range(g.nst):
        k.e("s_add_u32 s%d, s%d, %d" % (g.sT1, g.sT0, g.ldsA(s)))
        k.e("s_xor_b32 s%d, s%d, s%d" % (g.sT1, g.sT1, sXor))
        k.e("v_add_u32 v%d, s%d, v%d" % (j.vRA + s, g.sT1, t0))


def setup_splitB_dma(k, g, j, vt):
    t0, t1, t2, t3 = vt, vt + 1, vt + 2, vt + 3
    sB2, vDB2, sBstep2, sPitch2 = j.splitB
    k.e("s_lshl_b32 s%d, s%d, 3" % (g.sT0, g.sVW))
    k.e("v_lshrrev_b32 v%d, 8, v%d" % (t0, g.vLane16))
    k.e("v_add_u32 v%d, s%d, v%d" % (t0, g.sT0, t0))
    k.e("v_bfe_u32 v%d, v%d, 4, 4" % (t1, g.vLane16))
    for (vd, sp) in ((j.vDB, j.sPitchB), (vDB2, sPitch2)):
        for i in range(4):
            k.e("v_add_u32 v%d, %d, v%d" % (t2, 4 * i, t0))
            swz(k, t3, t2, vd + i)
            k.e("v_xor_b32 v%d, v%d, v%d" % (t3, t3, t1))
            k.e("v_mul_lo_u32 v%d, v%d, s%d" % (t2, t2, sp))
            k.e("v_lshl_add_u32 v%d, v%d, 4, v%d" % (t2, t3, t2))
            k.e("v_subrev_u32 v%d, %d, v%d" % (vd + i, 1024 * i, t2))


def setup_splitB_reads(k, g, j, vt):
    t0, t1, t2, t3 = vt, vt + 1, vt + 2, vt + 3
    bread_base(k, g, 256, vt)
    for n in range(2):
        k.e("s_lshl_b32 s%d, s%d, 2" % (g.sT0, g.sWn))
        k.e("s_add_u32 s%d, s%d, %d" % (g.sT0, g.sT0, n * 2))
        k.e("v_add_u32 v%d, s%d, v%d" % (t3, g.sT0, t2))
        k.e("v_xor_b32 v%d, v%d, v%d" % (t3, t3, t0))
        k.e("v_lshl_add_u32 v%d, v%d, 4, v%d" % (t3, t3, t1))
        k.e("v_add_u32 v%d, %d, v%d" % (j.vRB + n, g.ldsB(0), t3))
```

```python
import math, struct
from asmlib import *
from gemm import *
import attn as AT

MB = 1 << 20
WS_XN = 0
WS_Q = 4 * MB
WS_K = 20 * MB
WS_VT = 36 * MB
WS_AH = 52 * MB
ARG_X, ARG_CKV, ARG_WQ, ARG_WUK, ARG_WUV, ARG_WO, ARG_BX, ARG_W1, ARG_B1, ARG_W2, ARG_B2, ARG_OUT, ARG_DBG, ARG_WS = [8 * i for i in range(14)]
QSCALE = math.log2(math.e) / math.sqrt(128.0)
GELU_C1 = -2.0 * math.sqrt(2.0 / math.pi) * math.log2(math.e)
GELU_C2 = GELU_C1 * 0.044715
TRFLAGS = os.environ.get("TRFLAGS", " sc1")
FORCE_HELP = int(os.environ.get("FORCE_HELP", "0"))


def f32bits(x):
    return struct.unpack("<I", struct.pack("<f", x))[0]


def srd(k, d, base, off, nbytes):
    k.e("s_add_u32 s%d, s%d, %s" % (d, base, off))
    k.e("s_addc_u32 s%d, s%d, 0" % (d + 1, base + 1))
    k.e("s_mov_b32 s%d, %s" % (d + 2, nbytes))
    k.e("s_mov_b32 s%d, 0x00020000" % (d + 3))


sX, sCKV = 40, 42
sWUK, sWUV = 44, 46
sWS = 48
sWQ, sW1, sB1 = 50, 52, 54
sWO, sW2 = 56, 58
sDBG = 60
sMtA, sNtA, sIsV = 62, 63, 96
sMtB, sNtB, sIsH = 97, 98, 99
sStA = 100
sLnX, sLnO = 36, 80
sPf = 84
sBs = 56
sDb = 88
sRow = 34
sPfOff = 92
sWG = 93
sNonce = 95
sHelp = 61
WS_FLAGS = 83 * MB
FL_LN, FL_PS, FL_KV, FL_QH, FL_AS, FL_AD, FL_ST = 1024, 2048, 3072, 4096, 5120, 6144, 8192
NONCEW = 147456
PFD = 3
sTa, sTb = 35, 101
vBias = 208
vPk = 240
vRaw = 248
vLn = 208


def wave_sum(k, v, t):
    out = []
    for ctl in ["quad_perm:[1,0,3,2]", "quad_perm:[2,3,0,1]", "row_half_mirror", "row_mirror"]:
        out.append(lambda: k.e("s_nop 1"))
        out.append(lambda ctl=ctl: k.e("v_add_f32_dpp v%d, v%d, v%d %s row_mask:0xf bank_mask:0xf" % (v, v, v, ctl)))
    for sw in ["v_permlane16_swap_b32", "v_permlane32_swap_b32"]:
        out.append(lambda: k.e("v_mov_b32 v%d, v%d" % (t, v)))
        out.append(lambda: k.e("s_nop 1"))
        out.append(lambda sw=sw: k.e("%s v%d, v%d" % (sw, t, v)))
        out.append(lambda: k.e("v_add_f32 v%d, v%d, v%d" % (v, v, t)))
    return out


def ln_load(k, g):
    t = g.vTmp
    k.e("s_lshl_b32 s%d, s%d, 11" % (sTa, sRow))
    k.e("v_lshlrev_b32 v%d, 1, v%d" % (t, g.vLane16))
    k.vm_op("buffer_load_dwordx4 %s, v%d, %s, s%d offen" % (vr(vRaw, 4), t, sr(sLnX, 4), sTa), "ln")
    k.vm_op("buffer_load_dwordx4 %s, v%d, %s, s%d offen offset:16" % (vr(vRaw + 4, 4), t, sr(sLnX, 4), sTa), "ln")


def ln_steps(k, g, via_lds=False):
    X = vLn
    S, V, T = vLn + 16, vLn + 17, vLn + 18
    D = vLn + 19
    A = vLn + 20
    o = []
    E = lambda s: (lambda: k.e(s))
    o.append(lambda: k.vm_need(["ln"]))
    for i in range(8):
        o.append(E("v_lshlrev_b32 v%d, 16, v%d" % (X + 2 * i, vRaw + i)))
        o.append(E("v_and_b32 v%d, 0xffff0000, v%d" % (X + 2 * i + 1, vRaw + i)))
    o.append(E("v_add_f32 v%d, v%d, v%d" % (S, X, X + 1)))
    o.append(E("v_add_f32 v%d, v%d, v%d" % (T, X + 2, X + 3)))
    for i in range(4, 16, 2):
        o.append(E("v_add_f32 v%d, v%d, v%d" % (S, S, X + i)))
        o.append(E("v_add_f32 v%d, v%d, v%d" % (T, T, X + i + 1)))
    o.append(E("v_add_f32 v%d, v%d, v%d" % (S, S, T)))
    o += wave_sum(k, S, T)
    o.append(E("v_mul_f32 v%d, 0x%08x, v%d" % (S, f32bits(1.0 / 1024), S)))
    o.append(E("v_sub_f32 v%d, v%d, v%d" % (D, X, S)))
    o.append(E("v_mul_f32 v%d, v%d, v%d" % (V, D, D)))
    for i in range(1, 16):
        o.append(E("v_sub_f32 v%d, v%d, v%d" % (D, X + i, S)))
        o.append(E("v_fmac_f32 v%d, v%d, v%d" % (V, D, D)))
    o += wave_sum(k, V, T)
    o.append(E("v_mul_f32 v%d, 0x%08x, v%d" % (V, f32bits(1.0 / 1024), V)))

    def rbf(r):
        return [E("v_cvt_pk_bf16_f32 v%d, v%d, v%d" % (r, r, r)), E("v_lshlrev_b32 v%d, 16, v%d" % (r, r))]
    o += rbf(S) + rbf(V)
    o.append(E("v_add_f32 v%d, 0x%08x, v%d" % (V, f32bits(1e-5), V)))
    o += rbf(V)
    o.append(E("v_sqrt_f32 v%d, v%d" % (V, V)))
    o.append(E("s_nop 0"))
    o += rbf(V)
    o.append(E("v_rcp_f32 v%d, v%d" % (V, V)))
    for i in range(16):
        o.append(E("v_sub_f32 v%d, v%d, v%d" % (X + i, X + i, S)))
    for i in range(8):
        o.append(E("v_cvt_pk_bf16_f32 v%d, v%d, v%d" % (vRaw + i, X + 2 * i, X + 2 * i + 1)))
    for i in range(8):
        o.append(E("v_lshlrev_b32 v%d, 16, v%d" % (X + 2 * i, vRaw + i)))
        o.append(E("v_and_b32 v%d, 0xffff0000, v%d" % (X + 2 * i + 1, vRaw + i)))
    for i in range(16):
        o.append(E("v_mul_f32 v%d, v%d, v%d" % (X + i, X + i, V)))
    for i in range(8):
        o.append(E("v_cvt_pk_bf16_f32 v%d, v%d, v%d" % (vRaw + i, X + 2 * i, X + 2 * i + 1)))
    if via_lds:
        def wr():
            k.e("s_lshl_b32 s%d, s%d, 4" % (sTa, g.sWave))
            k.e("s_add_u32 s%d, s%d, %d" % (sTa, sTa, g.lds_bytes))
            k.e("v_lshl_add_u32 v%d, v%d, 4, s%d" % (A, g.vLane16, sTa))
            k.lds_op("ds_write_b128 v%d, %s" % (A, vr(vRaw, 4)))
            k.lds_op("ds_write_b128 v%d, %s offset:128" % (A, vr(vRaw + 4, 4)))
        o.append(wr)
        return o
    o.append(E("v_lshlrev_b32 v%d, 6, v%d" % (A, g.vLane16)))

    def st():
        k.e("s_lshr_b32 s%d, s%d, 5" % (sTa, sRow))
        k.e("s_lshl_b32 s%d, s%d, 16" % (sTa, sTa))
        k.e("s_and_b32 s%d, s%d, 31" % (sTb, sRow))
        k.e("s_lshl4_add_u32 s%d, s%d, s%d" % (sTa, sTb, sTa))
        k.vm_op("buffer_store_dwordx4 %s, v%d, %s, s%d offen sc1" % (vr(vRaw, 4), A, sr(sLnO, 4), sTa), "lnst")
        k.vm_op("buffer_store_dwordx4 %s, v%d, %s, s%d offen offset:512 sc1" % (vr(vRaw + 4, 4), A, sr(sLnO, 4), sTa), "lnst")
        k.e("s_nop 1")
    o.append(st)
    return o


def ln_store_steps(k, g):
    A, B = vLn + 20, vLn + 21
    R = vLn
    o = []

    def rd():
        k.e("s_and_b32 s%d, s%d, 3" % (sTa, g.sWave))
        k.e("s_lshl_b32 s%d, s%d, 12" % (sTa, sTa))
        k.e("s_add_u32 s%d, s%d, %d" % (sTa, sTa, g.lds_bytes))
        k.e("v_add_u32 v%d, s%d, v%d" % (A, sTa, g.vLane16))
        for i in range(4):
            k.lds_op("ds_read_b128 %s, v%d offset:%d" % (vr(R + 4 * i, 4), A, 1024 * i), rng(R + 4 * i, 4))
    o.append(rd)

    def addr():
        k.e("v_lshrrev_b32 v%d, 8, v%d" % (B, g.vLane16))
        k.e("v_lshlrev_b32 v%d, 10, v%d" % (B, B))
        k.e("v_bfe_u32 v%d, v%d, 7, 1" % (B + 1, g.vLane16))
        k.e("v_lshl_add_u32 v%d, v%d, 9, v%d" % (B, B + 1, B))
        k.e("v_and_b32 v%d, 0x70, v%d" % (B + 1, g.vLane16))
        k.e("v_add_u32 v%d, v%d, v%d" % (B, B, B + 1))
    o.append(addr)

    def st():
        k.e("s_lshr_b32 s%d, s2, 2" % sTa)
        k.e("s_lshl_b32 s%d, s%d, 16" % (sTa, sTa))
        k.e("s_and_b32 s%d, s%d, 3" % (sTb, g.sWave))
        k.e("s_lshl_b32 s%d, s%d, 14" % (sTb, sTb))
        k.e("s_add_u32 s%d, s%d, s%d" % (sTa, sTa, sTb))
        k.e("s_and_b32 s%d, s2, 3" % sTb)
        k.e("s_lshl_b32 s%d, s%d, 7" % (sTb, sTb))
        k.e("s_add_u32 s%d, s%d, s%d" % (sTa, sTa, sTb))
        k.lds_need(rng(R, 16))
        for i in range(4):
            k.vm_op("buffer_store_dwordx4 %s, v%d, %s, s%d offen sc1" % (vr(R + 4 * i, 4), B, sr(sLnO, 4), sTa), "lnst")
            if i < 3:
                k.e("s_add_u32 s%d, s%d, 4096" % (sTa, sTa))
        k.e("s_nop 1")
    o.append(st)
    return o


def split_list(lst, n):
    m = len(lst)
    return [lst[(i * m) // n:((i + 1) * m) // n] for i in range(n)]


def emit_proj(k, tail_code):
    g = GemmCfg(vRB=12, vTmp=16, vF=24)
    g.sVW = 3
    assert g.vAcc == 80 and g.nvgpr == 208
    jK = Job("row", True, 4, 8, 16, 17, 33, 26, 29, 30, 2, 6, 10, "K")
    jV = Job("row", False, 4, 8, 16, 17, 33, 26, 29, 30, 2, 6, 10, "V")
    jB = Job("frag", True, 64, 68, 72, 73, 74, 75, 76, 77, 72, 73, 77, "B")
    for j in (jK, jV):
        j.sAoff2, j.sBoff2 = 18, 22
    jB.sAoff2, jB.sBoff2 = 25, 94
    jB.splitB = (sPf, 20, 76, 78)
    jB.vRB = 14
    sHeadB, sPiB, sHv = 97, 98, 99
    vPf, vDummy, vPoll = g.vTmp + 5, g.vTmp + 6, g.vTmp + 7
    PFS = int(os.environ.get("PFS", "6"))
    NCARRY = int(os.environ.get("NCARRY", "8"))
    k.label("L_pj_task")
    k.e("s_load_dwordx4 s[40:43], s[0:1], 0")
    k.e("s_load_dwordx4 s[44:47], s[0:1], 24")
    k.e("s_load_dwordx2 s[48:49], s[0:1], %d" % ARG_WS)
    k.e("s_load_dwordx2 s[50:51], s[0:1], %d" % ARG_WQ)
    k.e("s_load_dwordx4 s[52:55], s[0:1], %d" % ARG_W1)
    k.e("s_load_dwordx2 s[56:57], s[0:1], %d" % ARG_WO)
    k.e("s_load_dwordx2 s[58:59], s[0:1], %d" % ARG_W2)
    k.e("s_load_dwordx2 s[60:61], s[0:1], %d" % ARG_DBG)
    k.e("s_and_b32 s%d, s2, 7" % sTa)
    k.e("s_bfe_u32 s%d, s2, 0x20003" % sTb)
    k.e("s_lshl2_add_u32 s%d, s%d, s%d" % (sTa, sTa, sTb))
    k.e("s_lshr_b32 s%d, s2, 5" % sMtA)
    k.e("s_and_b32 s%d, s%d, 15" % (sNtA, sTa))
    k.e("s_lshr_b32 s%d, s%d, 4" % (sIsV, sTa))
    k.e("s_movk_i32 s%d, 1024" % jK.sPitchA)
    k.e("s_movk_i32 s%d, 8192" % jK.sPitchB)
    k.e("s_movk_i32 s%d, 128" % jK.sAstep)
    k.e("s_mov_b32 s%d, %d" % (jK.sBstep, 64 * 8192))
    k.e("s_mov_b32 s%d, 0" % jK.sAoff)
    k.e("s_mov_b32 s%d, 0" % jK.sBoff)
    gemm_setup_common(k, g)
    gemm_setup_job(k, g, jK)
    k.e("s_waitcnt lgkmcnt(0)")
    k.e("s_lshl_b32 s%d, s%d, 18" % (sTa, sMtA))
    k.e("s_sub_u32 s%d, %d, s%d" % (sTb, 2048 * 1024, sTa))
    srd(k, jK.sA, sCKV, "s%d" % sTa, "s%d" % sTb)
    k.e("s_cmp_eq_u32 s%d, 0" % sIsV)
    k.e("s_cselect_b32 s78, s%d, s%d" % (sWUK, sWUV))
    k.e("s_cselect_b32 s79, s%d, s%d" % (sWUK + 1, sWUV + 1))
    k.e("s_lshl_b32 s%d, s%d, 9" % (sTa, sNtA))
    k.e("s_sub_u32 s%d, %d, s%d" % (sTb, 512 * 8192, sTa))
    srd(k, jK.sB, 78, "s%d" % sTa, "s%d" % sTb)
    srd(k, sLnX, sX, 0, 4 * MB)
    k.e("s_lshl3_add_u32 s%d, s2, s%d" % (sRow, g.sWave))

    def pf(base, nbytes, off):
        def f():
            srd(k, sPf, base, 0, nbytes)
            k.e("s_mov_b32 s%d, %d" % (sPfOff, off))
            k.e("buffer_load_dword v%d, v%d, %s, s%d offen" % (vDummy, vPf, sr(sPf, 4), sPfOff))
        return f
    PFW = 1024 * 64 << PFS

    def pf_all(base, nbytes):
        return [pf(base, nbytes, o) for o in range(0, nbytes, PFW)]

    k.e("s_and_b32 s%d, s%d, 3" % (sTa, g.sWave))
    k.e("s_lshl2_add_u32 s%d, s2, s%d" % (sTa, sTa))
    k.e("s_lshl_b32 s%d, s%d, %d" % (sTa, sTa, 6 + PFS))
    k.e("v_lshlrev_b32 v%d, %d, v%d" % (vPf, PFS - 4, g.vLane16))
    k.e("v_add_u32 v%d, s%d, v%d" % (vPf, sTa, vPf))
    k.e("v_mov_b32 v23, 0")
    k.e("s_cmp_ge_u32 s%d, 4" % g.sWave)
    k.e("s_cbranch_scc1 L_pj_startP")
    for s_ in range(2):
        for f in dma_list(k, g, jK, s_, "dma%d" % s_):
            f()
    ln_load(k, g)
    vmqD = list(k.vmq)
    k.e("s_branch L_pj_start2")
    k.label("L_pj_startP")
    k.vmq = []
    labn = k.newlabel("non1")
    k.e("v_mov_b32 v%d, 0" % (vPk + 1))
    k.e("v_mov_b32 v%d, 0" % (vPk + 3))
    k.e("s_cmp_lg_u32 s%d, 7" % g.sWave)
    k.e("s_cbranch_scc1 %s" % labn)
    k.e("s_memrealtime vcc")
    srd(k, sPf, sDBG, 0, 256)
    k.e("s_waitcnt lgkmcnt(0)")
    k.e("v_mov_b32 v%d, vcc_lo" % vPk)
    k.e("v_or_b32 v%d, 1, v%d" % (vPk, vPk))
    k.e("v_mov_b32 v%d, v%d" % (vPk + 2, vPk))
    k.e("s_mov_b64 exec, 1")
    k.e("buffer_atomic_cmpswap %s, v%d, %s, 0 offen sc0 sc1" % (vr(vPk, 2), vPk + 3, sr(sPf, 4)))
    k.e("s_mov_b64 exec, -1")
    k.label(labn)
    ln_load(k, g)
    vmqP = list(k.vmq)
    FINE = int(os.environ.get("FINE", "1"))

    def pf1(base, off):
        def f():
            srd(k, sPf, base, 0, 4 * MB)
            k.e("s_mov_b32 s%d, %d" % (sPfOff, off))
            k.e("buffer_load_dword v%d, v23, %s, s%d offen" % (vDummy, sr(sPf, 4), sPfOff))
        return f
    if FINE:
        k.e("s_and_b32 s%d, s%d, 3" % (sTa, g.sWave))
        k.e("s_lshl2_add_u32 s%d, s2, s%d" % (sTa, sTa))
        k.e("s_lshl_b32 s%d, s%d, 10" % (sTa, sTa))
        k.e("v_bfe_u32 v23, v%d, 4, 3" % g.vLane16)
        k.e("v_lshl_add_u32 v23, v23, 7, s%d" % sTa)
        first = [pf1(sWUK, MB), pf1(sWUV, MB)] + pf_all(sCKV, 2 * MB)
    else:
        first = pf_all(sCKV, 2 * MB) + pf_all(sWUK, 4 * MB) + pf_all(sWUV, 4 * MB)
    for f in first:
        f()
        vmqP.append("pf")
    if os.environ.get("CODEPF", "0") == "1":
        k.e("s_getpc_b64 s[78:79]")
        k.label("L_pj_pc")
        k.e("s_sub_u32 s78, s78, L_pj_pc-mega_kernel")
        k.e("s_subb_u32 s79, s79, 0")
        srd(k, sPf, 78, 0, "L_code_end-mega_kernel")
        k.e("s_and_b32 s%d, s%d, 3" % (sTa, g.sWave))
        k.e("s_lshl_b32 s%d, s%d, 13" % (sTa, sTa))
        k.e("v_lshlrev_b32 v%d, 3, v%d" % (vPoll, g.vLane16))
        for i in range(4):
            k.e("buffer_load_dword v%d, v%d, %s, s%d offen" % (vDummy, vPoll, sr(sPf, 4), sTa))
            k.e("s_add_u32 s%d, s%d, 32768" % (sTa, sTa))
            vmqP.append("pf")
    k.label("L_pj_start2")
    srd(k, sLnO, sWS, WS_XN, 4 * MB)
    srd(k, sDb, sWS, WS_FLAGS, 65536)
    k.e("s_and_b32 s%d, s2, 7" % sTa)
    k.e("s_bfe_u32 s%d, s2, 0x20003" % sTb)
    k.e("s_lshl2_add_u32 s%d, s%d, s%d" % (sHeadB, sTa, sTb))
    k.e("s_lshr_b32 s%d, s2, 5" % sPiB)
    k.e("s_cmp_lt_u32 s%d, 28" % sHeadB)
    k.e("s_cselect_b32 s%d, 1, 0" % sHv)
    k.e("s_movk_i32 s%d, 8192" % jB.sPitchB)
    k.e("s_movk_i32 s%d, 4096" % jB.sAstep)
    k.e("s_mov_b32 s%d, %d" % (jB.sBstep, 64 * 8192))
    k.e("s_mov_b32 s76, %d" % (64 * 7168))
    k.e("s_mov_b32 s%d, 0" % jB.sAoff)
    k.e("s_mov_b32 s%d, 65536" % jB.sAoff2)
    k.e("s_mov_b32 s%d, 0" % jB.sBoff)
    k.e("s_mov_b32 s%d, 0" % jB.sBoff2)
    k.e("s_sub_u32 s%d, 15, s%d" % (sTa, sPiB))
    k.e("s_sub_u32 s%d, s%d, 1" % (sTb, sPiB))
    k.e("s_cmp_lt_u32 s%d, 4" % g.sVW)
    k.e("s_cselect_b32 s%d, s%d, s%d" % (sTa, sTa, sTb))
    k.e("s_lshl2_add_u32 s%d, s%d, s%d" % (sTa, sTa, g.sVW))
    k.e("s_lshl_b32 s%d, s%d, 16" % (sTa, sTa))
    k.e("v_add_u32 v%d, s%d, v%d" % (jB.vDA, sTa, g.vLane16))
    k.e("s_lshl_b32 s%d, s%d, 14" % (sTa, g.sWm))
    afrag_lane(k, g, jB.vRA, g.vTmp)
    k.e("v_add_u32 v%d, s%d, v%d" % (jB.vRA, sTa, jB.vRA))
    srd(k, jB.sA, sWS, WS_XN, 4 * MB)
    k.e("s_lshl_b32 s%d, s%d, 8" % (sTa, sHeadB))
    k.e("s_sub_u32 s%d, %d, s%d" % (sTb, 8 * MB, sTa))
    srd(k, jB.sB, sWQ, "s%d" % sTa, "s%d" % sTb)
    k.e("s_lshr_b32 s%d, s%d, 1" % (sTa, g.sWn))
    k.e("s_lshl1_add_u32 s%d, s%d, s%d" % (sTa, sNtA, sTa))
    k.e("s_lshl_b32 s%d, s%d, 19" % (sStA, sTa))
    k.e("s_lshl_b32 s%d, s%d, 3" % (sTa, sMtA))
    k.e("s_lshl2_add_u32 s%d, s%d, s%d" % (sTa, g.sWm, sTa))
    k.e("s_lshl_b32 s%d, s%d, 13" % (sTa, sTa))
    k.e("s_add_u32 s%d, s%d, s%d" % (sStA, sStA, sTa))
    k.e("s_and_b32 s%d, s%d, 1" % (sTa, g.sWn))
    k.e("s_lshl_b32 s%d, s%d, 12" % (sTa, sTa))
    k.e("s_add_u32 s%d, s%d, s%d" % (sStA, sStA, sTa))
    k.e("s_lshl_b32 s%d, s%d, 24" % (sTa, sIsV))
    k.e("s_add_u32 s%d, s%d, %d" % (sTa, sTa, WS_K))
    srd(k, g.sO, sWS, "s%d" % sTa, 16 * MB)

    def flag(off_expr_emit, imms, wave=4):
        lab = k.newlabel("nosig")
        k.e("s_cmp_lg_u32 s%d, %d" % (g.sWave, wave))
        k.e("s_cbranch_scc1 %s" % lab)
        off_expr_emit(lab)
        k.e("v_mov_b32 v216, 0")
        k.e("v_mov_b32 v217, s%d" % sNonce)
        k.e("s_mov_b64 exec, 1")
        for imm in imms:
            k.e("s_add_u32 s%d, s%d, %d" % (sTa, sTa, imm))
            k.e("buffer_store_dword v217, v216, %s, s%d offen sc1" % (sr(sDb, 4), sTa))
        k.e("s_mov_b64 exec, -1")
        k.label(lab)

    def signal():
        def off(lab):
            if FORCE_HELP & 1:
                k.e("s_and_b32 s%d, s2, 15" % sTa)
                k.e("s_cmp_eq_u32 s%d, 3" % sTa)
                k.e("s_cbranch_scc1 %s" % lab)
            k.e("s_lshl_b32 s%d, s2, 2" % sTa)
        flag(off, [FL_LN])

        def off2(lab):
            k.e("s_lshl_b32 s%d, s2, 2" % sTa)
        flag(off2, [FL_PS])

    def signal_kv(wave=4):
        def off(lab):
            k.e("s_lshl4_add_u32 s%d, s%d, s%d" % (sTa, sIsV, sNtA))
            k.e("s_lshl3_add_u32 s%d, s%d, s%d" % (sTa, sTa, sMtA))
            k.e("s_lshl_b32 s%d, s%d, 2" % (sTa, sTa))
        flag(off, [FL_KV], wave)

    def nonce2():
        lab = k.newlabel("non2")
        k.e("s_cmp_lg_u32 s%d, 7" % g.sWave)
        k.e("s_cbranch_scc1 %s" % lab)
        k.e("v_cmp_eq_u32 vcc, 0, v%d" % vPk)
        k.e("v_mov_b32 v%d, %d" % (vPk + 1, NONCEW))
        k.e("s_nop 0")
        k.e("v_cndmask_b32 v%d, v%d, v%d, vcc" % (vPk, vPk, vPk + 2))
        k.e("s_mov_b64 exec, 1")
        k.e("ds_write_b32 v%d, v%d" % (vPk + 1, vPk))
        k.e("s_mov_b64 exec, -1")
        k.label(lab)

    def nonce3():
        k.e("v_mov_b32 v%d, %d" % (vPk + 1, NONCEW))
        k.lds_op("ds_read_b32 v%d, v%d" % (vPk, vPk + 1), [vPk])

    def nonce4():
        k.lds_need([vPk])
        k.e("v_readfirstlane_b32 s%d, v%d" % (sNonce, vPk))

    def bias_loads():
        out = []

        def setup():
            k.e("s_mul_i32 s%d, s%d, s%d" % (sTa, sHeadB, sHv))
            k.e("s_lshl_b32 s%d, s%d, 8" % (sTa, sTa))
            k.e("s_lshl_b32 s%d, s%d, 6" % (sTb, g.sWn))
            k.e("s_add_u32 s%d, s%d, s%d" % (sTa, sTa, sTb))
            k.e("s_sub_u32 s%d, %d, s%d" % (sTb, 3584 * 2, sTa))
            srd(k, sLnX, sB1, "s%d" % sTa, "s%d" % sTb)
            k.e("v_bfe_u32 v18, v0, 4, 2")
            k.e("v_lshlrev_b32 v18, 3, v18")
        out.append(setup)
        for nh in range(2):
            out.append(lambda nh=nh: k.vm_op("buffer_load_dwordx2 %s, v18, %s, 0 offen offset:%d" % (vr(vPk + nh * 2, 2), sr(sLnX, 4), nh * 32), "bias"))
        return out

    def bias_unpack():
        out = [lambda: k.vm_need(["bias"])]
        for r in range(16):
            src = vPk + (r >> 3) * 2 + ((r & 3) >> 1)
            d = vBias + 16 + r
            if r & 1:
                out.append(lambda d=d, src=src: k.e("v_and_b32 v%d, 0xffff0000, v%d" % (d, src)))
            else:
                out.append(lambda d=d, src=src: k.e("v_lshlrev_b32 v%d, 16, v%d" % (d, src)))
        return out

    def poll_issue():
        k.vm_op("buffer_load_dwordx4 %s, v%d, %s, 0 offen offset:%d sc1" % (vr(vRaw, 4), g.vLane16, sr(sDb, 4), FL_LN), "poll")

    slow = []

    def poll_eval(vRaw=vRaw):
        k.e("v_xor_b32 v%d, s%d, v%d" % (vRaw, sNonce, vRaw))
        k.e("v_xor_b32 v%d, s%d, v%d" % (vRaw + 1, sNonce, vRaw + 1))
        k.e("v_xor_b32 v%d, s%d, v%d" % (vRaw + 2, sNonce, vRaw + 2))
        k.e("v_xor_b32 v%d, s%d, v%d" % (vRaw + 3, sNonce, vRaw + 3))
        k.e("v_or3_b32 v%d, v%d, v%d, v%d" % (vRaw + 4, vRaw, vRaw + 1, vRaw + 2))
        k.e("v_or_b32 v%d, v%d, v%d" % (vRaw + 4, vRaw + 4, vRaw + 3))
        k.e("v_cmp_ne_u32 vcc, 0, v%d" % (vRaw + 4))

    def first_missing(sdst, stmp, vRaw=vRaw):
        k.e("s_ff1_i32_b64 s%d, vcc" % stmp)
        k.e("v_cmp_ne_u32 vcc, 0, v%d" % (vRaw + 2))
        k.e("s_nop 1")
        k.e("v_cndmask_b32 v%d, 3, 2, vcc" % (vRaw + 4))
        k.e("v_cmp_ne_u32 vcc, 0, v%d" % (vRaw + 1))
        k.e("s_nop 1")
        k.e("v_cndmask_b32 v%d, v%d, 1, vcc" % (vRaw + 4, vRaw + 4))
        k.e("v_cmp_ne_u32 vcc, 0, v%d" % vRaw)
        k.e("s_nop 1")
        k.e("v_cndmask_b32 v%d, v%d, 0, vcc" % (vRaw + 4, vRaw + 4))
        k.e("s_nop 1")
        k.e("v_readlane_b32 s%d, v%d, s%d" % (sdst, vRaw + 4, stmp))
        k.e("s_nop 3")
        k.e("s_lshl2_add_u32 s%d, s%d, s%d" % (sdst, stmp, sdst))
        k.e("s_cmp_lt_i32 s%d, 0" % stmp)
        k.e("s_cselect_b32 s%d, -1, s%d" % (sdst, sdst))

    def poll_check():
        lab, back = k.newlabel("pollslow"), k.newlabel("pollback")
        poll_eval()
        k.e("s_cbranch_vccnz %s" % lab)
        k.label(back)
        slow.append((lab, back))

    def trk(f):
        def h():
            f()
            k.vmq.append("pf")
        return h

    quads = [208 + 4 * i for i in range(12)] + [2, 6, 10, 16]
    vPS = 208

    def ps_issue():
        lab = k.newlabel("nops")
        k.e("s_cmp_lg_u32 s%d, 0" % g.sWave)
        k.e("s_cbranch_scc1 %s" % lab)
        k.e("buffer_load_dwordx4 %s, v%d, %s, 0 offen offset:%d sc1" % (vr(vPS, 4), g.vLane16, sr(sDb, 4), FL_PS))
        k.label(lab)

    def ps_eval():
        lab = k.newlabel("nops2")
        k.e("s_cmp_lg_u32 s%d, 0" % g.sWave)
        k.e("s_cbranch_scc1 %s" % lab)
        poll_eval(vPS)
        first_missing(78, 79, vPS)
        k.e("v_mov_b32 v%d, s78" % vPS)
        k.e("v_mov_b32 v%d, %d" % (vPS + 1, NONCEW + 4))
        k.e("ds_write_b32 v%d, v%d" % (vPS + 1, vPS))
        k.label(lab)

    def ps_read():
        k.e("v_mov_b32 v%d, %d" % (vPS + 1, NONCEW + 4))
        k.lds_op("ds_read_b32 v%d, v%d" % (vPS, vPS + 1), [vPS])
        k.lds_need([vPS])
        k.e("v_readfirstlane_b32 s%d, v%d" % (sHelp, vPS))

    def kv_poll():
        AT.kv_flag_addr(k, 17, 16, 2, sTa, sTb)
        k.vm_op("buffer_load_dword v16, v17, %s, 0 offen sc1" % sr(sDb, 4), "kvp")

    STG = g.lds_bytes
    sStD = 61
    vStg = 20

    def kvstage(i, slot, idx):
        def f():
            if i == 0:
                k.e("s_and_b32 s%d, s%d, 3" % (sTa, g.sWave))
                k.e("s_lshl_b32 s%d, s%d, 11" % (sTa, sTa))
                k.e("s_add_u32 s%d, s%d, %d" % (sTa, sTa, STG))
                k.e("v_add_u32 v%d, s%d, v%d" % (vStg, sTa, g.vLane16))
            k.lds_op("ds_write_b128 v%d, %s offset:%d" % (vStg, vr(quads[i], 4), slot * 8192 + idx * 1024))
        return f

    def kvfetch(i, slot, idx):
        def f():
            if i == 0:
                k.e("s_and_b32 s%d, s%d, 3" % (sTa, g.sWave))
                k.e("s_lshl_b32 s%d, s%d, 11" % (sTa, sTa))
                k.e("s_add_u32 s%d, s%d, %d" % (sTa, sTa, STG))
                k.e("v_add_u32 v%d, s%d, v%d" % (vStg, sTa, g.vLane16))
                k.e("s_sub_u32 s%d, s%d, 32768" % (sStD, sStA))
            k.lds_op("ds_read_b128 %s, v%d offset:%d" % (vr(quads[i], 4), vStg, slot * 8192 + idx * 1024), rng(quads[i], 4))
        return f

    def kvstore2(i):
        def f():
            r = i % 4
            k.lds_need(rng(quads[i], 4))
            k.vm_op("buffer_store_dwordx4 %s, v%d, %s, s%d offen offset:%d%s" % (vr(quads[i], 4), g.vLane16, sr(g.sO, 4), sStD, r * 1024, TRFLAGS), "st")
            if r == 3:
                k.e("s_add_u32 s%d, s%d, 8192" % (sStD, sStD))
        return f

    def kvstore(i):
        def f():
            tm, r = i // 4, i % 4
            k.vm_op("buffer_store_dwordx4 %s, v%d, %s, s%d offen offset:%d%s" % (vr(quads[i], 4), g.vLane16, sr(g.sO, 4), sStA, r * 1024, TRFLAGS), "st")
            if r == 3:
                k.e("s_add_u32 s%d, s%d, 8192" % (sStA, sStA))
        return f

    stamp(k, 2)
    k.e("s_cmp_ge_u32 s%d, 4" % g.sWave)
    k.e("s_cbranch_scc1 L_pj_roleP")
    for role in ("D", "P"):
        D = role == "D"
        if not D:
            k.label("L_pj_roleP")
        k.ldsq = []
        k.vmq = list(vmqD if D else vmqP)
        if D:
            k.e("s_mul_i32 s%d, s%d, s%d" % (sTa, sHeadB, sHv))
            k.e("s_lshl_b32 s%d, s%d, 8" % (sTa, sTa))
            k.e("s_sub_u32 s%d, %d, s%d" % (sTb, 1024 * 7168, sTa))
            srd(k, sPf, sW1, "s%d" % sTa, "s%d" % sTb)
            k.e("s_movk_i32 s78, 7168")
            setup_splitB_dma(k, g, jB, 16)
            k.vm_need(["dma0"])
        k.e("s_barrier")
        stamp(k, 3)
        if os.environ.get("PJT"):
            stamp(k, 2, force=True)
        state0 = (list(k.ldsq), list(k.vmq))
        k.e("s_cmp_eq_u32 s%d, 0" % sIsV)
        k.e("s_cbranch_scc0 L_pj_V%s" % role)
        end_state = None
        pfB = [trk(f) for f in pf_all(sWQ, 8 * MB) + pf_all(sW1, 1024 * 7168)]
        pfB = pfB[0::2] + pfB[1::2] if len(pfB) == 4 else pfB
        pfO = [trk(f) for f in pf_all(sWO, 8 * MB) + pf_all(sW2, 3584 * 2048)]
        for jA in (jK, jV):
            if jA is jV:
                k.label("L_pj_V%s" % role)
                k.ldsq, k.vmq = list(state0[0]), list(state0[1])
            for f in read_list(k, g, jA, 0, 0, 0):
                f()
            lnp = split_list(ln_steps(k, g, via_lds=True), 6)
            lns = ln_store_steps(k, g)
            carry = []
            pfsplit = split_list(pfB, 4)
            for t in range(8):
                extra = {}
                post = None
                need = ["dma%d" % (t + 1)]
                if t == 0:
                    extra = {0: lnp[0], 1: lnp[1], 2: lnp[2]}
                elif t == 1:
                    extra = {0: lnp[3], 1: lnp[4], 2: lnp[5]}
                elif t == 2:
                    extra = {} if D else {0: lns[0:2], 1: lns[2:3], 2: [nonce2]}
                elif t == 3:
                    extra = {0: [nonce3], 1: [nonce4]}
                    need.append("lnst")
                    if not D:
                        post = signal
                elif t == 5 and D:
                    extra = {2: [poll_issue]}
                elif t == 6 and D:
                    need.append("poll")
                    post = poll_check
                if t == 7:
                    post = lambda: setup_splitB_reads(k, g, jB, 16)
                if not D and FINE and t < 2:
                    extra[1] = extra[1] + [trk(pf1(sWUK, (2 + t) * MB)), trk(pf1(sWUV, (2 + t) * MB))]
                if not D and 3 <= t < 7:
                    extra[3] = pfsplit[t - 3]
                if os.environ.get("PJT") == "A":
                    post0 = post
                    post = (lambda post0=post0, t=t: (stamp(k, 3 + t, force=True), post0() if post0 else None))
                jd = (jA if t < 6 else jB) if D else None
                jn = jA if t < 7 else jB
                carry = gemm_body(k, g, t % 2, jA, jn, jd, need, "dma%d" % (t + 2), extra=extra,
                                  cinit=(lambda tm, tn: "0") if t == 0 else None, post_barrier=post,
                                  carry=carry, ncarry=NCARRY if D else 0)
            st = (list(k.ldsq), list(k.vmq))
            if end_state is None:
                end_state = st
                k.e("s_branch L_pj_T%s" % role)
            else:
                assert st == end_state
        k.label("L_pj_T%s" % role)
        if DIAG:
            stamp(k, 5)
        cnt = [0]

        def pre(tm, tn):
            for p in range(2):
                pack_only(k, g.acc(tm, tn) + 8 * p, quads[(tm * 2 + tn) * 2 + p])
        PFO0 = int(os.environ.get("PFO0", "19"))
        PFON = int(os.environ.get("PFON", "3"))
        pfsplit = split_list(pfO, PFON)
        for t in range(8, 24):
            last = t == 23
            NST = int(os.environ.get("NST", "10"))
            st0, st1 = ((t - 8) * 16) // NST, ((t - 7) * 16) // NST
            sts = [kvstore(i) for i in range(st0, min(st1, 16))] if t < 8 + NST else []
            ex = {0: sts[:1], 1: sts[1:], 2: []} if t > 8 else {0: [], 1: [], 2: sts}
            needB = ["dma%d" % (t + 1)]
            postB = None
            if t == 9 + NST:
                needB.append("st")
                if not D:
                    postB = signal_kv
            if os.environ.get("PJT") == "B" and t < 20:
                postB = (lambda post0=postB, t=t: (stamp(k, 2 + t - 8, force=True), post0() if post0 else None))
            if t == 15 and D:
                ex[2] = ex[2] + [ps_issue]
            if t == 17 and D:
                ex[2] = [ps_eval]
            if t == 19:
                ex[2] = [ps_read]
            if t == 22:
                ex[2] = [kv_poll]
            if not D and PFO0 <= t < PFO0 + PFON:
                ex[3] = pfsplit[t - PFO0]
            if t == 20:
                ex[0] = ex[0] + bias_loads()
            if t == 21:
                bu = split_list(bias_unpack(), 3)
                ex[0] = bu[0]; ex[1] = bu[1]; ex[2] = bu[2]
            carry = gemm_body(k, g, t % 2, jB, None if last else jB, jB if (t < 22 and D) else None, needB, "dma%d" % (t + 2), extra=ex, post_barrier=postB,
                              cinit=(lambda tm, tn: "0") if t == 8 else None, pre=pre if t == 8 else None,
                              carry=carry, ncarry=NCARRY if D else 0)
        if D:
            k.e("s_branch L_pj_epi")
    k.label("L_pj_epi")
    k.e("s_waitcnt lgkmcnt(0)")
    k.e("s_barrier")
    stamp(k, 4)
    eO, sFo, sWv, sEm, sEn = 64, 68, 69, 70, 71
    k.e("s_mov_b32 s%d, s%d" % (sWv, g.sWave))
    k.e("s_mov_b32 s%d, s%d" % (sEm, g.sWm))
    k.e("s_mov_b32 s%d, s%d" % (sEn, g.sWn))
    k.e("s_lshl_b32 s%d, s%d, 5" % (sFo, sPiB))
    k.e("s_add_u32 s%d, s%d, s%d" % (sFo, sFo, sHeadB))
    k.e("s_lshl_b32 s%d, s%d, 2" % (sFo, sFo))
    k.e("s_add_u32 s%d, s%d, %d" % (sFo, sFo, FL_QH))
    srd(k, eO, sWS, WS_AH, 2048 * 7680 * 2)
    k.e("s_sub_u32 s%d, 15, s%d" % (sTa, sPiB))
    k.e("s_cmp_eq_u32 s%d, 0" % sEm)
    k.e("s_cselect_b32 s%d, s%d, s%d" % (sTa, sTa, sPiB))
    k.e("s_mul_i32 s%d, s%d, 1920" % (sTa, sTa))
    k.e("s_lshl3_add_u32 s%d, s%d, s%d" % (sStA, sHeadB, sTa))
    k.e("s_lshl1_add_u32 s%d, s%d, s%d" % (sStA, sEn, sStA))
    k.e("s_add_u32 s%d, s%d, 256" % (sStA, sStA))
    k.e("s_lshl_b32 s%d, s%d, 10" % (sStA, sStA))
    k.e("s_mov_b32 s%d, s2" % AT.sTask)
    AT.attn_setup(k)
    k.e("s_cmp_ge_i32 s%d, 0" % sHelp)
    k.e("s_cbranch_scc1 L_pj_noearly0")
    k.e("s_waitcnt vmcnt(0)")
    AT.spin_flags(k, 17, 16, first_loaded=True)
    for f in AT.dma_k(k, 0) + AT.dma_v(k, 0) + AT.dma_k(k, 1):
        f()
    k.label("L_pj_noearly0")
    stamp(k, 2)
    AT.attn_setup2(k)
    k.e("s_mov_b32 s78, 0x%08x" % f32bits(QSCALE))
    k.e("s_mov_b32 s79, 0x%08x" % f32bits(QSCALE))
    k.e("s_lshl_b32 s%d, s%d, 15" % (sEm, sEm))
    k.e("s_lshl_b32 s%d, s%d, 11" % (sEn, sEn))
    k.e("s_add_u32 s%d, s%d, s%d" % (sEm, sEm, sEn))
    k.e("s_add_u32 s%d, s%d, 98304" % (sEm, sEm))
    k.e("v_add_u32 v14, s%d, v%d" % (sEm, g.vLane16))
    for tm in range(4):
        for p in range(2):
            src = g.acc(tm, 0) + 8 * p
            for i in range(4):
                k.e("v_pk_mul_f32 %s, %s, s[78:79]" % (vr(src + 2 * i, 2), vr(src + 2 * i, 2)))
            pack_only(k, src, src)
            k.e("ds_write_b128 v14, %s offset:%d" % (vr(src, 4), tm * 8192 + p * 1024))
    k.e("s_cmp_eq_u32 s%d, 0" % sHv)
    k.e("s_cbranch_scc1 L_pj_H0")
    k.e("s_mov_b32 s78, 0x%08x" % f32bits(GELU_C2))
    k.e("s_mov_b32 s79, 0x%08x" % f32bits(GELU_C2))
    vC = 64
    k.e("v_mov_b32 v%d, 0x%08x" % (vC, f32bits(GELU_C1)))
    k.e("v_mov_b32 v%d, 0x%08x" % (vC + 1, f32bits(GELU_C1)))
    k.e("v_mov_b32 v%d, 1.0" % (vC + 2))
    k.e("v_mov_b32 v%d, 1.0" % (vC + 3))
    c1 = vr(vC, 2)
    one2 = vr(vC + 2, 2)
    tq = 0
    for tm in range(4):
        for p in range(2):
            src = g.acc(tm, 1) + 8 * p
            tb = 48 + 8 * (tq % 2)
            for i in range(4):
                k.e("v_pk_add_f32 %s, %s, %s" % (vr(src + 2 * i, 2), vr(src + 2 * i, 2), vr(vBias + 16 + 8 * p + 2 * i, 2)))
            for i in range(4):
                k.e("v_pk_mul_f32 %s, %s, %s" % (vr(tb + 2 * i, 2), vr(src + 2 * i, 2), vr(src + 2 * i, 2)))
            for i in range(4):
                k.e("v_pk_fma_f32 %s, %s, s[78:79], %s" % (vr(tb + 2 * i, 2), vr(tb + 2 * i, 2), c1))
            for i in range(4):
                k.e("v_pk_mul_f32 %s, %s, %s" % (vr(tb + 2 * i, 2), vr(tb + 2 * i, 2), vr(src + 2 * i, 2)))
            for i in range(8):
                k.e("v_exp_f32 v%d, v%d" % (tb + i, tb + i))
            for i in range(4):
                k.e("v_pk_add_f32 %s, %s, %s" % (vr(tb + 2 * i, 2), vr(tb + 2 * i, 2), one2))
            for i in range(8):
                k.e("v_rcp_f32 v%d, v%d" % (tb + i, tb + i))
            for i in range(4):
                k.e("v_pk_mul_f32 %s, %s, %s" % (vr(src + 2 * i, 2), vr(src + 2 * i, 2), vr(tb + 2 * i, 2)))
            pack_only(k, src, src)
            tq += 1
    k.e("s_waitcnt vmcnt(0)")
    for tm in range(4):
        for p in range(2):
            src = g.acc(tm, 1) + 8 * p
            k.e("buffer_store_dwordx4 %s, v%d, %s, s%d offen offset:%d sc1" % (vr(src, 4), g.vLane16, sr(eO, 4), sStA, p * 1024))
        if tm < 3:
            k.e("s_add_u32 s%d, s%d, %d" % (sStA, sStA, 480 * 1024))
    k.e("s_waitcnt lgkmcnt(0)")
    k.e("s_branch L_pj_fin")
    k.label("L_pj_H0")
    k.e("s_waitcnt vmcnt(0) lgkmcnt(0)")
    k.label("L_pj_fin")
    stamp(k, 3)
    k.e("s_cmp_ge_i32 s%d, 0" % sHelp)
    k.e("s_cbranch_scc1 L_pj_help")
    k.e("s_barrier")
    k.e("s_mul_i32 s%d, s%d, s%d" % (AT.sPend, sFo, sHv))
    k.e("s_lshl_b32 s78, s%d, 13" % AT.sWq)
    k.e("s_add_u32 s78, s78, 98304")
    k.e("v_add_u32 v14, s78, v%d" % g.vLane16)
    for C in range(8):
        k.e("ds_read_b128 %s, v14 offset:%d" % (vr(AT.vQ + 4 * C, 4), C * 1024))
    stamp(k, 7)
    if DIAG:
        k.e("v_mov_b32 v14, v78")
        k.e("v_mov_b32 v15, v79")
    k.e("s_branch L_at_fast")
    k.label("L_pj_help")
    k.e("s_waitcnt vmcnt(0)")
    k.e("s_barrier")
    lab = k.newlabel("noqh")
    k.e("s_cmp_lg_u32 s%d, 4" % sWv)
    k.e("s_cbranch_scc1 %s" % lab)
    k.e("v_mov_b32 v%d, 0" % (vPk + 4))
    k.e("v_mov_b32 v%d, s%d" % (vPk + 5, sNonce))
    k.e("s_mov_b64 exec, 1")
    k.e("buffer_store_dword v%d, v%d, %s, s%d offen sc1" % (vPk + 5, vPk + 4, sr(sDb, 4), sFo))
    k.e("s_mov_b64 exec, -1")
    k.label(lab)
    k.e("s_mov_b32 s2, s%d" % sHelp)
    k.e("s_branch L_pj_task")

    def emit_slow():
        for lab, back in slow:
            spin, helpl, rowl = k.newlabel("spin"), k.newlabel("help"), k.newlabel("rowl")
            k.label(lab)
            k.e("s_mov_b32 s78, 0")
            k.label(spin)
            k.e("buffer_load_dwordx4 %s, v%d, %s, 0 offen offset:%d sc1" % (vr(vRaw, 4), g.vLane16, sr(sDb, 4), FL_LN))
            k.e("s_waitcnt vmcnt(0)")
            poll_eval()
            k.e("s_cbranch_vccz %s" % back)
            k.e("s_add_u32 s78, s78, 1")
            k.e("s_cmp_ge_u32 s78, 32")
            k.e("s_cbranch_scc1 %s" % helpl)
            k.e("s_sleep 8")
            k.e("s_branch %s" % spin)
            k.label(helpl)
            first_missing(79, sTa)
            k.e("s_lshl_b32 s%d, s79, 3" % sRow)
            k.e("s_mov_b32 s78, 8")
            k.label(rowl)
            sv = (list(k.ldsq), list(k.vmq))
            k.vmq = []
            ln_load(k, g)
            for f in ln_steps(k, g):
                f()
            k.e("s_add_u32 s%d, s%d, 1" % (sRow, sRow))
            k.e("s_sub_u32 s78, s78, 1")
            k.e("s_cmp_lg_u32 s78, 0")
            k.e("s_cbranch_scc1 %s" % rowl)
            k.e("s_waitcnt vmcnt(0)")
            k.e("s_lshl_b32 s79, s79, 2")
            k.e("v_mov_b32 v%d, s79" % g.vTmp)
            k.e("v_mov_b32 v%d, s%d" % (g.vTmp + 1, sNonce))
            k.e("s_mov_b64 exec, 1")
            k.e("buffer_store_dword v%d, v%d, %s, 0 offen offset:%d sc1" % (g.vTmp + 1, g.vTmp, sr(sDb, 4), FL_LN))
            k.e("s_mov_b64 exec, -1")
            k.ldsq, k.vmq = sv
            k.e("s_mov_b32 s78, 31")
            k.e("s_branch %s" % spin)
    tail_code.append(emit_slow)
```
